```python
import torch

def _softmax(x, axis=-1):
    return torch.softmax(x, dim=axis)
def _gelu(x):
    return torch.nn.functional.gelu(x, approximate="tanh")
def _silu(x):
    return torch.nn.functional.silu(x)
def _sigmoid(x):
    return torch.sigmoid(x)
def _layernorm(x, axis=-1, eps=1e-5):
    m = x.mean(dim=axis, keepdim=True)
    v = x.var(dim=axis, keepdim=True, unbiased=False)
    return (x - m) / torch.sqrt(v + eps)
def _scatter_add(tgt, idx, src, axis=0):
    return tgt.clone().index_add_(axis, idx, src)
def _segment_sum(src, seg, n):
    out = torch.zeros((n,) + src.shape[1:], dtype=src.dtype)
    return out.index_add_(0, seg, src)
def _pad(x, pw):
    flat = tuple(v for pair in reversed(pw) for v in pair)
    return torch.nn.functional.pad(x, flat)

kernel_name = 'recurrent_scan__sliding_block__glu_gated_bilinear__prompt'

def setup_inputs():

    _w = (lambda a: (lambda t: t.to(torch.bfloat16) if t.is_floating_point() else t)(torch.as_tensor(a)))
    def _A_setup():
        B, S, D = 1, 2048, 512
        return {
            "x": _w((lambda *s: torch.randn(*s, dtype=torch.bfloat16) * 0.05)(B, S, D)),
            "wqkv": _w((lambda *s: torch.randn(*s, dtype=torch.bfloat16) * 0.2)(D, 3 * D)),
            "wo": _w((lambda *s: torch.randn(*s, dtype=torch.bfloat16) * 0.2)(D, D)),
        }
    _A_in = _A_setup()

    def _B_setup():
        B, S, D, F = 1, 2048, 512, 1792
        return {
            "x": _w((lambda *s: torch.randn(*s, dtype=torch.bfloat16) * 0.05)(B, S, D)),
            "w_gate": _w((lambda *s: torch.randn(*s, dtype=torch.bfloat16) * 0.1)(D, F) * (D ** -0.5)),
            "w_up": _w((lambda *s: torch.randn(*s, dtype=torch.bfloat16) * 0.1)(D, F) * (D ** -0.5)),
            "w_down": _w((lambda *s: torch.randn(*s, dtype=torch.bfloat16) * 0.1)(F, D) * (F ** -0.5)),
        }
    _B_in = _B_setup()

    return {
        "A_x": _A_in["x"],
        "A_wqkv": _A_in["wqkv"],
        "A_wo": _A_in["wo"],
        "B_x": _B_in["x"],
        "B_w_gate": _B_in["w_gate"],
        "B_w_up": _B_in["w_up"],
        "B_w_down": _B_in["w_down"],
    }

def reference(A_x, A_wqkv, A_wo, B_x, B_w_gate, B_w_up, B_w_down):
    def _A_ref(x, wqkv, wo):
        B, S, D = x.shape
        H = 32; Dh = D // H; W = 256
        qkv = (lambda x, *d: x.permute(*d))((x @ wqkv).reshape(B, S, 3, H, Dh), 2, 0, 3, 1, 4)
        q, k, v = qkv[0], qkv[1], qkv[2]
        scores = torch.einsum("bhqd,bhkd->bhqk", q, k) * (Dh ** -0.5)
        idx = torch.arange(S)
        mask = (idx[:, None] - idx[None, :] >= 0) & (idx[:, None] - idx[None, :] < W)
        scores = torch.where(mask[None, None], scores, -1e9)
        p = _softmax(scores, axis=-1)
        o = torch.einsum("bhqk,bhkd->bhqd", p, v)
        return (lambda x, *d: x.permute(*d))(o, 0, 2, 1, 3).reshape(B, S, D) @ wo

    def _B_ref(x, w_gate, w_up, w_down):
        g = torch.einsum("bsd,df->bsf", x, w_gate)
        u = torch.einsum("bsd,df->bsf", x, w_up)
        h = g * u
        return torch.einsum("bsf,fd->bsd", h, w_down)

    x = A_x
    xn = _layernorm(x, axis=-1)
    s = _A_ref(xn, A_wqkv, A_wo)
    g = _silu(_B_ref(xn, B_w_gate, B_w_up, B_w_down))
    return x + s * g
```

```python
import re

TRANS = ('v_exp_f32', 'v_log_f32', 'v_rcp_f32', 'v_rsq_f32', 'v_sqrt_f32', 'v_sin_f32', 'v_cos_f32', 'v_rcp_iflag_f32')

def regs_of(tok):
    tok = tok.strip()
    tok = tok.lstrip('-')
    if tok.startswith('abs(') and tok.endswith(')'):
        tok = tok[4:-1]
    if tok.startswith('|') and tok.endswith('|'):
        tok = tok[1:-1]
    m = re.fullmatch(r'([vas])(\d+)', tok)
    if m:
        return [tok]
    m = re.fullmatch(r'([vas])\[(\d+):(\d+)\]', tok)
    if m:
        return [f'{m.group(1)}{i}' for i in range(int(m.group(2)), int(m.group(3)) + 1)]
    if tok in ('vcc', 'vcc_lo', 'vcc_hi'):
        return ['vcc']
    if tok in ('exec', 'exec_lo', 'exec_hi'):
        return ['exec']
    if tok == 'm0':
        return ['m0']
    return []

def split_ops(s):
    out, depth, cur = [], 0, ''
    for c in s:
        if c == '[' or c == '(':
            depth += 1
        if c == ']' or c == ')':
            depth -= 1
        if c == ',' and depth == 0:
            out.append(cur.strip()); cur = ''
        else:
            cur += c
    if cur.strip():
        out.append(cur.strip())
    return out

class I:
    __slots__ = ('text', 'op', 'cls', 'dst', 'src', 'srcC', 'srcAB', 'passes', 'tag', 'meta', 'lds', 'store', 'wide', 'dpp', 'sel')
    def __init__(self, text, tag=None, **meta):
        self.text = text.strip()
        self.tag = tag
        self.meta = meta
        self.dst, self.src, self.srcC, self.srcAB = [], [], [], []
        self.passes = 0
        self.lds = False
        self.store = False
        self.wide = False
        self.dpp = False
        self.sel = []
        t = self.text.split(';')[0].strip()
        if t.endswith(':'):
            self.op = t; self.cls = 'label'; return
        if t.startswith('.') or not t:
            self.op = t; self.cls = 'dir'; return
        if t.startswith('@'):
            self.op = t; self.cls = 'pseudo'; return
        parts = t.split(None, 1)
        self.op = op = parts[0]
        rest = parts[1] if len(parts) > 1 else ''
        ops = split_ops(rest)
        mods = ''
        if ops:
            last = ops[-1].split(None, 1)
            if len(last) > 1 and not ops[-1].startswith('abs('):
                ops[-1] = last[0]; mods = last[1]
        R = [regs_of(o) for o in ops]
        flat = lambda l: [r for x in l for r in x]
        if op.startswith('v_mfma'):
            self.cls = 'mfma'
            self.dst = R[0]; self.srcAB = R[1] + R[2]; self.srcC = R[3]; self.src = self.srcAB + self.srcC
            self.passes = 8 if '32x32' in op else (4 if '16x16' in op else 2)
        elif op.startswith('v_'):
            self.cls = 'trans' if op.replace('_e32', '').replace('_e64', '') in TRANS else 'valu'
            if 'row_' in mods or 'quad_perm' in mods or 'wave_' in mods or op.endswith('_dpp'):
                self.dpp = True
            if op.startswith('v_cmp'):
                self.dst = R[0]; self.src = flat(R[1:])
            elif op.startswith(('v_add_co', 'v_sub_co', 'v_addc_co', 'v_subb_co', 'v_mad_u64', 'v_div_scale')):
                self.dst = R[0] + R[1]; self.src = flat(R[2:])
            elif op.startswith('v_permlane') and 'swap' in op:
                self.dst = R[0] + R[1]; self.src = R[0] + R[1]
            elif op.startswith(('v_fmac', 'v_dot2c', 'v_writelane', 'v_pk_fmac')):
                self.dst = R[0]; self.src = flat(R)
            elif op == 'v_nop':
                pass
            else:
                self.dst = R[0]; self.src = flat(R[1:])
            if self.dpp:
                self.src = self.src + self.dst
            if op.startswith(('v_readlane', 'v_writelane')):
                self.sel = R[2]
            if op.startswith('v_cndmask') and len(ops) == 3:
                self.src = self.src + ['vcc']
        elif op.startswith('ds_'):
            self.cls = 'ds'
            if op.startswith(('ds_read', 'ds_bpermute', 'ds_permute', 'ds_swizzle')):
                self.dst = R[0]; self.src = flat(R[1:])
            else:
                self.src = flat(R); self.store = True
        elif op.startswith(('buffer_', 'global_')):
            self.cls = 'vmem'
            allt = (rest + ' ').replace(',', ' ')
            self.lds = ' lds ' in allt or '_lds_' in op
            if op.startswith(('buffer_wbl2', 'buffer_inv')):
                pass
            elif 'load' in op:
                if self.lds:
                    self.src = flat(R) + ['m0']
                else:
                    self.dst = R[0]; self.src = flat(R[1:])
            elif 'atomic' in op:
                self.src = flat(R); self.store = True
                if ' sc0 ' in allt:
                    self.dst = R[0][:1] if not op.endswith('x2') else R[0][:2]
            else:
                self.src = flat(R); self.store = True
                self.wide = op.endswith(('x3', 'x4'))
                self.meta['data'] = R[0] if op.startswith('buffer_') else R[1]
        elif op.startswith(('s_load', 's_buffer_load', 's_memtime', 's_memrealtime')):
            self.cls = 'smem'
            self.dst = R[0]; self.src = flat(R[1:])
        elif op == 's_waitcnt':
            self.cls = 'wait'
        elif op == 's_nop':
            self.cls = 'nop'
        elif op == 's_barrier':
            self.cls = 'barrier'
        elif op.startswith(('s_branch', 's_cbranch', 's_endpgm', 's_setpc', 's_swappc')):
            self.cls = 'branch'
        elif op.startswith('s_'):
            self.cls = 'salu'
            if op.startswith(('s_cmp', 's_bitcmp', 's_setprio', 's_sleep')):
                self.src = flat(R)
            elif 'saveexec' in op:
                self.dst = R[0] + ['exec']; self.src = flat(R[1:]) + ['exec']
            elif op.startswith(('s_addk', 's_mulk')):
                self.dst = R[0]; self.src = R[0]
            else:
                self.dst = R[0]; self.src = flat(R[1:])
        else:
            raise ValueError('unknown instruction: ' + text)

    def states(self):
        if self.cls == 'nop':
            return int(self.text.split()[1], 0) + 1
        if self.cls in ('label', 'dir', 'pseudo'):
            return 0
        return 1

def need(p, c):
    n = 0
    isv = lambda x: x.cls in ('valu', 'trans')
    pv = set(r for r in p.dst if r[0] in 'va' and r != 'vcc')
    ps = set(r for r in p.dst if r[0] == 's' or r == 'vcc')
    csrc, cdst = set(c.src), set(c.dst)
    if isv(p):
        if c.cls == 'mfma' and pv & csrc: n = max(n, 2)
        if isv(c):
            if c.dpp and pv & csrc: n = max(n, 2)
            if c.op.startswith('v_permlane') and pv & csrc: n = max(n, 2)
            if c.op.startswith(('v_readlane', 'v_readfirstlane')) and pv & csrc: n = max(n, 1)
            if ps & csrc: n = max(n, 2)
            if ps & set(c.sel): n = max(n, 4)
            if p.cls == 'trans' and c.cls != 'trans' and pv & csrc: n = max(n, 1)
            if p.op.startswith('v_dot') and (pv & (csrc | cdst)):
                if not (c.op == p.op and not (pv & set(c.src[len(c.dst):]))): n = max(n, 3)
        if c.cls == 'vmem' and ps & csrc: n = max(n, 5)
        if 'exec' in p.dst: n = max(n, 5)
        if p.op.startswith('v_dot') and c.cls in ('mfma', 'ds', 'vmem') and pv & (csrc | cdst): n = max(n, 3)
    if p.cls == 'salu' and 'm0' in p.dst and c.cls == 'vmem' and c.lds: n = max(n, 1)
    if p.cls == 'vmem' and p.wide:
        d = set(p.meta['data'])
        if d & cdst: n = max(n, 2 if isv(c) or c.cls == 'mfma' else 1)
    if p.cls == 'mfma':
        k = {2: 0, 4: 1, 8: 2}[p.passes]
        d = set(p.dst)
        if c.cls == 'mfma':
            if d & set(c.srcAB): n = max(n, (5, 8, 12)[k])
            if d & set(c.srcC):
                if c.srcC == p.dst and c.passes == p.passes: n = max(n, (2, 0, 0)[k])
                else: n = max(n, (4, 6, 10)[k])
            elif d & cdst:
                n = max(n, (4, 6, 10)[k])
        elif c.cls in ('valu', 'trans', 'ds', 'vmem'):
            if d & (csrc | cdst): n = max(n, (5, 8, 12)[k])
            if isv(c) and set(p.srcC) & cdst: n = max(n, (1, 3, 7)[k])
            if c.cls in ('ds', 'vmem') and set(p.srcC) & cdst: n = max(n, (1, 3, 7)[k])
    return n

class Prog:
    def __init__(self):
        self.L = []
    def __call__(self, text, tag=None, **meta):
        for line in text.split('\n'):
            if line.strip():
                self.L.append(I(line, tag, **meta))
    def add(self, items):
        for x in items:
            if isinstance(x, I): self.L.append(x)
            elif isinstance(x, str): self(x)
            else: self.add(x)
    def waitvm(self, tag):
        self.L.append(I('@waitvm', tag))
    def waitlg(self, tag=None):
        self.L.append(I('@waitlg', tag))

def waitvm(tag): return I('@waitvm', tag)
def waitlg(tag=None): return I('@waitlg', tag)

def tagset(t):
    if t is None: return frozenset()
    if isinstance(t, (list, tuple, set, frozenset)): return frozenset(t)
    return frozenset([t])
def save(box): return I('@save', box=box)
def restore(box): return I('@restore', box=box)
def join(box): return I('@join', box=box)
def forget(): return I('@forget')

def insert_waits(L, verbose=False):
    out = []
    vm, lg = [], []
    def emit_wait(nvm, nlg):
        parts = []
        if nvm is not None:
            parts.append(f'vmcnt({min(nvm, 63)})')
        if nlg is not None:
            parts.append(f'lgkmcnt({min(nlg, 15)})')
        w = I('s_waitcnt ' + ' '.join(parts))
        if out and out[-1].cls == 'wait' and out[-1].meta.get('auto'):
            old = out.pop().text
            mv = re.search(r'vmcnt\((\d+)\)', old); ml = re.search(r'lgkmcnt\((\d+)\)', old)
            a = [x for x in (nvm, int(mv.group(1)) if mv else None) if x is not None]
            b = [x for x in (nlg, int(ml.group(1)) if ml else None) if x is not None]
            parts = []
            if a: parts.append(f'vmcnt({min(min(a), 63)})')
            if b: parts.append(f'lgkmcnt({min(min(b), 15)})')
            w = I('s_waitcnt ' + ' '.join(parts))
        w.meta['auto'] = True
        out.append(w)
    def drain(q, idx):
        del q[:idx + 1]
    for ins in L:
        if ins.cls == 'pseudo':
            if ins.op == '@waitvm':
                idx = max((i for i, e in enumerate(vm) if ins.tag is None or e[1] & tagset(ins.tag)), default=None)
                if idx is not None:
                    n = len(vm) - 1 - idx
                    if n > 63:
                        idx = len(vm) - 1 - 63; n = 63
                    emit_wait(n, None); drain(vm, idx)
            elif ins.op == '@waitlg':
                idx = max((i for i, e in enumerate(lg) if ins.tag is None or e[1] & tagset(ins.tag)), default=None)
                if idx is not None:
                    if any(e[2] for e in lg): idx = len(lg) - 1
                    n = len(lg) - 1 - idx
                    if n > 15:
                        idx = len(lg) - 1 - 15; n = 15
                    emit_wait(None, n); drain(lg, idx)
            elif ins.op == '@forget':
                vm.clear(); lg.clear()
            elif ins.op == '@save':
                ins.meta['box']['vm'] = list(vm); ins.meta['box']['lg'] = list(lg)
            elif ins.op == '@join':
                for q, o in ((vm, ins.meta['box']['vm']), (lg, ins.meta['box']['lg'])):
                    n = max(len(q), len(o)); r = []
                    for k in range(n, 0, -1):
                        a = q[-k] if k <= len(q) else (set(), frozenset(), False)
                        b = o[-k] if k <= len(o) else (set(), frozenset(), False)
                        r.append((a[0] | b[0], a[1] | b[1], a[2] or b[2]))
                    q[:] = r
            elif ins.op == '@restore':
                vm[:] = list(ins.meta['box']['vm']); lg[:] = list(ins.meta['box']['lg'])
            else:
                raise ValueError(ins.op)
            continue
        if ins.cls == 'wait':
            mv = re.search(r'vmcnt\((\d+)\)', ins.text); ml = re.search(r'lgkmcnt\((\d+)\)', ins.text)
            if mv:
                n = int(mv.group(1))
                if len(vm) > n: del vm[:len(vm) - n]
            if ml:
                n = int(ml.group(1))
                if n == 0 or not any(e[2] for e in lg):
                    if len(lg) > n: del lg[:len(lg) - n]
            out.append(ins); continue
        touch = set(ins.src) | set(ins.dst)
        nvm = nlg = None
        iv = max((i for i, e in enumerate(vm) if e[0] & touch), default=None)
        il = max((i for i, e in enumerate(lg) if e[0] & touch), default=None)
        if iv is not None:
            nvm = len(vm) - 1 - iv
            assert nvm <= 63 or True
            if nvm > 63: iv = len(vm) - 1 - 63; nvm = 63
        if il is not None:
            if any(e[2] for e in lg): il = len(lg) - 1
            nlg = len(lg) - 1 - il
            if nlg > 15: il = len(lg) - 1 - 15; nlg = 15
        if nvm is not None or nlg is not None:
            emit_wait(nvm, nlg)
            if iv is not None: drain(vm, iv)
            if il is not None: drain(lg, il)
        if ins.cls == 'vmem':
            if len(vm) >= 63:
                emit_wait(62, None); del vm[:len(vm) - 62]
            vm.append((set(ins.dst), tagset(ins.tag), False))
        elif ins.cls == 'ds':
            if len(lg) >= 15:
                emit_wait(None, 8 if not any(e[2] for e in lg) else 0)
                if any(e[2] for e in lg): lg.clear()
                else: del lg[:len(lg) - 8]
            lg.append((set(ins.dst), tagset(ins.tag), False))
        elif ins.cls == 'smem':
            lg.append((set(ins.dst), tagset(ins.tag), True))
            lg.append((set(), tagset(ins.tag), True))
        out.append(ins)
    return out

WINDOW = 21
def pad_hazards(L):
    out = []
    labels = {}
    for i, x in enumerate(L):
        if x.cls == 'label': labels[x.op[:-1]] = i
    def head(i, n):
        r = []
        while i < len(L) and len(r) < n:
            if L[i].states(): r.append(L[i])
            if L[i].op in ('s_branch', 's_endpgm'): break
            i += 1
        return r
    nins = 0
    for ins in L:
        if ins.states():
            req = 0
            dist = 0
            for p in reversed(out):
                if p.op in ('s_branch', 's_endpgm'): break
                if dist >= WINDOW: break
                if p.states():
                    k = need(p, ins) - dist
                    if k > req: req = k
                    dist += p.states()
            if ins.cls == 'branch' and ins.op != 's_endpgm':
                tgt = ins.text.split()[1]
                if tgt in labels:
                    h = head(labels[tgt], WINDOW)
                    dist = 0
                    for p in reversed(out):
                        if p.op in ('s_branch', 's_endpgm'): break
                        if dist >= WINDOW: break
                        if p.states():
                            d2 = dist + 1
                            for c in h:
                                k = need(p, c) - d2
                                if k > req: req = k
                                d2 += c.states()
                            dist += p.states()
            while req > 0:
                k = min(req, 16)
                out.append(I(f's_nop {k - 1}', auto=True)); nins += 1
                req -= k
        out.append(ins)
    return out

def finish(L):
    L = insert_waits(L)
    L = pad_hazards(L)
    return L

def text(L):
    o = []
    for x in L:
        if x.cls == 'label': o.append(x.text)
        else: o.append('    ' + x.text)
    return '\n'.join(o) + '\n'

COST = {'valu': 4, 'trans': 8, 'mfma': 8, 'ds': 4, 'vmem': 4, 'salu': 4, 'smem': 4, 'wait': 4, 'barrier': 4, 'branch': 4}
def estimate(L):
    t = 0; pipe = 0; prev = None
    for x in L:
        if not x.states(): continue
        c = 4 * x.states() if x.cls == 'nop' else COST[x.cls]
        if x.cls in ('ds', 'vmem') and prev is not None and prev.cls in ('valu', 'trans'): c += 8
        if x.cls == 'mfma':
            t = max(t, pipe)
            pipe = t + 4 * x.passes
        t += c
        prev = x
    return max(t, pipe)

def interleave(mf, gaps):
    out = []
    for i, m in enumerate(mf):
        out.append(m)
        out.extend(gaps.get(i, []))
    return out

def cost(x):
    if isinstance(x, (list, tuple)): return sum(cost(y) for y in x)
    if not x.states(): return 0
    return 4 * x.states() if x.cls == 'nop' else COST[x.cls]

def mk(x, tag=None):
    if isinstance(x, I): return [x]
    if isinstance(x, str): return [I(l, tag) for l in x.split('\n') if l.strip()]
    r = []
    for y in x: r.extend(mk(y, tag))
    return r

class Pool:
    def __init__(self, maxvm=99): self.q = []; self.maxvm = maxvm
    def put(self, x, tag=None): self.q.extend(mk(x, tag))
    def take(self, room, memok):
        out = []
        nvm = 0
        while self.q:
            x = self.q[0]
            mem = x.cls in ('vmem', 'ds')
            if mem and not memok: break
            if x.cls == 'vmem':
                if nvm >= self.maxvm: break
                if x.lds and out and 'm0' in out[-1].dst: break
                nvm += 1
            c = cost(x)
            if c > room and c: break
            out.append(self.q.pop(0)); room -= c
            if x.cls in ('valu', 'trans'): memok = False
        return out
    def rest(self):
        r = self.q; self.q = []
        return r

def weave(P, mfs, fixed, pools=(), slack=0, timed=None):
    for g, m in enumerate(mfs):
        for pool, work in (timed or {}).get(g, []): pool.put(work)
        m = mk(m)
        P.add(m)
        f = mk(fixed.get(g, []))
        P.add(f)
        room = 4 * m[-1].passes - 8 - cost(f) - slack
        memok = not any(x.cls in ('valu', 'trans') for x in f)
        for pool in pools:
            t = pool.take(room, memok)
            P.add(t)
            room -= cost(t)
            if any(x.cls in ('valu', 'trans') for x in t): memok = False
```

```python
from common import *

class AR:
    L16 = 1; T = 2; J = 10; PM = 12; VA = 20; M = 30
    S = 32
    D0, A0, D1, A1 = 80, 96, 112, 128
    N = 144; O = 176; P = 208; PA = 216
    aQ = 0; aK = 8; aV = 48
    LDS_V = 0; LDS_ONE = 16384
    sHead = 's62'; sQb = 's63'; sNb = 's64'; sKo = ('s65', 's66', 's67'); sQo = 's68'; sVo = 's69'; sOo = 's70'
    msk = ('s[82:83]', 's[84:85]', 's[86:87]')
R = AR
NINF = '0xff800000'
ITEMS = [(0, 1)] + [(t, b) for b in range(2, 8) for t in range(2)] + [(1, 8)]

def qk(d, b, t, c):
    return f'v_mfma_f32_32x32x16_bf16 {vr(d, 16)}, {ar(R.aK + 4*b, 4)}, {ar(R.aQ + 4*t, 4)}, {c}'
def pv(t, b, half, p, first=False):
    o = vr(R.O + 16*t, 16)
    return f'v_mfma_f32_32x32x16_bf16 {o}, {ar(R.aV + 8*b + 4*half, 4)}, {vr(p + 4*half, 4)}, {"0" if first else o}'

def ids(P):
    P(f'''s_and_b32 {R.sHead}, s2, 31
    s_lshr_b32 {R.sQb}, s2, 5
    s_lshl_b32 {s.spin}, {s.w}, 1
    s_sub_u32 {R.sNb}, 8, {s.spin}
    s_lshl3_add_u32 {s.spin}, {R.sQb}, {s.spin}
    s_lshl_b32 {R.sOo}, {s.spin}, 5
    s_add_u32 {R.sOo}, {R.sOo}, {R.sHead}
    s_lshl_b32 {R.sOo}, {R.sOo}, 10
    s_add_u32 {R.sOo}, {R.sOo}, {WS_O}
    s_lshl_b32 {R.sVo}, {R.sHead}, 6
    s_add_u32 {R.sQo}, {R.sVo}, {s.spin}
    s_lshl_b32 {R.sQo}, {R.sQo}, 10
    s_add_u32 {R.sQo}, {R.sQo}, {WS_QKV}
    s_add_u32 {R.sKo[0]}, {R.sQo}, {32*65536 - 8*1024}
    s_add_u32 {R.sKo[1]}, {R.sKo[0]}, 4096
    s_add_u32 {R.sKo[2]}, {R.sKo[0]}, 8192
    s_lshl_b32 {s.spin}, {R.sQb}, 1
    s_add_u32 {s.spin}, {s.spin}, {s.w}
    s_sub_u32 {s.spin}, {s.spin}, 2
    s_max_i32 {s.spin}, {s.spin}, 0
    s_lshl2_add_u32 {R.sVo}, {s.spin}, {R.sVo}
    s_lshl_b32 {R.sVo}, {R.sVo}, 10
    s_add_u32 {R.sVo}, {R.sVo}, {WS_QKV + 64*65536}''')

def loads(sc=' sc1'):
    r = []
    for t in range(2):
        r += mk(f'buffer_load_dwordx4 {ar(R.aQ + 4*t, 4)}, v{R.L16}, {sWS}, {R.sQo} offen offset:{1024*t}{sc}')
    for b in (8, 0, 9, 1, 2, 3, 4, 5, 6, 7):
        r += mk(f'buffer_load_dwordx4 {ar(R.aK + 4*b, 4)}, v{R.L16}, {sWS}, {R.sKo[b >> 2]} offen offset:{1024*(b & 3)}{sc}')
    r += mk(f's_lshl_b32 m0, {s.w}, 12' if R.LDS_V == 0 else f's_add_u32 m0, {s.mx}, {R.LDS_V}')
    r += mk('s_nop 0')
    for j in range(4):
        r += mk(f'buffer_load_dwordx4 v{R.L16}, {sWS}, {R.sVo} offen offset:{1024*j}{sc} lds', 'V')
    return r

def setup():
    t = R.T
    r = [f'v_mov_b32 v{t+k}, 0x3f803f80' for k in range(4)]
    r += [f'v_add_u32 v{t+4}, {R.LDS_ONE}, v{R.L16}', f'ds_write_b128 v{t+4}, {vr(t, 4)}']
    r += f'''v_lshrrev_b32 v{t+5}, 5, v0
    v_and_b32 v{t+6}, 15, v0
    v_lshlrev_b32 v{t+6}, 3, v{t+6}
    v_lshl_add_u32 v{t+6}, v{t+5}, 7, v{t+6}
    s_lshl_b32 {s.spin}, {s.w}, 11
    s_add_u32 {s.spin}, {s.spin}, {R.LDS_V}
    v_add_u32 v{t+7}, {s.spin}, v{t+6}
    v_xor_b32 v{t+6}, {R.LDS_ONE + 128}, v{t+6}
    v_and_b32 v{R.J}, 16, v0
    v_cmp_eq_u32 {R.msk[0]}, 0, v{R.J}
    v_mov_b32 v{R.J+1}, 1024
    v_and_b32 v{R.J}, 31, v0
    v_cndmask_b32 v{R.VA}, v{t+6}, v{t+7}, {R.msk[0]}
    v_cndmask_b32 v{t+7}, 0, v{R.J+1}, {R.msk[0]}
    v_lshlrev_b32 v{t+5}, 2, v{t+5}
    v_sub_u32 v{R.J}, v{R.J}, v{t+5}
    v_mov_b32 v{R.J+1}, 0xffff
    v_mov_b32 v{R.M}, {NINF}
    v_mov_b32 v{R.M+1}, {NINF}'''.split('\n')
    r += [f'v_add_u32 v{R.VA+b}, v{R.VA+b-1}, v{t+7}' for b in range(1, 10)]
    r += [f's_cmp_eq_u32 {R.sQb}, 0', 's_cselect_b64 vcc, -1, 0']
    return mk(r)

def vreads():
    r = []
    for b in (1, 2, 3, 4, 5, 6, 7, 8, 0, 9):
        for k in range(4):
            r.append(f'ds_read_b64_tr_b16 {ar(R.aV + 8*b + 2*k, 2)}, v{R.VA+b} offset:{256*k}')
    return r

def stub(P, cold, name, nb, body):
    P(f's_cbranch_vccnz L_{name}\nL_{name}_back:')
    cold(f'L_{name}:')
    if nb is not None:
        cold(f's_cmp_eq_u32 {R.sNb}, {nb}\ns_cbranch_scc0 L_{name}_back')
    cold.add(body)
    cold(f's_branch L_{name}_back')

def spread(head, mf, every):
    out = []; mf = list(mf)
    for i, x in enumerate(head):
        if i % every == 0 and mf: out.append(mf.pop(0))
        out.append(x)
    return out + mf

def pass1(P, cold, pre):
    sb = lambda k: R.S + 16 * (k % 3)
    P.add(spread(pre, [qk(R.D0, 8, 0, '0'), qk(R.A0, 0, 0, '0'), qk(R.D1, 9, 1, '0'), qk(R.A1, 1, 1, '0')], 6))
    stub(P, cold, 'at_anti', None, [f'v_mov_b32 v{a+r}, {NINF}' for a in (R.A0, R.A1) for r in range(16)])
    mg = []
    c = lambda r: 8 * (r >> 2) + (r & 3)
    cmpi = lambda r: f'v_cmp_le_i32 {R.msk[r % 3]}, {c(r)}, v{R.J}'
    mg += [cmpi(0), cmpi(1)]
    for r in range(16):
        if r + 2 < 16: pass
        m = R.msk[r % 3]
        mg.append(f'v_cndmask_b32 v{R.D0+r}, v{R.A0+r}, v{R.D0+r}, {m}')
        mg.append(f'v_cndmask_b32 v{R.D1+r}, v{R.A1+r}, v{R.D1+r}, {m}')
        if r & 1 == 0: mg.append(f'v_cndmask_b32 v{R.PM + r//2}, 0, v{R.J+1}, {m}')
        else: mg.append(f'v_cndmask_b32 v{R.PM + r//2}, v{R.PM + r//2}, -1, {m}')
        if r + 2 < 16: mg.append(cmpi(r + 2))
    P.add(spread(mg, [qk(sb(k), ITEMS[k][1], ITEMS[k][0], '0') for k in range(2)], 30))
    P.waitvm('V'); P.waitlg(); P('s_barrier')
    vq = vreads()
    for k, (t, b) in enumerate(ITEMS):
        if k + 2 < len(ITEMS): P(qk(sb(k + 2), ITEMS[k+2][1], ITEMS[k+2][0], '0'))
        for _ in range(3 if k + 2 < len(ITEMS) else 2):
            if vq: P(vq.pop(0))
        if b % 2 == 0 and (t == 0 or b == 8):
            stub(P, cold, f'at_m{b}', b, [f'v_mov_b32 v{R.M}, {NINF}', f'v_mov_b32 v{R.M+1}, {NINF}'])
        for j in range(8):
            P(f'v_max3_f32 v{R.M+t}, v{R.M+t}, v{sb(k)+2*j}, v{sb(k)+2*j+1}')
    assert not vq
    for j in range(8):
        for t, d in enumerate((R.D0, R.D1)):
            P(f'v_max3_f32 v{R.M+t}, v{R.M+t}, v{d+2*j}, v{d+2*j+1}')
    P(f'''v_permlane32_swap_b32 v{R.M}, v{R.M+1}
    v_min_f32 v{R.N+16}, -v{R.M}, -v{R.M+1}
    v_min_f32 v{R.N}, -v{R.M}, -v{R.M+1}
    v_permlane32_swap_b32 v{R.N}, v{R.N+16}''')

def pass2(P, cold):
    sb = lambda k: R.S + 16 * (k & 1)
    n = lambda t: vr(R.N + 16*t, 16)
    for r in range(1, 16): P(f'v_mov_b32 v{R.N+r}, v{R.N}')
    P(qk(sb(0), ITEMS[0][1], 0, n(0)))
    for r in range(1, 16): P(f'v_mov_b32 v{R.N+16+r}, v{R.N+16}')
    sub = [f'v_add_f32 v{d+r}, v{d+r}, v{R.N+16*t}' for t, d in enumerate((R.D0, R.D1)) for r in range(16)]
    P.add(sub)
    ex = lambda x: f'v_exp_f32 v{x}, v{x}'
    cv = lambda p, x: f'v_cvt_pk_bf16_f32 v{p}, v{x}, v{x+1}'
    pend = []
    seen = set()
    for k, (t, b) in enumerate(ITEMS):
        x = sb(k)
        if k + 1 < len(ITEMS): P(qk(sb(k + 1), ITEMS[k+1][1], ITEMS[k+1][0], n(ITEMS[k+1][0])))
        P.add([ex(x + r) for r in range(3)]); P.add(pend); pend = []
        P.add([ex(x + r) for r in range(3, 8)])
        P.add([cv(R.P + j, x + 2*j) for j in range(4)])
        P.add([ex(x + 8), ex(x + 9)])
        if b % 2 == 0 and (t == 0 or b == 8):
            stub(P, cold, f'at_o{b}', b, [f'v_mov_b32 v{R.O+r}, 0' for r in range(32)])
        P(pv(t, b, 0, R.P, t not in seen)); seen.add(t)
        P.add([ex(x + r) for r in range(10, 16)])
        P.add([cv(R.P + j, x + 2*j) for j in range(4, 8)])
        pend = [pv(t, b, 1, R.P)]
    for t, x in enumerate((R.D0, R.D1)):
        def half(h):
            js = range(4*h, 4*h + 4)
            return ([cv(R.PA + j, x + 2*j) for j in js] + [f'v_and_b32 v{R.P+j}, v{R.PM+j}, v{R.PA+j}' for j in js] +
                    [f'v_xor_b32 v{R.PA+j}, v{R.P+j}, v{R.PA+j}' for j in js])
        P.add([ex(x + r) for r in range(2)]); P.add(pend[:1])
        P.add([ex(x + r) for r in range(2, 5)]); P.add(pend[1:])
        P.add([ex(x + r) for r in range(5, 8)])
        P.add(half(0))
        P.add([ex(x + 8), ex(x + 9)])
        P(pv(t, t + 8, 0, R.P))
        P.add([ex(x + r) for r in range(10, 13)])
        P(pv(t, t, 0, R.PA))
        P.add([ex(x + r) for r in range(13, 16)])
        P.add(half(1))
        pend = [pv(t, t + 8, 1, R.P), pv(t, t, 1, R.PA)]
    def fin(t, sc=' sc1'):
        o = R.O + 16*t
        r = [f'v_rcp_f32 v{o+8}, v{o+8}', 's_nop 0'] + [f'v_mul_f32 v{o+k}, v{o+8}, v{o+k}' for k in range(8)]
        r += [f'v_cvt_pk_bf16_f32 v{o+k}, v{o+2*k}, v{o+2*k+1}' for k in range(4)]
        return mk(r) + mk(f'buffer_store_dwordx4 {vr(o, 4)}, v{R.L16}, {sWS}, {R.sOo} offen{sc}', 'sto')
    f0 = fin(0)
    P.add(f0[:2]); P(pend[0]); P.add(f0[2:8]); P(pend[1]); P.add(f0[8:])
    P(f's_add_u32 {R.sOo}, {R.sOo}, 32768')
    P.add(fin(1))

def standalone(P, cold, cfg):
    from g1 import wave_ids
    srd_load(P, sWS, 72)
    stamp_begin(P)
    wave_ids(P)
    srd_const(P, sWS, WS_SIZE)
    ids(P)
    P.waitlg()
    stamp_keep(P)
    P.add(loads())
    su = setup()
    P.add(su[:-14])
    stamp(P, 1)
    pass1(P, cold, su[-14:])
    stamp(P, 2)
    pass2(P, cold)
    stamp(P, 3)
    P(f'''s_or_b32 {s.spin}, s2, {s.w}
    s_cmp_eq_u32 {s.spin}, 0
    s_cbranch_scc0 L_nobump
    v_mov_b32 v2, 0
    buffer_load_dword v3, v2, {sWS}, 0 offen sc1
    v_add_u32 v3, 1, v3
    buffer_store_dword v3, v2, {sWS}, 0 offen sc1
    L_nobump:''')
```

```python
from asmlib import *

WS_EPOCH = 0x0
WS_STATS = 0x10000
WS_FLAGQ = 0x20000
WS_FLAGH = 0x40000
WS_FLAGO = 0x60000
WS_QKV   = 0x100000
WS_O     = 0x700000
WS_H     = 0x900000
WS_SIZE  = 0x1000000

sX, sQ, sU1, sU2, sG, sU, sWS, sWD, sWO, sOUT, sDBG = (f's[{i}:{i+3}]' for i in range(4, 48, 4))
S = {}
def _s(names, start):
    for i, n in enumerate(names.split()):
        S[n] = f's{start + i}'
_s('w th ch rb cg isb str64 kc kx k0 k1 k2 n0 n1 t0 t1 t2 t3 t4 t5 qo0 qo1 qo2 qo3 qo4 qo5 ho0 ho1 ho2 ho3 fac '
   'mx mw spin', 48)
S['m0a'] = 's[82:83]'; S['m0b'] = 's[84:85]'; S['m0c'] = 's[86:87]'
class _NS:
    def __init__(self, d): self.__dict__.update(d)
s = _NS(S)

def vr(b, n=1):
    return f'v{b}' if n == 1 else f'v[{b}:{b+n-1}]'
def ar(b, n=1):
    return f'a{b}' if n == 1 else f'a[{b}:{b+n-1}]'

LOG2E = 1.4426950408889634
import struct
def f32(x):
    return '0x%08x' % struct.unpack('<I', struct.pack('<f', x))[0]

def srd_const(P, srd, size):
    b = int(srd[2:srd.index(':')])
    P(f's_mov_b32 s{b+2}, {hex(size)}')
    P(f's_mov_b32 s{b+3}, 0x20000')
def srd_load(P, srd, off):
    b = int(srd[2:srd.index(':')])
    P(f's_load_dwordx2 s[{b}:{b+1}], s[0:1], {off}')

KD = '''.section .rodata,"a"
.p2align 6
.amdhsa_kernel {name}
  .amdhsa_next_free_vgpr 512
  .amdhsa_next_free_sgpr 102
  .amdhsa_accum_offset 256
  .amdhsa_group_segment_fixed_size 0
  .amdhsa_kernarg_size 80
  .amdhsa_user_sgpr_count 2
  .amdhsa_user_sgpr_kernarg_segment_ptr 1
  .amdhsa_system_sgpr_workgroup_id_x 1
  .amdhsa_float_denorm_mode_32 3
.end_amdhsa_kernel
'''
def kernel_text(name, L):
    return (f'.text\n.globl {name}\n.p2align 8\n.type {name},@function\n{name}:\n' + text(L) + KD.format(name=name))

STAMPS = [False]
aStamp = None
def stamp_begin(P):
    if not STAMPS[0]: return
    P('s_memtime s[98:99]\ns_memrealtime s[100:101]')
def stamp_keep(P):
    if not STAMPS[0]: return
    P('s_mov_b32 s3, s98\ns_mov_b32 s99, s100')
def stamp(P, idx):
    if not STAMPS[0]: return
    if idx == 6: P('s_memtime s[100:101]')
    else: P(f's_memtime s[{86+2*idx}:{87+2*idx}]')
def stamp_end(P):
    if not STAMPS[0]: return
    P('s_waitcnt vmcnt(0) lgkmcnt(0)')
    P('s_mov_b32 s98, s100')
    P('s_memtime s[82:83]\ns_memrealtime s[84:85]\ns_waitcnt lgkmcnt(0)')
    regs = ['s3', 's88', 's90', 's92', 's94', 's96', 's98', 's82'] + ['0'] * 6 + ['s99', 's84']
    for k, r in enumerate(regs): P(f'v_mov_b32 v{16+k}, {r}')
    P(f's_lshl2_add_u32 s82, s2, {s.w}\ns_lshl_b32 s82, s82, 7\ns_add_u32 s82, s82, 0x80000\nv_mov_b32 v2, 0')
    for k in range(4): P(f'buffer_store_dwordx4 v[{16+4*k}:{19+4*k}], v2, {sWS}, s82 offen offset:{16*k}')
```

```python
from common import *

class DR:
    L16 = 1; T = 2
    Wd = 10
    RA = 14
    Rs = 18
    Xo = 20; Oo = 21; Red = 22
    X = 24
    WF = 32
    H = 48
    F = 96
    Sx = 160
    G = 192
    aO = 0
    LDS_RING = 0; LDS_WO = 65536; LDS_EX = 131072
    sTb = 's62'; sC = 's63'; sHo = ('s64', 's65'); sWk = 's66'; sOo = 's67'; sXo = 's68'; sRing = 's69'; sSt = 's70'
R = DR
def facc(tt, ct): return R.F + 16 * (2*tt + ct)

def ids(P):
    P(f'''s_and_b32 {s.mx}, s2, 7
    s_lshr_b32 {R.sC}, s2, 3
    s_lshr_b32 {R.sTb}, {R.sC}, 3
    s_lshl2_add_u32 {R.sTb}, {s.mx}, {R.sTb}
    s_and_b32 {R.sC}, {R.sC}, 7
    s_and_b32 {s.th}, {s.w}, 1
    s_lshr_b32 {s.ch}, {s.w}, 1''')

def kstep_of(u):
    return (0, 2*u) if u < 6 else (1, 2*(u - 6))

def unit_loads(u):
    late, k = kstep_of(u)
    r = []
    if u == 6:
        r += mk(f'''s_lshl_b32 {s.spin}, {s.w}, 2
        s_add_u32 {s.spin}, {s.spin}, 36
        s_lshl_b32 {s.mw}, {s.spin}, 14
        s_add_u32 {R.sWk}, {R.sWk}, {s.mw}
        s_lshl_b32 {s.mw}, {s.spin}, 10
        s_add_u32 {R.sHo[0]}, {R.sHo[0]}, {s.mw}
        s_add_u32 {R.sHo[1]}, {R.sHo[1]}, {s.mw}''')
    r += mk(f's_add_u32 m0, {R.sRing}, {(u & 3) * 4096}')
    for ks in range(2):
        for t in range(2):
            r += mk(f'buffer_load_dwordx4 {vr(R.H + 16*(u % 3) + 8*ks + 4*t, 4)}, v{R.L16}, {sWS}, {R.sHo[t]} offen offset:{1024*ks} sc1')
    for j in range(4):
        r += mk(f'buffer_load_dwordx4 v{R.Wd+j}, {sWD}, {R.sWk} offen offset:{1024*j} lds', f'w{u}')
    r += mk(f'''s_add_u32 {R.sWk}, {R.sWk}, 32768
    s_add_u32 {R.sHo[0]}, {R.sHo[0]}, 2048
    s_add_u32 {R.sHo[1]}, {R.sHo[1]}, 2048''')
    return r

def wreads(par, base, off):
    return [[f'ds_read_b64_tr_b16 {vr(R.WF + 8*par + 4*ct + 2*j, 2)}, v{base+ct} offset:{off + 1024*j}' for j in range(2)] for ct in range(2)]

def mf(d, a, b, first):
    return f'v_mfma_f32_32x32x16_bf16 {vr(d, 16)}, {a}, {b}, {"0" if first else vr(d, 16)}'

def standalone(P, cold, cfg):
    from g1 import wave_ids
    for srd, off in ((sX, 0), (sWO, 16), (sWD, 48), (sOUT, 56), (sWS, 72)):
        srd_load(P, srd, off)
    stamp_begin(P)
    wave_ids(P)
    srd_const(P, sX, 2048*512*2); srd_const(P, sWS, WS_SIZE); srd_const(P, sWO, 512*512*2)
    srd_const(P, sWD, 1792*512*2); srd_const(P, sOUT, 2048*512*2)
    ids(P)
    t = R.T
    P(f'''s_mul_i32 {R.sHo[0]}, {R.sTb}, {2*112*1024}
    s_mul_i32 {s.spin}, {s.w}, {12*1024}
    s_add_u32 {R.sHo[0]}, {R.sHo[0]}, {s.spin}
    s_add_u32 {R.sHo[0]}, {R.sHo[0]}, {WS_H}
    s_add_u32 {R.sHo[1]}, {R.sHo[0]}, {112*1024}
    s_lshl_b32 {R.sWk}, {s.spin}, 4
    s_lshl_b32 {R.sRing}, {s.w}, 14
    s_lshl1_add_u32 {s.spin}, {R.sTb}, {s.th}
    s_lshl_b32 {R.sOo}, {s.spin}, 1
    s_add_u32 {R.sOo}, {R.sOo}, {s.ch}
    s_lshl_b32 {R.sOo}, {R.sOo}, 14
    s_add_u32 {R.sOo}, {R.sOo}, {WS_O}
    s_lshl_b32 {R.sSt}, {s.spin}, 9
    s_add_u32 {R.sSt}, {R.sSt}, {WS_STATS}
    s_lshl_b32 {R.sXo}, {s.spin}, 15
    s_lshl1_add_u32 {s.spin}, {R.sC}, {s.ch}
    s_lshl_b32 {s.spin}, {s.spin}, 6
    s_add_u32 {R.sXo}, {R.sXo}, {s.spin}''')
    P(f'''v_lshrrev_b32 v{t}, 3, v0
    v_and_b32 v{t+1}, 7, v0
    v_bfe_u32 v{t+2}, v0, 4, 1
    v_lshlrev_b32 v{t+2}, 2, v{t+2}
    v_xor_b32 v{t+1}, v{t+1}, v{t+2}
    v_lshlrev_b32 v{t+1}, 4, v{t+1}
    v_lshl_add_u32 v{t+1}, v{t}, 10, v{t+1}
    s_lshl_b32 {s.spin}, {R.sC}, 7
    v_add_u32 v{R.Wd}, {s.spin}, v{t+1}
    v_add_u32 v{R.Wd+1}, 7168, v{R.Wd}
    v_add_u32 v{R.Wd+2}, {2*7168}, v{R.Wd}
    v_add_u32 v{R.Wd+3}, {3*7168}, v{R.Wd}
    v_and_b32 v{t+3}, 31, v0
    v_lshrrev_b32 v{t+4}, 5, v0
    v_lshlrev_b32 v{R.Oo}, 10, v{t+3}
    v_lshl_add_u32 v{R.Xo}, v{t+4}, 3, v{R.Oo}
    v_lshl_add_u32 v{R.Oo}, v{t+4}, 4, v{R.Oo}
    v_lshlrev_b32 v{t+3}, 4, v{t+3}''')
    P.waitlg()
    stamp_keep(P)
    P.add(unit_loads(0)); P.add(unit_loads(1))
    P(f'buffer_load_dword v{R.Rs}, v{t+3}, {sWS}, {R.sSt} offen offset:4 sc1')
    for g in range(4):
        P(f'buffer_load_dwordx2 {vr(R.X + 2*g, 2)}, v{R.Xo}, {sX}, {R.sXo} offen offset:{16*g}')
    P(f'''v_bfe_u32 v{t}, v0, 2, 2
    v_bfe_u32 v{t+1}, v0, 4, 1
    v_bfe_u32 v{t+2}, v0, 1, 1
    v_lshl_add_u32 v{t+2}, v{t+1}, 1, v{t+2}
    v_bfe_u32 v{t+1}, v0, 3, 1
    v_lshl_add_u32 v{t+2}, v{t+1}, 2, v{t+2}
    v_and_b32 v{t+1}, 1, v0
    v_lshlrev_b32 v{t+1}, 3, v{t+1}
    v_lshl_add_u32 v{t+2}, v{t+2}, 4, v{t+1}
    v_lshl_add_u32 v{t+2}, v{t}, 7, v{t+2}
    v_lshl_add_u32 v{t+5}, v{t+4}, 9, v{t+2}
    v_add_u32 v{R.RA}, {R.sRing}, v{t+5}
    v_xor_b32 v{R.RA+1}, 64, v{R.RA}
    v_lshl_add_u32 v{t+5}, v{t+4}, 10, v{t+2}
    s_lshl_b32 {s.spin}, {s.ch}, 15
    s_add_u32 {s.spin}, {s.spin}, {R.LDS_WO}
    v_add_u32 v{R.RA+2}, {s.spin}, v{t+5}
    v_xor_b32 v{R.RA+3}, 64, v{R.RA+2}''')
    stamp(P, 1)
    extra = []
    for q in range(4):
        g = mk(f's_lshl_b32 {s.spin}, {s.w}, 14\ns_add_u32 m0, {s.spin}, {R.LDS_WO + q*4096}\ns_lshl_b32 {s.spin}, {s.w}, 17\ns_add_u32 {s.spin}, {s.spin}, {q*32768}')
        g += mk([f'buffer_load_dwordx4 v{R.Wd+j}, {sWO}, {s.spin} offen offset:{1024*j} lds' for j in range(4)], 'wo')
        extra.append(g)
    for q in range(4):
        g = mk([f'buffer_load_dwordx4 {ar(R.aO + 16*q + 4*j, 4)}, v{R.L16}, {sWS}, {R.sOo} offen offset:{1024*j} sc1' for j in range(4)])
        g += mk(f's_add_u32 {R.sOo}, {R.sOo}, 4096')
        extra.append(g)
    P.waitvm('w0')
    P.add(wreads(0, R.RA, 0))
    dq = Pool(2)
    for u in range(14):
        P.add(dq.rest())
        if u + 2 < 14: dq.put(unit_loads(u + 2))
        if u >= 6 and extra: dq.put(extra.pop(0))
        for ks in range(2):
            mfs, fixed = [], {}
            if ks == 0: rd = wreads(1, R.RA, (u & 3)*4096 + 2048)
            elif u + 1 < 14:
                P.waitvm(f'w{u+1}')
                rd = wreads(0, R.RA, ((u + 1) & 3)*4096)
            else: rd = []
            for ct in range(2):
                for tt in range(2):
                    if tt == 0 and rd: fixed[len(mfs)] = rd.pop(0)
                    mfs.append(mf(facc(tt, ct), vr(R.WF + 8*ks + 4*ct, 4), vr(R.H + 16*(u % 3) + 8*ks + 4*tt, 4), u == 0 and ks == 0))
            weave(P, mfs, fixed, (dq,), slack=0)
    P.add(dq.rest())
    assert not extra
    stamp(P, 2)
    P('s_barrier')
    P(f'''s_lshl_b32 {s.spin}, {s.w}, 12
    v_add_u32 v{R.Red}, {s.spin}, v{R.L16}''')
    box = {}
    for w in range(4):
        if w < 3: P(f's_cmp_eq_u32 {s.w}, {w}\ns_cbranch_scc0 L_red{w+1}')
        for d in range(4):
            src = facc(d & 1, d >> 1)
            if d == w:
                P.add([f'v_mov_b32 v{R.G+r}, v{src+r}' for r in range(16)])
            else:
                for q in range(4): P(f'ds_write_b128 v{R.Red}, {vr(src + 4*q, 4)} offset:{d*16384 + q*1024}')
        P.waitlg()
        if w < 3: P(f's_branch L_redw\nL_red{w+1}:')
    P('L_redw:')
    P.waitvm('wo')
    P('s_barrier')
    P(f'''s_lshl_b32 {s.spin}, {s.w}, 14
    v_add_u32 v{R.Red}, {s.spin}, v{R.L16}
    v_mul_f32 v{R.Rs}, v{R.Rs}, v{R.Rs}
    v_mul_f32 v{R.Rs+1}, {f32(-LOG2E)}, v{R.Rs}''')
    for k in range(1, 4):
        P(f's_add_u32 {s.mw}, {s.w}, {k}\ns_and_b32 {s.mw}, {s.mw}, 3\ns_lshl_b32 {s.mw}, {s.mw}, 12\nv_add_u32 v{t+k}, {s.mw}, v{R.Red}')
    for k in range(1, 4):
        for q in range(4): P(f'ds_read_b128 {vr(R.F + 16*k + 4*q, 4)}, v{t+k} offset:{q*1024}')
    bg = Pool()
    for k in range(1, 4):
        bg.put([f'v_add_f32 v{R.G+r}, v{R.G+r}, v{R.F+16*k+r}' for r in range(16)])
    E = R.F
    for r0 in range(0, 16, 4):
        rs = range(r0, r0 + 4)
        bg.put([f'v_mul_f32 v{E+r}, v{R.Rs+1}, v{R.G+r}' for r in rs])
        bg.put([f'v_exp_f32 v{E+r}, v{E+r}' for r in rs])
        bg.put([f'v_mul_f32 v{R.G+r}, v{R.Rs}, v{R.G+r}' for r in rs])
        bg.put([f'v_add_f32 v{E+r}, 1.0, v{E+r}' for r in rs])
        bg.put([f'v_rcp_f32 v{E+r}, v{E+r}' for r in rs])
    bg.put([f'v_mul_f32 v{R.G+r}, v{R.G+r}, v{E+r}' for r in range(16)])
    XF = R.F + 16
    for g in range(8):
        bg.put([f'v_lshlrev_b32 v{XF+2*g}, 16, v{R.X+g}', f'v_and_b32 v{XF+2*g+1}, 0xffff0000, v{R.X+g}'])
    wo = lambda par, k: [[f'ds_read_b64_tr_b16 {vr(R.WF + 8*par + 4*ct + 2*j, 2)}, v{R.RA+2+ct} offset:{k*2048 + 512*j}' for j in range(2)] for ct in range(2)]
    P.add(wo(0, 0))
    stamp(P, 3)
    for k in range(16):
        rd = wo((k + 1) & 1, k + 1) if k < 15 else []
        mfs, fixed = [], {}
        for ct in range(2):
            if rd: fixed[len(mfs)] = rd.pop(0)
            mfs.append(mf(R.Sx + 16*ct, vr(R.WF + 8*(k & 1) + 4*ct, 4), ar(R.aO + 4*k, 4), k == 0))
        weave(P, mfs, fixed, (bg,), slack=0)
    P.add(bg.rest())
    stamp(P, 4)
    P(f'''s_lshl_b32 {s.spin}, {s.w}, 12
    s_add_u32 {s.spin}, {s.spin}, {R.LDS_EX}
    v_add_u32 v{R.Red}, {s.spin}, v{R.L16}
    s_xor_b32 {s.spin}, {s.spin}, 8192
    v_add_u32 v{t}, {s.spin}, v{R.L16}
    s_cmp_eq_u32 {s.ch}, 0
    s_cbranch_scc0 L_ex1''')
    for q in range(4): P(f'ds_write_b128 v{R.Red}, {vr(R.Sx + 16 + 4*q, 4)} offset:{q*1024}')
    P.waitlg()
    P('s_branch L_ex2\nL_ex1:')
    for q in range(4): P(f'ds_write_b128 v{R.Red}, {vr(R.Sx + 4*q, 4)} offset:{q*1024}')
    P.add([f'v_mov_b32 v{R.Sx+r}, v{R.Sx+16+r}' for r in range(16)])
    P.waitlg()
    P('L_ex2:\ns_barrier')
    for q in range(4): P(f'ds_read_b128 {vr(R.Sx + 16 + 4*q, 4)}, v{t} offset:{q*1024}')
    for r in range(16): P(f'v_add_f32 v{R.Sx+r}, v{R.Sx+r}, v{R.Sx+16+r}')
    for r in range(16): P(f'v_fmac_f32 v{XF+r}, v{R.Sx+r}, v{R.G+r}')
    for k in range(8): P(f'v_cvt_pk_bf16_f32 v{R.X+k}, v{XF+2*k}, v{XF+2*k+1}')
    for g in range(2):
        for k in range(2): P(f'v_permlane32_swap_b32 v{R.X+4*g+k}, v{R.X+4*g+2+k}')
    for g in range(2):
        P(f'buffer_store_dwordx4 {vr(R.X + 4*g, 4)}, v{R.Oo}, {sOUT}, {R.sXo} offen offset:{32*g}')
    stamp(P, 5)
```

```python
from common import *

vT = 2
vL16 = 1
vXd = 10; vWd = 14
vXr = 22
vA, vB, vC = 26, 28, 30
vAugW, vAugR = 32, 33
vQo = 34
vSel = 36; vCs = 40; vSt = 52; vXa = 60; vAg = 64; vScq = 70; vWf = 72
vAcc2 = 96; vAcc1 = 160
LDS_W = 65536
LDS_AUG = 81920
def acc1(u, t): return vAcc1 + 32 * u + 16 * t
def acc2(u, t): return vAcc2 + 32 * u + 16 * t
def wf(par, u): return vWf + 12 * par + 4 * u
def xf(i, st, t): return 32 * i + 8 * st + 4 * t
W2 = [(vC, 0, 0), (vA, 0, LDS_W), (vC, 16384, 16384), (vA, 24576, LDS_W + 24576),
      (vC, 32768, 32768), (vB, 0, LDS_W + 49152), (vC, 49152, 49152), (vB, 24576, LDS_W + 73728)]

def entry(P, endlabel):
    P(f's_cmp_ge_u32 s2, 256\ns_cbranch_scc1 {endlabel}')

def wave_ids(P):
    P(f'v_lshrrev_b32 v{vT}, 6, v0')
    P(f'v_and_b32 v0, 63, v0')
    P(f'v_readfirstlane_b32 {s.w}, v{vT}')
    P(f'v_lshlrev_b32 v{vL16}, 4, v0')

def nonce(P, vE):
    P(f'v_readfirstlane_b32 {s.n0}, v{vE}')
    P(f's_add_u32 {s.n0}, {s.n0}, 1')
    P(f's_mul_i32 {s.n1}, {s.n0}, 0x9e3779b1')
    P(f's_xor_b32 {s.n1}, {s.n1}, 0x7f4a7c15')

def kc_next(first=False):
    r = []
    if not first:
        r += [f's_add_u32 {s.kc}, {s.kc}, 1', f's_and_b32 {s.kc}, {s.kc}, 7']
    return r

def dma1(i):
    sl = i & 3
    tag = f'c{i}'
    pre = kc_next(i == 0) + [f's_lshl_b32 {s.kx}, {s.kc}, 7', f's_mul_i32 {s.k0}, {s.kc}, {64*3072}', f's_mul_i32 {s.k1}, {s.kc}, {s.str64}']
    seq = mk(pre)
    seq += mk(f's_add_u32 m0, {s.mx}, {sl*16384}')
    for j in range(4):
        seq += mk(f'buffer_load_dwordx4 v{vXd+j}, {sX}, {s.kx} offen offset:{1024*j} lds', tag)
    for u, (srd, so) in enumerate(((sQ, s.k0), (sU1, s.k1), (sU2, s.k1))):
        seq += mk(f's_add_u32 m0, {s.mw}, {LDS_W + sl*24576 + u*8192}')
        for j in range(2):
            seq += mk(f'buffer_load_dwordx4 v{vWd+2*u+j}, {srd}, {so} offen offset:{1024*j} lds', tag)
    return seq

def dma2(i):
    tag = f'd{i}'
    seq = mk(kc_next() + [f's_mul_i32 {s.k2}, {s.kc}, {64*3584}'])
    for u, srd in enumerate((sG, sU)):
        seq += mk(f's_add_u32 m0, {s.mw}, {W2[i][2] + u*8192}')
        for j in range(2):
            seq += mk(f'buffer_load_dwordx4 v{vWd+6+j}, {srd}, {s.k2} offen offset:{1024*j} lds', tag)
    return seq

def rd1(i, st):
    sl = i & 3
    x = [f'ds_read_b128 {ar(xf(i, st, t), 4)}, v{vXr+st} offset:{sl*16384 + t*4096}' for t in range(2)]
    base = (vA if sl < 2 else vB) + (st >> 1)
    w = [[f'ds_read_b64_tr_b16 {vr(wf(st & 1, u) + 2*j, 2)}, v{base} offset:{(sl & 1)*24576 + u*8192 + (st & 1)*2048 + j*512}'
          for j in range(2)] for u in range(3)]
    return x, w

def rd2(i, st):
    reg, imm, _ = W2[i]
    return [[f'ds_read_b64_tr_b16 {vr(wf(st & 1, u) + 2*j, 2)}, v{reg + (st >> 1)} offset:{imm + u*8192 + (st & 1)*2048 + j*512}'
             for j in range(2)] for u in range(2)]

def mf32(d, a, b, first):
    return f'v_mfma_f32_32x32x16_bf16 {vr(d, 16)}, {a}, {b}, {"0" if first else vr(d, 16)}'

def cs_split(u, off):
    c = vCs + 4 * u
    h, f, l = vT, vT + 2, vT + 6
    r = [f'v_cvt_pk_bf16_f32 v{h}, v{c}, v{c+1}', f'v_cvt_pk_bf16_f32 v{h+1}, v{c+2}, v{c+3}',
         f'v_lshlrev_b32 v{f}, 16, v{h}', f'v_and_b32 v{f+1}, 0xffff0000, v{h}',
         f'v_lshlrev_b32 v{f+2}, 16, v{h+1}', f'v_and_b32 v{f+3}, 0xffff0000, v{h+1}']
    r += [f'v_sub_f32 v{f+k}, v{c+k}, v{f+k}' for k in range(4)]
    r += [f'v_cvt_pk_bf16_f32 v{l}, v{f}, v{f+1}', f'v_cvt_pk_bf16_f32 v{l+1}, v{f+2}, v{f+3}',
          f'ds_write_b64 v{vAugW}, {vr(h, 2)} offset:{off + u*512}', f'ds_write_b64 v{vAugW}, {vr(l, 2)} offset:{off + u*512 + 64}']
    return r

def pack_store(d, voff, so_a, so_b, imm_a, imm_b, tag):
    r = []
    for half, (so, imm) in enumerate(((so_a, imm_a), (so_b, imm_b))):
        b = d + 8 * half
        r += mk([f'v_cvt_pk_bf16_f32 v{b+k}, v{b+2*k}, v{b+2*k+1}' for k in range(4)])
        r += mk(f'buffer_store_dwordx4 {vr(b, 4)}, v{voff}, {sWS}, {so} offen offset:{imm} sc1', tag)
    return r

def epi_qkv(u, voff, scale):
    r = []
    for t in range(2):
        d = acc1(u, t)
        r += mk([f'v_mul_f32 v{d+k}, v{scale(t)}, v{d+k}' for k in range(16)])
        r += pack_store(d, voff, S[f'qo{2*u}'], S[f'qo{2*u+1}'], 1024 * t, 1024 * t, 'st1')
    return r

def epi_h(g, uu, so, tag):
    r = []
    for t in range(2):
        r += mk([f'v_mul_f32 v{g(t)+k}, v{g(t)+k}, v{uu(t)+k}' for k in range(16)])
        r += pack_store(g(t), vL16, so(t), so(t), 0, 1024, tag)
    return r

def prologue(P, cfg):
    for srd, off in ((sX, 0), (sQ, 8), (sG, 32), (sU, 40), (sWS, 72)):
        srd_load(P, srd, off)
    stamp_begin(P)
    wave_ids(P)
    P(f'''s_and_b32 {s.t0}, s2, 7
    s_lshr_b32 {s.t1}, s2, 3
    s_and_b32 {s.rb}, {s.t0}, 1
    s_lshl_b32 {s.rb}, {s.rb}, 3
    s_and_b32 {s.t2}, {s.t1}, 7
    s_add_u32 {s.rb}, {s.rb}, {s.t2}
    s_lshr_b32 {s.t0}, {s.t0}, 1
    s_lshr_b32 {s.t1}, {s.t1}, 3
    s_lshl2_add_u32 {s.cg}, {s.t0}, {s.t1}
    s_and_b32 {s.th}, {s.w}, 1
    s_lshr_b32 {s.ch}, {s.w}, 1
    s_lshl_b32 {s.mx}, {s.w}, 12
    s_lshl_b32 {s.mw}, {s.w}, 11''')
    srd_const(P, sX, 2048*512*2); srd_const(P, sWS, WS_SIZE); srd_const(P, sQ, 512*1536*2)
    srd_const(P, sG, 512*1792*2); srd_const(P, sU, 512*1792*2)
    P('s_mov_b32 s15, 0x20000\ns_mov_b32 s19, 0x20000')
    P(f'''s_lshl_b32 {s.t2}, {s.rb}, 4
    s_add_u32 {s.t2}, {s.t2}, {s.cg}
    s_lshl2_add_u32 {s.t2}, {s.t2}, {s.w}
    s_lshl_b32 {s.t3}, {s.t2}, 11
    s_lshl_b32 {s.t2}, {s.t2}, 5
    s_add_u32 {s.qo5}, {s.t2}, {WS_STATS}''')
    P(f'''s_mul_i32 {s.t4}, {s.t0}, 3
    s_add_u32 {s.t5}, {s.t4}, {s.t1}
    s_add_u32 {s.t4}, {s.t4}, 12
    s_cmp_eq_u32 {s.t1}, 3
    s_cselect_b32 {s.isb}, 1, 0
    s_cselect_b32 {s.qo0}, {s.t4}, {s.t5}
    s_mov_b32 {s.str64}, {64*3072}
    s_cselect_b32 {s.str64}, {s.str64}, {64*3584}
    s_lshl_b32 s14, {s.str64}, 3
    s_mov_b32 s18, s14
    s_lshl_b32 {s.qo1}, {s.qo0}, 7
    s_add_u32 {s.qo2}, {s.qo1}, 128
    s_add_u32 {s.qo3}, {s.qo1}, 256
    s_cmp_eq_u32 {s.isb}, 1
    s_cselect_b32 {s.qo2}, {s.qo2}, {s.qo1}
    s_cselect_b32 {s.qo3}, {s.qo3}, {s.qo1}''')
    P(f's_mov_b32 {s.ho0}, {s.t5}')
    if cfg.get('rot') == 1:
        P(f's_lshr_b32 {s.kc}, {s.rb}, 1')
    elif cfg.get('rot') == 2:
        P(f's_lshl1_add_u32 {s.kc}, {s.cg}, {s.rb}\ns_and_b32 {s.kc}, {s.kc}, 7')
    elif cfg.get('rot') == 3:
        P(f's_and_b32 {s.kc}, {s.rb}, 7')
    elif cfg.get('rot') == 4:
        P(f's_and_b32 {s.kc}, {s.rb}, 3')
    else:
        P(f's_mov_b32 {s.kc}, 0')
    t = vT
    P(f'''v_lshrrev_b32 v{t}, 3, v0
    v_and_b32 v{t+1}, 7, v0
    v_lshrrev_b32 v{t+2}, 4, v0
    v_xor_b32 v{t+3}, v{t+1}, v{t+2}
    v_lshlrev_b32 v{t+3}, 4, v{t+3}
    v_lshl_add_u32 v{t+3}, v{t}, 10, v{t+3}
    s_lshl_b32 {s.t0}, {s.rb}, 17
    s_lshl_b32 {s.t1}, {s.w}, 15
    s_add_u32 {s.t0}, {s.t0}, {s.t1}
    v_add_u32 v{vXd}, {s.t0}, v{t+3}
    v_xor_b32 v{vXd+1}, 64, v{vXd}
    v_add_u32 v{vXd+2}, {2*7168}, v{vXd}
    v_add_u32 v{vXd+3}, {3*7168}, v{vXd+1}
    v_add_u32 v{vXd+1}, 7168, v{vXd+1}
    v_and_b32 v{t+2}, 1, v{t+2}
    v_lshlrev_b32 v{t+2}, 2, v{t+2}
    v_xor_b32 v{t+1}, v{t+1}, v{t+2}
    v_lshlrev_b32 v{t+1}, 4, v{t+1}
    s_lshl_b32 {s.t0}, {s.w}, 4
    v_add_u32 v{t}, {s.t0}, v{t}
    s_lshr_b32 {s.t1}, {s.str64}, 6
    v_mul_u32_u24 v{t+2}, 3072, v{t}
    v_mul_u32_u24 v{t+3}, {s.t1}, v{t}
    v_add3_u32 v{vWd}, v{t+2}, v{t+1}, {s.qo1}
    v_add3_u32 v{vWd+2}, v{t+3}, v{t+1}, {s.qo2}
    v_add3_u32 v{vWd+4}, v{t+3}, v{t+1}, {s.qo3}
    s_lshr_b32 {s.t1}, {s.str64}, 3
    s_sub_u32 {s.t1}, {s.t1}, 1024
    v_add_u32 v{vWd+1}, {8*3072-1024}, v{vWd}
    v_add_u32 v{vWd+3}, {s.t1}, v{vWd+2}
    v_add_u32 v{vWd+5}, {s.t1}, v{vWd+4}
    v_mov_b32 v{t+4}, 0''')
    P.waitlg()
    stamp_keep(P)
    if cfg.get('pro'): stamp(P, 1)
    P(f'''s_cmp_eq_u32 {s.isb}, 1
    s_cselect_b32 s12, s8, s20
    s_cselect_b32 s13, s9, s21
    s_cselect_b32 s16, s8, s24
    s_cselect_b32 s17, s9, s25''')
    R = vAcc2
    P(f'buffer_load_dword v{R+40}, v{t+4}, {sWS}, 0 offen sc1', 'ep')
    P(f'buffer_load_dwordx4 {vr(R, 4)}, v{vL16}, {sX}, {s.t3} offen', 'row')
    P(f'buffer_load_dwordx4 {vr(R+4, 4)}, v{vL16}, {sX}, {s.t3} offen offset:1024', 'row')
    P.add(dma1(0))
    P(f'''s_add_u32 {s.t0}, {s.cg}, 12
    s_lshl_b32 {s.t0}, {s.t0}, 7
    v_mul_u32_u24 v{t+3}, 3584, v{t}
    v_add3_u32 v{vWd+6}, v{t+3}, v{t+1}, {s.t0}
    v_add_u32 v{vWd+7}, {8*3584-1024}, v{vWd+6}''')
    P.add(dma1(1))
    P(f'''v_and_b32 v{t}, 31, v0
    s_lshl_b32 {s.t0}, {s.th}, 6
    v_add_u32 v{t}, {s.t0}, v{t}
    v_lshrrev_b32 v{t+1}, 5, v0
    v_bfe_u32 v{t+2}, v0, 1, 3
    v_xor_b32 v{t+2}, v{t+2}, v{t+1}
    s_lshl_b32 {s.t0}, {s.th}, 2
    v_xor_b32 v{t+2}, {s.t0}, v{t+2}
    v_lshlrev_b32 v{t+2}, 4, v{t+2}
    v_lshl_add_u32 v{vXr}, v{t}, 7, v{t+2}
    v_xor_b32 v{vXr+1}, 32, v{vXr}
    v_xor_b32 v{vXr+2}, 64, v{vXr}
    v_xor_b32 v{vXr+3}, 0x60, v{vXr}''')
    P(f'''v_bfe_u32 v{t}, v0, 2, 2
    v_lshl_add_u32 v{t}, v{t+1}, 3, v{t}
    v_bfe_u32 v{t+2}, v0, 4, 1
    v_bfe_u32 v{t+3}, v0, 1, 1
    v_lshl_add_u32 v{t+3}, v{t+2}, 1, v{t+3}
    v_bfe_u32 v{t+4}, v0, 3, 1
    v_xor_b32 v{t+4}, {s.ch}, v{t+4}
    v_lshl_add_u32 v{t+3}, v{t+4}, 2, v{t+3}
    v_and_b32 v{t+4}, 1, v0
    v_lshlrev_b32 v{t+4}, 3, v{t+4}
    v_lshl_add_u32 v{t+3}, v{t+3}, 4, v{t+4}
    v_lshl_add_u32 v{t+3}, v{t}, 7, v{t+3}
    s_lshl_b32 {s.t0}, {s.th}, 12
    s_sub_u32 {s.t1}, 4096, {s.t0}
    v_add_u32 v{vC}, {s.t0}, v{t+3}
    v_add_u32 v{vC+1}, {s.t1}, v{t+3}
    v_add_u32 v{vA}, {LDS_W}, v{vC}
    v_add_u32 v{vA+1}, {LDS_W}, v{vC+1}
    v_add_u32 v{vB}, {LDS_W+49152}, v{vC}
    v_add_u32 v{vB+1}, {LDS_W+49152}, v{vC+1}''')
    P(f'''s_lshl_b32 {s.t0}, {s.ch}, 8
    s_add_u32 {s.t0}, {s.t0}, {LDS_AUG}
    s_lshl_b32 {s.t1}, {s.th}, 7
    s_add_u32 {s.t1}, {s.t1}, {s.t0}
    v_lshrrev_b32 v{t}, 4, v0
    v_lshlrev_b32 v{t}, 3, v{t}
    v_lshl_add_u32 v{t}, v{t+4}, 2, v{t}
    v_add_u32 v{t}, {s.t1}, v{t}
    v_lshlrev_b32 v{t+5}, 3, v0
    v_add_u32 v{t+5}, {LDS_AUG+4096}, v{t+5}
    v_and_b32 v{t+6}, 14, v0
    v_cmp_eq_u32 vcc, 0, v{t+6}
    v_bfe_u32 v{t+6}, v0, 2, 2
    v_and_b32 v{t+7}, 3, v0
    v_cndmask_b32 v{vAugW}, v{t+5}, v{t}, vcc
    v_lshlrev_b32 v{t+7}, 3, v{t+7}
    v_lshl_add_u32 v{t+7}, v{t+2}, 5, v{t+7}
    v_lshl_add_u32 v{t+7}, v{t+6}, 6, v{t+7}
    v_add_u32 v{vAugR}, {s.t0}, v{t+7}
    s_mov_b32 s82, 0x00020001
    s_mov_b32 s83, 0x00020001
    v_mov_b32 v{t}, 0x3f803f80
    v_cndmask_b32 v{vSel}, 0, v{t}, s[82:83]
    v_cndmask_b32 v{vSel+1}, 0, v{t}, s[82:83]
    v_cndmask_b32 v{vSel+2}, 0, v{t}, s[82:83]
    v_cndmask_b32 v{vSel+3}, 0, v{t}, s[82:83]''')
    P(f'''v_and_b32 v{t}, 31, v0
    v_lshlrev_b32 v{t}, 5, v{t}
    v_lshl_add_u32 v{vQo}, v{t+1}, 4, v{t}''')
    if cfg.get('pro'): stamp(P, 2)
    nonce(P, R + 40)
    if cfg.get('pro'): stamp(P, 3); P.waitvm('row'); stamp(P, 4)
    E = R + 8
    for r in range(2):
        for k in range(4):
            P(f'v_lshlrev_b32 v{E+8*r+2*k}, 16, v{R+4*r+k}')
            P(f'v_and_b32 v{E+8*r+2*k+1}, 0xffff0000, v{R+4*r+k}')
    A = R + 24
    def reduce2():
        for m in ('quad_perm:[1,0,3,2] row_mask:0xf', 'quad_perm:[2,3,0,1] row_mask:0xf', 'row_half_mirror row_mask:0xf',
                  'row_mirror row_mask:0xf', 'row_bcast:15 row_mask:0xa', 'row_bcast:31 row_mask:0xc'):
            for r in range(2):
                P(f'v_add_f32_dpp v{A+r}, v{A+r}, v{A+r} {m} bank_mask:0xf')
    for r in range(2):
        P(f'v_add_f32 v{A+r}, v{E+8*r}, v{E+8*r+1}')
    for k in range(2, 8):
        for r in range(2):
            P(f'v_add_f32 v{A+r}, v{A+r}, v{E+8*r+k}')
    reduce2()
    for r in range(2):
        P(f'v_mul_f32 v{A+2+r}, {f32(1/512)}, v{A+r}')
    P(f'v_readlane_b32 {s.t0}, v{A+2}, 63\nv_readlane_b32 {s.t1}, v{A+3}, 63')
    G = R + 32
    for r in range(2):
        P(f'v_cvt_pk_bf16_f32 v{G+4*r}, -v{A+2+r}, -v{A+2+r}')
    for k in range(8):
        for r in range(2):
            P(f'v_subrev_f32 v{E+8*r+k}, {(s.t0, s.t1)[r]}, v{E+8*r+k}')
    for k in range(8):
        for r in range(2):
            P(f'v_mul_f32 v{A+r}, v{E+8*r}, v{E+8*r}' if k == 0 else f'v_fmac_f32 v{A+r}, v{E+8*r+k}, v{E+8*r+k}')
    reduce2()
    for r in range(2):
        P(f'v_mul_f32 v{A+r}, {f32(1/512)}, v{A+r}')
    for r in range(2):
        P(f'v_add_f32 v{A+r}, {f32(1e-5)}, v{A+r}')
    for r in range(2):
        P(f'v_rsq_f32 v{G+4*r+1}, v{A+r}')
    for r in range(2):
        P(f'v_mov_b32 v{G+4*r+2}, {s.n0}\nv_mov_b32 v{G+4*r+3}, {s.n1}')
    P(f'v_mov_b32 v{t}, 0')
    P('s_lshl_b64 exec, 1, 63')
    for r in range(2):
        P(f'buffer_store_dwordx4 {vr(G+4*r, 4)}, v{t}, {sWS}, {s.qo5} offen offset:{16*r} sc1', 'stat')
    P('s_mov_b64 exec, -1')
    if cfg.get('pro'): stamp(P, 5)
    P.add(dma1(2))
    P(f'''s_lshl_b32 {s.t0}, {s.rb}, 1
    s_add_u32 {s.t0}, {s.t0}, {s.th}
    s_lshl_b32 {s.t1}, {s.t0}, 11
    s_lshl_b32 {s.t2}, {s.qo0}, 1
    s_add_u32 {s.t2}, {s.t2}, {s.ch}
    s_lshl_b32 {s.t2}, {s.t2}, 17
    s_add_u32 {s.t1}, {s.t1}, {s.t2}
    s_cmp_lt_u32 {s.qo0}, 8
    s_cselect_b32 {s.fac}, {f32(0.25*LOG2E)}, 1.0
    s_mov_b32 {s.t5}, {s.qo0}
    s_add_u32 {s.qo0}, {s.t1}, {WS_QKV}
    s_add_u32 {s.qo1}, {s.qo0}, 0x10000
    s_add_u32 {s.qo2}, {s.qo0}, 0x40000
    s_add_u32 {s.qo3}, {s.qo0}, 0x50000
    s_add_u32 {s.qo4}, {s.qo0}, 0x80000
    s_add_u32 {s.qo5}, {s.qo0}, 0x90000
    s_mul_i32 {s.t1}, {s.t0}, {2*112*1024}
    s_lshl_b32 {s.t2}, {s.ch}, 11
    s_add_u32 {s.t1}, {s.t1}, {s.t2}
    s_add_u32 {s.t1}, {s.t1}, {WS_H}
    s_lshl_b32 {s.ho0}, {s.ho0}, 12
    s_add_u32 {s.ho0}, {s.ho0}, {s.t1}
    s_add_u32 {s.ho1}, {s.ho0}, {112*1024}
    s_add_u32 {s.t2}, {s.cg}, 12
    s_lshl_b32 {s.t2}, {s.t2}, 12
    s_add_u32 {s.ho2}, {s.t2}, {s.t1}
    s_add_u32 {s.ho3}, {s.ho2}, {112*1024}
    s_lshl_b32 {s.t0}, {s.t0}, 10
    s_add_u32 {s.t4}, {s.t0}, {WS_STATS}''')

def stats_load(tag='g'):
    t = vT + 7
    return mk([f'v_and_b32 v{t}, 0x1f0, v{vL16}']) + \
        mk([f'buffer_load_dwordx4 {vr(vSt+4*k, 4)}, v{t}, {sWS}, {s.t4} offen offset:{512*k} sc1' for k in range(2)], tag)

def stats_check(P, cold):
    P('L_stat_check:')
    P(f'''v_cmp_eq_u32 s[82:83], {s.n0}, v{vSt+2}
    v_cmp_eq_u32 s[84:85], {s.n1}, v{vSt+3}
    v_cmp_eq_u32 s[86:87], {s.n0}, v{vSt+6}
    v_cmp_eq_u32 vcc, {s.n1}, v{vSt+7}
    s_and_b64 s[82:83], s[82:83], s[84:85]
    s_and_b64 s[86:87], s[86:87], vcc
    s_and_b64 s[82:83], s[82:83], s[86:87]
    s_cmp_eq_u64 s[82:83], -1
    s_cbranch_scc0 L_stat_retry
    L_stat_ok:''')
    cold.add([forget()])
    cold(f'''L_stat_retry:
    s_sub_u32 {s.spin}, {s.spin}, 1
    s_cmp_eq_u32 {s.spin}, 0
    s_cbranch_scc1 L_stat_ok''')
    cold.add(stats_load())
    cold('s_waitcnt vmcnt(0)\ns_branch L_stat_check')

def phase1(P, cold, cfg):
    P(f's_mov_b32 {s.spin}, 0x40000')
    if not cfg.get('pro'): stamp(P, 1)
    else: stamp(P, 6); stamp_end(P); P('s_endpgm')
    P.waitvm('c0')
    P('s_barrier')
    if not cfg.get('pro'): stamp(P, 2)
    x, w = rd1(0, 0)
    P.add(mk(x) + mk(w))
    dq = Pool(cfg.get('maxvm', 1)); dq.put(dma1(3))
    bg = Pool()
    for i in range(8):
        for st in range(4):
            if st == 3:
                P.add(dq.rest()); P.add(bg.rest())
                P.waitvm(f'c{i+1}' if i < 7 else ('d0', 'd1', 'd2', 'd3'))
                P.waitlg()
                if not cfg.get('nobar'): P('s_barrier')
                if cfg.get('nodma'): pass
                elif i < 4: dq.put(dma1(i + 4))
                else: dq.put(dma2(2*(i-4))); dq.put(dma2(2*(i-4) + 1))
            if i == 4 and st == 0 and cfg.get('mid'): stamp(P, 3)
            first = (i == 0 and st == 0)
            mfs = []; fixed = {}
            nxt = (i, st + 1) if st < 3 else (i + 1, 0)
            if nxt[0] < 8:
                x, w = rd1(*nxt); rd = [x, w[0], w[1], w[2]]
                if cfg.get('nord'): rd = []
                if cfg.get('nox'): rd = rd[1:]
                if cfg.get('now'): rd = rd[:1]
            else:
                w = rd2(0, 0)
                ag = [f'ds_read_b64_tr_b16 {vr(vAg+2*u, 2)}, v{vAugR} offset:{u*512}' for u in range(3)]
                rd = [ag[:2], ag[2:], w[0], w[1]]
            for u in range(3):
                for t in range(2):
                    if rd: fixed[len(mfs)] = rd.pop(0)
                    mfs.append(mf32(acc1(u, t), vr(wf(st & 1, u), 4), ar(xf(i, st, t), 4), first))
                if st < 2 and not cfg.get('nocs'):
                    c = vr(vCs + 4*u, 4)
                    mfs.append(f'v_mfma_f32_16x16x32_bf16 {c}, {vr(wf(st & 1, u), 4)}, {vr(vSel, 4)}, {"0" if first else c}')
            if i == 5 and st == 0: bg.put(stats_load())
            if i == 7 and st == 0:
                stats_check(P, cold)
                hm = vT + 7
                bg.put([f'v_cmp_gt_u32 vcc, 32, v0'] +
                       [f'v_mul_f32 v{vScq+t}, {s.fac}, v{vSt+4*t+1}' for t in range(2)] +
                       [f'v_cndmask_b32 v{vXa+2*t+k}, 0, v{vSt+4*t}, vcc' for t in range(2) for k in range(2)])
            timed = {}
            if i == 7 and st == 1: timed = {5: [(bg, cs_split(0, 0))], 8: [(bg, cs_split(1, 0))]}
            if i == 7 and st == 2: timed = {2: [(bg, cs_split(2, 0))]}
            weave(P, mfs, fixed, (dq, bg), slack=4, timed=timed)
    mfs = [f'v_mfma_f32_32x32x8_bf16 {vr(acc1(u, t), 16)}, {vr(vAg+2*u, 2)}, {vr(vXa+2*t, 2)}, {vr(acc1(u, t), 16)}'
           for u in range(3) for t in range(2)]
    weave(P, mfs, {}, (dq, bg), slack=4)
    P.add(dq.rest()); P.add(bg.rest())

def phase2(P, isb, cfg):
    bg = Pool()
    if not isb:
        bg.put(epi_qkv(0, vL16, lambda t: vScq + t))
        bg.put(epi_h(lambda t: acc1(1, t), lambda t: acc1(2, t), lambda t: S[f'ho{t}'], 'st1'))
    else:
        for u in range(3):
            bg.put(f's_cmp_ge_u32 {s.t5}, {16-u}')
            bg.put(f's_cselect_b64 vcc, -1, 0')
            bg.put(f'v_cndmask_b32 v{vXd+u}, v{vL16}, v{vQo}, vcc')
        for u in range(3):
            bg.put(epi_qkv(u, vXd + u, lambda t: vSt + 4*t + 1))
    lo = Pool()
    for i in range(8):
        for st in range(4):
            if st == 3 and i in (3, 7):
                P.add(lo.rest())
                if i == 3: P.waitvm(('d4', 'd5', 'd6', 'd7'))
                P.waitlg()
                P('s_barrier')
            first = (i == 0 and st == 0)
            mfs = []; fixed = {}
            nxt = (i, st + 1) if st < 3 else (i + 1, 0)
            if nxt[0] < 8:
                rd = rd2(*nxt)
            else:
                rd = [[f'ds_read_b64_tr_b16 {vr(vAg+2*u, 2)}, v{vAugR} offset:{2048 + u*512}' for u in range(2)]]
            for u in range(2):
                for t in range(2):
                    if rd: fixed[len(mfs)] = rd.pop(0)
                    mfs.append(mf32(acc2(u, t), vr(wf(st & 1, u), 4), ar(xf(i, st, t), 4), first))
                if st < 2 and not cfg.get('nocs'):
                    c = vr(vCs + 4*u, 4)
                    mfs.append(f'v_mfma_f32_16x16x32_bf16 {c}, {vr(wf(st & 1, u), 4)}, {vr(vSel, 4)}, {"0" if first else c}')
            timed = {}
            if i == 7 and st == 1: timed = {5: [(lo, cs_split(0, 2048))]}
            if i == 7 and st == 2: timed = {2: [(lo, cs_split(1, 2048))]}
            weave(P, mfs, fixed, (lo, bg), slack=4, timed=timed)
    assert not bg.q
    mfs = [f'v_mfma_f32_32x32x8_bf16 {vr(acc2(u, t), 16)}, {vr(vAg+2*u, 2)}, {vr(vXa+2*t, 2)}, {vr(acc2(u, t), 16)}'
           for t in range(2) for u in range(2)]
    weave(P, mfs, {})

def epilogue2(P):
    P.add(epi_h(lambda t: acc2(0, t), lambda t: acc2(1, t), lambda t: S[f'ho{2+t}'], 'st2'))

def g1_body(P, cold, cfg):
    prologue(P, cfg)
    phase1(P, cold, cfg)
    box0, boxa = {}, {}
    if not cfg.get('pro'): stamp(P, 4 if cfg.get('mid') else 3)
    P(f's_cmp_eq_u32 {s.isb}, 1')
    P.add([save(box0)])
    P('s_cbranch_scc1 L_p2b')
    phase2(P, False, cfg)
    P.add([save(boxa)])
    P('s_branch L_p2done')
    P.add([restore(box0)])
    P('L_p2b:')
    phase2(P, True, cfg)
    P.add([join(boxa)])
    P('L_p2done:')
    if not cfg.get('pro'): stamp(P, 5 if cfg.get('mid') else 4)
    epilogue2(P)
    if cfg.get('mid'): stamp(P, 6)
```

```python
import sys, os
sys.path.insert(0, os.path.dirname(os.path.abspath(__file__)))
from common import *
import g1, attn, dstage
NAME = 'recurrent_scan__sliding_block__glu_gated_bilinear__prompt'

def one(fn, cfg, end, st):
    STAMPS[0] = st
    P, cold = Prog(), Prog()
    g1.entry(P, end)
    fn(P, cold, cfg)
    stamp_end(P)
    P(f'{end}:\ns_endpgm')
    P.add(cold.L)
    L = finish(P.L)
    print(end, 'instructions', sum(1 for x in L if x.states()), 'estimate', estimate(L), 'nops', sum(1 for x in L if x.cls == 'nop'))
    return L

if __name__ == '__main__':
    cfg = {a.split('=')[0]: (int(a.split('=')[1]) if '=' in a else 1) for a in sys.argv[2:]}
    st = cfg.get('stamps', 0)
    ks = [(NAME + '_kernel', one(g1.g1_body, cfg, 'L_end1', st == 1), 163840),
          ('attn_kernel', one(attn.standalone, cfg, 'L_end2', st == 2), 17408),
          ('down_kernel', one(dstage.standalone, cfg, 'L_end3', st == 3), 147456)]
    src = ''.join(f'; @launch kernel={n} grid=(256,1,1) block=(256,1,1) lds={l}\n' for n, _, l in ks)
    src += '.amdgcn_target "amdgcn-amd-amdhsa--gfx950"\n'
    src += ''.join(kernel_text(n, L) for n, L, _ in ks)
    open(sys.argv[1], 'w').write(src)
```

```python
import re

TRANS = ('v_exp_f32', 'v_log_f32', 'v_rcp_f32', 'v_rsq_f32', 'v_sqrt_f32', 'v_sin_f32', 'v_cos_f32', 'v_rcp_iflag_f32')

def regs_of(tok):
    tok = tok.strip()
    tok = tok.lstrip('-')
    if tok.startswith('abs(') and tok.endswith(')'):
        tok = tok[4:-1]
    if tok.startswith('|') and tok.endswith('|'):
        tok = tok[1:-1]
    m = re.fullmatch(r'([vas])(\d+)', tok)
    if m:
        return [tok]
    m = re.fullmatch(r'([vas])\[(\d+):(\d+)\]', tok)
    if m:
        return [f'{m.group(1)}{i}' for i in range(int(m.group(2)), int(m.group(3)) + 1)]
    if tok in ('vcc', 'vcc_lo', 'vcc_hi'):
        return ['vcc']
    if tok in ('exec', 'exec_lo', 'exec_hi'):
        return ['exec']
    if tok == 'm0':
        return ['m0']
    return []

def split_ops(s):
    out, depth, cur = [], 0, ''
    for c in s:
        if c == '[' or c == '(':
            depth += 1
        if c == ']' or c == ')':
            depth -= 1
        if c == ',' and depth == 0:
            out.append(cur.strip()); cur = ''
        else:
            cur += c
    if cur.strip():
        out.append(cur.strip())
    return out

class I:
    __slots__ = ('text', 'op', 'cls', 'dst', 'src', 'srcC', 'srcAB', 'passes', 'tag', 'meta', 'lds', 'store', 'wide', 'dpp', 'sel')
    def __init__(self, text, tag=None, **meta):
        self.text = text.strip()
        self.tag = tag
        self.meta = meta
        self.dst, self.src, self.srcC, self.srcAB = [], [], [], []
        self.passes = 0
        self.lds = False
        self.store = False
        self.wide = False
        self.dpp = False
        self.sel = []
        t = self.text.split(';')[0].strip()
        if t.endswith(':'):
            self.op = t; self.cls = 'label'; return
        if t.startswith('.') or not t:
            self.op = t; self.cls = 'dir'; return
        if t.startswith('@'):
            self.op = t; self.cls = 'pseudo'; return
        parts = t.split(None, 1)
        self.op = op = parts[0]
        rest = parts[1] if len(parts) > 1 else ''
        ops = split_ops(rest)
        mods = ''
        if ops:
            last = ops[-1].split(None, 1)
            if len(last) > 1 and not ops[-1].startswith('abs('):
                ops[-1] = last[0]; mods = last[1]
        R = [regs_of(o) for o in ops]
        flat = lambda l: [r for x in l for r in x]
        if op.startswith('v_mfma'):
            self.cls = 'mfma'
            self.dst = R[0]; self.srcAB = R[1] + R[2]; self.srcC = R[3]; self.src = self.srcAB + self.srcC
            self.passes = 8 if '32x32' in op else (4 if '16x16' in op else 2)
        elif op.startswith('v_'):
            self.cls = 'trans' if op.replace('_e32', '').replace('_e64', '') in TRANS else 'valu'
            if 'row_' in mods or 'quad_perm' in mods or 'wave_' in mods or op.endswith('_dpp'):
                self.dpp = True
            if op.startswith('v_cmp'):
                self.dst = R[0]; self.src = flat(R[1:])
            elif op.startswith(('v_add_co', 'v_sub_co', 'v_addc_co', 'v_subb_co', 'v_mad_u64', 'v_div_scale')):
                self.dst = R[0] + R[1]; self.src = flat(R[2:])
            elif op.startswith('v_permlane') and 'swap' in op:
                self.dst = R[0] + R[1]; self.src = R[0] + R[1]
            elif op.startswith(('v_fmac', 'v_dot2c', 'v_writelane', 'v_pk_fmac')):
                self.dst = R[0]; self.src = flat(R)
            elif op == 'v_nop':
                pass
            else:
                self.dst = R[0]; self.src = flat(R[1:])
            if self.dpp:
                self.src = self.src + self.dst
            if op.startswith(('v_readlane', 'v_writelane')):
                self.sel = R[2]
            if op.startswith('v_cndmask') and len(ops) == 3:
                self.src = self.src + ['vcc']
        elif op.startswith('ds_'):
            self.cls = 'ds'
            if op.startswith(('ds_read', 'ds_bpermute', 'ds_permute', 'ds_swizzle')):
                self.dst = R[0]; self.src = flat(R[1:])
            else:
                self.src = flat(R); self.store = True
        elif op.startswith(('buffer_', 'global_')):
            self.cls = 'vmem'
            allt = (rest + ' ').replace(',', ' ')
            self.lds = ' lds ' in allt or '_lds_' in op
            if op.startswith(('buffer_wbl2', 'buffer_inv')):
                pass
            elif 'load' in op:
                if self.lds:
                    self.src = flat(R) + ['m0']
                else:
                    self.dst = R[0]; self.src = flat(R[1:])
            elif 'atomic' in op:
                self.src = flat(R); self.store = True
                if ' sc0 ' in allt:
                    self.dst = R[0][:1] if not op.endswith('x2') else R[0][:2]
            else:
                self.src = flat(R); self.store = True
                self.wide = op.endswith(('x3', 'x4'))
                self.meta['data'] = R[0] if op.startswith('buffer_') else R[1]
        elif op.startswith(('s_load', 's_buffer_load', 's_memtime', 's_memrealtime')):
            self.cls = 'smem'
            self.dst = R[0]; self.src = flat(R[1:])
        elif op == 's_waitcnt':
            self.cls = 'wait'
        elif op == 's_nop':
            self.cls = 'nop'
        elif op == 's_barrier':
            self.cls = 'barrier'
        elif op.startswith(('s_branch', 's_cbranch', 's_endpgm', 's_setpc', 's_swappc')):
            self.cls = 'branch'
        elif op.startswith('s_'):
            self.cls = 'salu'
            if op.startswith(('s_cmp', 's_bitcmp', 's_setprio', 's_sleep')):
                self.src = flat(R)
            elif 'saveexec' in op:
                self.dst = R[0] + ['exec']; self.src = flat(R[1:]) + ['exec']
            elif op.startswith(('s_addk', 's_mulk')):
                self.dst = R[0]; self.src = R[0]
            else:
                self.dst = R[0]; self.src = flat(R[1:])
        else:
            raise ValueError('unknown instruction: ' + text)

    def states(self):
        if self.cls == 'nop':
            return int(self.text.split()[1], 0) + 1
        if self.cls in ('label', 'dir', 'pseudo'):
            return 0
        return 1

def need(p, c):
    n = 0
    isv = lambda x: x.cls in ('valu', 'trans')
    pv = set(r for r in p.dst if r[0] in 'va' and r != 'vcc')
    ps = set(r for r in p.dst if r[0] == 's' or r == 'vcc')
    csrc, cdst = set(c.src), set(c.dst)
    if isv(p):
        if c.cls == 'mfma' and pv & csrc: n = max(n, 2)
        if isv(c):
            if c.dpp and pv & csrc: n = max(n, 2)
            if c.op.startswith('v_permlane') and pv & csrc: n = max(n, 2)
            if c.op.startswith(('v_readlane', 'v_readfirstlane')) and pv & csrc: n = max(n, 1)
            if ps & csrc: n = max(n, 2)
            if ps & set(c.sel): n = max(n, 4)
            if p.cls == 'trans' and c.cls != 'trans' and pv & csrc: n = max(n, 1)
            if p.op.startswith('v_dot') and (pv & (csrc | cdst)):
                if not (c.op == p.op and not (pv & set(c.src[len(c.dst):]))): n = max(n, 3)
        if c.cls == 'vmem' and ps & csrc: n = max(n, 5)
        if 'exec' in p.dst: n = max(n, 5)
        if p.op.startswith('v_dot') and c.cls in ('mfma', 'ds', 'vmem') and pv & (csrc | cdst): n = max(n, 3)
    if p.cls == 'salu' and 'm0' in p.dst and c.cls == 'vmem' and c.lds: n = max(n, 1)
    if p.cls == 'vmem' and p.wide:
        d = set(p.meta['data'])
        if d & cdst: n = max(n, 2 if isv(c) or c.cls == 'mfma' else 1)
    if p.cls == 'mfma':
        k = {2: 0, 4: 1, 8: 2}[p.passes]
        d = set(p.dst)
        if c.cls == 'mfma':
            if d & set(c.srcAB): n = max(n, (5, 8, 12)[k])
            if d & set(c.srcC):
                if c.srcC == p.dst and c.passes == p.passes: n = max(n, (2, 0, 0)[k])
                else: n = max(n, (4, 6, 10)[k])
            elif d & cdst:
                n = max(n, (4, 6, 10)[k])
        elif c.cls in ('valu', 'trans', 'ds', 'vmem'):
            if d & (csrc | cdst): n = max(n, (5, 8, 12)[k])
            if isv(c) and set(p.srcC) & cdst: n = max(n, (1, 3, 7)[k])
            if c.cls in ('ds', 'vmem') and set(p.srcC) & cdst: n = max(n, (1, 3, 7)[k])
    return n

class Prog:
    def __init__(self):
        self.L = []
        self._n = 0; self._t = 0; self._pipe = 0; self._prev = None
    def now(self):
        for x in self.L[self._n:]:
            if not x.states(): continue
            c = 4 * x.states() if x.cls == 'nop' else COST[x.cls]
            if x.cls in ('ds', 'vmem') and self._prev is not None and self._prev.cls in ('valu', 'trans'): c += 8
            if x.cls == 'mfma':
                self._t = max(self._t, self._pipe)
                self._pipe = self._t + 4 * x.passes
            self._t += c
            self._prev = x
        self._n = len(self.L)
        return self._t
    def __call__(self, text, tag=None, **meta):
        for line in text.split('\n'):
            if line.strip():
                self.L.append(I(line, tag, **meta))
    def add(self, items):
        for x in items:
            if isinstance(x, I): self.L.append(x)
            elif isinstance(x, str): self(x)
            else: self.add(x)
    def waitvm(self, tag):
        self.L.append(I('@waitvm', tag))
    def waitlg(self, tag=None):
        self.L.append(I('@waitlg', tag))

def waitvm(tag): return I('@waitvm', tag)
def waitlg(tag=None): return I('@waitlg', tag)

def tagset(t):
    if t is None: return frozenset()
    if isinstance(t, (list, tuple, set, frozenset)): return frozenset(t)
    return frozenset([t])
def save(box): return I('@save', box=box)
def restore(box): return I('@restore', box=box)
def join(box): return I('@join', box=box)
def forget(): return I('@forget')

def insert_waits(L, verbose=False):
    out = []
    vm, lg = [], []
    def emit_wait(nvm, nlg):
        parts = []
        if nvm is not None:
            parts.append(f'vmcnt({min(nvm, 63)})')
        if nlg is not None:
            parts.append(f'lgkmcnt({min(nlg, 15)})')
        w = I('s_waitcnt ' + ' '.join(parts))
        if out and out[-1].cls == 'wait' and out[-1].meta.get('auto'):
            old = out.pop().text
            mv = re.search(r'vmcnt\((\d+)\)', old); ml = re.search(r'lgkmcnt\((\d+)\)', old)
            a = [x for x in (nvm, int(mv.group(1)) if mv else None) if x is not None]
            b = [x for x in (nlg, int(ml.group(1)) if ml else None) if x is not None]
            parts = []
            if a: parts.append(f'vmcnt({min(min(a), 63)})')
            if b: parts.append(f'lgkmcnt({min(min(b), 15)})')
            w = I('s_waitcnt ' + ' '.join(parts))
        w.meta['auto'] = True
        out.append(w)
    def drain(q, idx):
        del q[:idx + 1]
    for ins in L:
        if ins.cls == 'pseudo':
            if ins.op == '@waitvm':
                idx = max((i for i, e in enumerate(vm) if ins.tag is None or e[1] & tagset(ins.tag)), default=None)
                if idx is not None:
                    n = len(vm) - 1 - idx
                    if n > 63:
                        idx = len(vm) - 1 - 63; n = 63
                    emit_wait(n, None); drain(vm, idx)
            elif ins.op == '@waitlg':
                idx = max((i for i, e in enumerate(lg) if ins.tag is None or e[1] & tagset(ins.tag)), default=None)
                if idx is not None:
                    if any(e[2] for e in lg): idx = len(lg) - 1
                    n = len(lg) - 1 - idx
                    if n > 15:
                        idx = len(lg) - 1 - 15; n = 15
                    emit_wait(None, n); drain(lg, idx)
            elif ins.op == '@forget':
                vm.clear(); lg.clear()
            elif ins.op == '@save':
                ins.meta['box']['vm'] = list(vm); ins.meta['box']['lg'] = list(lg)
            elif ins.op == '@join':
                for q, o in ((vm, ins.meta['box']['vm']), (lg, ins.meta['box']['lg'])):
                    n = max(len(q), len(o)); r = []
                    for k in range(n, 0, -1):
                        a = q[-k] if k <= len(q) else (set(), frozenset(), False)
                        b = o[-k] if k <= len(o) else (set(), frozenset(), False)
                        r.append((a[0] | b[0], a[1] | b[1], a[2] or b[2]))
                    q[:] = r
            elif ins.op == '@restore':
                vm[:] = list(ins.meta['box']['vm']); lg[:] = list(ins.meta['box']['lg'])
            else:
                raise ValueError(ins.op)
            continue
        if ins.cls == 'wait':
            mv = re.search(r'vmcnt\((\d+)\)', ins.text); ml = re.search(r'lgkmcnt\((\d+)\)', ins.text)
            if mv:
                n = int(mv.group(1))
                if len(vm) > n: del vm[:len(vm) - n]
            if ml:
                n = int(ml.group(1))
                if n == 0 or not any(e[2] for e in lg):
                    if len(lg) > n: del lg[:len(lg) - n]
            out.append(ins); continue
        touch = set(ins.src) | set(ins.dst)
        nvm = nlg = None
        iv = max((i for i, e in enumerate(vm) if e[0] & touch), default=None)
        il = max((i for i, e in enumerate(lg) if e[0] & touch), default=None)
        if iv is not None:
            nvm = len(vm) - 1 - iv
            assert nvm <= 63 or True
            if nvm > 63: iv = len(vm) - 1 - 63; nvm = 63
        if il is not None:
            if any(e[2] for e in lg): il = len(lg) - 1
            nlg = len(lg) - 1 - il
            if nlg > 15: il = len(lg) - 1 - 15; nlg = 15
        if nvm is not None or nlg is not None:
            emit_wait(nvm, nlg)
            if iv is not None: drain(vm, iv)
            if il is not None: drain(lg, il)
        if ins.cls == 'vmem':
            if len(vm) >= 63:
                emit_wait(62, None); del vm[:len(vm) - 62]
            vm.append((set(ins.dst), tagset(ins.tag), False))
        elif ins.cls == 'ds':
            if len(lg) >= 15:
                emit_wait(None, 8 if not any(e[2] for e in lg) else 0)
                if any(e[2] for e in lg): lg.clear()
                else: del lg[:len(lg) - 8]
            lg.append((set(ins.dst), tagset(ins.tag), False))
        elif ins.cls == 'smem':
            lg.append((set(ins.dst), tagset(ins.tag), True))
            lg.append((set(), tagset(ins.tag), True))
        out.append(ins)
    return out

WINDOW = 21
def pad_hazards(L):
    out = []
    labels = {}
    for i, x in enumerate(L):
        if x.cls == 'label': labels[x.op[:-1]] = i
    def head(i, n):
        r = []
        while i < len(L) and len(r) < n:
            if L[i].states(): r.append(L[i])
            if L[i].op in ('s_branch', 's_endpgm'): break
            i += 1
        return r
    nins = 0
    for ins in L:
        if ins.states():
            req = 0
            dist = 0
            for p in reversed(out):
                if p.op in ('s_branch', 's_endpgm'): break
                if dist >= WINDOW: break
                if p.states():
                    k = need(p, ins) - dist
                    if k > req: req = k
                    dist += p.states()
            if ins.cls == 'branch' and ins.op != 's_endpgm':
                tgt = ins.text.split()[1]
                if tgt in labels:
                    h = head(labels[tgt], WINDOW)
                    dist = 0
                    for p in reversed(out):
                        if p.op in ('s_branch', 's_endpgm'): break
                        if dist >= WINDOW: break
                        if p.states():
                            d2 = dist + 1
                            for c in h:
                                k = need(p, c) - d2
                                if k > req: req = k
                                d2 += c.states()
                            dist += p.states()
            while req > 0:
                k = min(req, 16)
                out.append(I(f's_nop {k - 1}', auto=True)); nins += 1
                req -= k
        out.append(ins)
    return out

def finish(L):
    L = insert_waits(L)
    L = pad_hazards(L)
    return L

def text(L):
    o = []
    for x in L:
        if x.cls == 'label': o.append(x.text)
        else: o.append('    ' + x.text)
    return '\n'.join(o) + '\n'

COST = {'valu': 4, 'trans': 8, 'mfma': 8, 'ds': 4, 'vmem': 4, 'salu': 4, 'smem': 4, 'wait': 4, 'barrier': 4, 'branch': 4}
def estimate(L):
    t = 0; pipe = 0; prev = None
    for x in L:
        if not x.states(): continue
        c = 4 * x.states() if x.cls == 'nop' else COST[x.cls]
        if x.cls in ('ds', 'vmem') and prev is not None and prev.cls in ('valu', 'trans'): c += 8
        if x.cls == 'mfma':
            t = max(t, pipe)
            pipe = t + 4 * x.passes
        t += c
        prev = x
    return max(t, pipe)

def interleave(mf, gaps):
    out = []
    for i, m in enumerate(mf):
        out.append(m)
        out.extend(gaps.get(i, []))
    return out

def cost(x):
    if isinstance(x, (list, tuple)): return sum(cost(y) for y in x)
    if not x.states(): return 0
    return 4 * x.states() if x.cls == 'nop' else COST[x.cls]

def mk(x, tag=None):
    if isinstance(x, I): return [x]
    if isinstance(x, str): return [I(l, tag) for l in x.split('\n') if l.strip()]
    r = []
    for y in x: r.extend(mk(y, tag))
    return r

def delay(n): return I('@delay', n=n)
class Pool:
    def __init__(self, maxvm=99, period=0, burst=1, maxds=99):
        self.q = []; self.maxvm = maxvm; self.period = period; self.burst = burst; self.next = -10**9; self.hold = None
        self.maxds = maxds
    def put(self, x, tag=None): self.q.extend(mk(x, tag))
    def take(self, room, memok, now=0):
        out = []
        nvm = nds = 0
        while self.q:
            x = self.q[0]
            if x.op == '@delay':
                if self.hold is None: self.hold = now + x.meta['n']
                if now < self.hold: break
                self.hold = None; self.q.pop(0); continue
            mem = x.cls in ('vmem', 'ds')
            if mem and not memok: break
            if x.cls == 'ds':
                if nds >= self.maxds: break
                nds += 1
            if x.cls == 'vmem':
                if nvm >= self.maxvm: break
                if x.lds and out and 'm0' in out[-1].dst: break
                if now < self.next - self.period * (self.burst - 1): break
            c = cost(x)
            if c > room and c: break
            if x.cls == 'vmem':
                nvm += 1; self.next = max(self.next, now) + (16 if x.meta.get('free') else self.period)
            out.append(self.q.pop(0)); room -= c
            while out[-1].op.startswith('s_cmp') or out[-1].meta.get('glue'):
                room -= cost(self.q[0]); out.append(self.q.pop(0))
            if x.cls in ('valu', 'trans'): memok = False
        return out
    def rest(self):
        r = [x for x in self.q if x.op != '@delay']; self.q = []; self.hold = None
        return r

def weave(P, mfs, fixed, pools=(), slack=0, timed=None):
    for g, m in enumerate(mfs):
        for pool, work in (timed or {}).get(g, []): pool.put(work)
        m = mk(m)
        P.add(m)
        f = mk(fixed.get(g, []))
        P.add(f)
        room = 4 * m[-1].passes - 8 - cost(f) - slack
        memok = not any(x.cls in ('valu', 'trans') for x in f)
        for pool in pools:
            t = pool.take(room, memok, P.now())
            P.add(t)
            room -= cost(t)
            if any(x.cls in ('valu', 'trans') for x in t): memok = False
```

```python
from common import *

class AR:
    L16 = 1; T = 2; J = 10; PM = 12; VA = 20; M = 30
    S = 32
    D0, A0, D1, A1 = 80, 96, 112, 128
    N = 144; O = 176; P = 208; PA = 216
    aQ = 0; aK = 8; aV = 48
    LDS_V = 0; LDS_ONE = 16384
    sHead = 's62'; sQb = 's63'; sNb = 's64'; sKo = ('s65', 's66', 's67'); sQo = 's68'; sVo = 's69'; sOo = 's70'
    msk = ('s[82:83]', 's[84:85]', 's[86:87]')
R = AR
NINF = '0xff800000'
ITEMS = [(0, 1)] + [(t, b) for b in range(2, 8) for t in range(2)] + [(1, 8)]

def qk(d, b, t, c):
    return f'v_mfma_f32_32x32x16_bf16 {vr(d, 16)}, {ar(R.aK + 4*b, 4)}, {ar(R.aQ + 4*t, 4)}, {c}'
def pv(t, b, half, p, first=False):
    o = vr(R.O + 16*t, 16)
    return f'v_mfma_f32_32x32x16_bf16 {o}, {ar(R.aV + 8*b + 4*half, 4)}, {vr(p + 4*half, 4)}, {"0" if first else o}'

def ids(P):
    P(f'''s_and_b32 {R.sHead}, s2, 31
    s_lshr_b32 {R.sQb}, s2, 5
    s_lshl_b32 {s.spin}, {s.w}, 1
    s_sub_u32 {R.sNb}, 8, {s.spin}
    s_lshl3_add_u32 {s.spin}, {R.sQb}, {s.spin}
    s_lshl_b32 {R.sOo}, {s.spin}, 5
    s_add_u32 {R.sOo}, {R.sOo}, {R.sHead}
    s_lshl_b32 {R.sOo}, {R.sOo}, 10
    s_add_u32 {R.sOo}, {R.sOo}, {WS_O}
    s_lshl_b32 {R.sVo}, {R.sHead}, 6
    s_add_u32 {R.sQo}, {R.sVo}, {s.spin}
    s_lshl_b32 {R.sQo}, {R.sQo}, 10
    s_add_u32 {R.sQo}, {R.sQo}, {WS_QKV}
    s_add_u32 {R.sKo[0]}, {R.sQo}, {32*65536 - 8*1024}
    s_add_u32 {R.sKo[1]}, {R.sKo[0]}, 4096
    s_add_u32 {R.sKo[2]}, {R.sKo[0]}, 8192
    s_lshl_b32 {s.spin}, {R.sQb}, 1
    s_add_u32 {s.spin}, {s.spin}, {s.w}
    s_sub_u32 {s.spin}, {s.spin}, 2
    s_max_i32 {s.spin}, {s.spin}, 0
    s_lshl2_add_u32 {R.sVo}, {s.spin}, {R.sVo}
    s_lshl_b32 {R.sVo}, {R.sVo}, 10
    s_add_u32 {R.sVo}, {R.sVo}, {WS_QKV + 64*65536}''')

def loads(sc=' sc1'):
    r = []
    for t in range(2):
        r += mk(f'buffer_load_dwordx4 {ar(R.aQ + 4*t, 4)}, v{R.L16}, {sWS}, {R.sQo} offen offset:{1024*t}{sc}')
    for b in (8, 0, 9, 1, 2, 3, 4, 5, 6, 7):
        r += mk(f'buffer_load_dwordx4 {ar(R.aK + 4*b, 4)}, v{R.L16}, {sWS}, {R.sKo[b >> 2]} offen offset:{1024*(b & 3)}{sc}')
    r += mk(f's_lshl_b32 m0, {s.w}, 12' if R.LDS_V == 0 else f's_add_u32 m0, {s.mx}, {R.LDS_V}')
    r += mk('s_nop 0')
    for j in range(4):
        r += mk(f'buffer_load_dwordx4 v{R.L16}, {sWS}, {R.sVo} offen offset:{1024*j}{sc} lds', 'V')
    return r

def setup():
    t = R.T
    r = [f'v_mov_b32 v{t+k}, 0x3f803f80' for k in range(4)]
    r += [f'v_add_u32 v{t+4}, {R.LDS_ONE}, v{R.L16}', f'ds_write_b128 v{t+4}, {vr(t, 4)}']
    r += f'''v_lshrrev_b32 v{t+5}, 5, v0
    v_and_b32 v{t+6}, 15, v0
    v_lshlrev_b32 v{t+6}, 3, v{t+6}
    v_lshl_add_u32 v{t+6}, v{t+5}, 7, v{t+6}
    s_lshl_b32 {s.spin}, {s.w}, 11
    s_add_u32 {s.spin}, {s.spin}, {R.LDS_V}
    v_add_u32 v{t+7}, {s.spin}, v{t+6}
    v_xor_b32 v{t+6}, {R.LDS_ONE + 128}, v{t+6}
    v_and_b32 v{R.J}, 16, v0
    v_cmp_eq_u32 {R.msk[0]}, 0, v{R.J}
    v_mov_b32 v{R.J+1}, 1024
    v_and_b32 v{R.J}, 31, v0
    v_cndmask_b32 v{R.VA}, v{t+6}, v{t+7}, {R.msk[0]}
    v_cndmask_b32 v{t+7}, 0, v{R.J+1}, {R.msk[0]}
    v_lshlrev_b32 v{t+5}, 2, v{t+5}
    v_sub_u32 v{R.J}, v{R.J}, v{t+5}
    v_mov_b32 v{R.J+1}, 0xffff
    v_mov_b32 v{R.M}, {NINF}
    v_mov_b32 v{R.M+1}, {NINF}'''.split('\n')
    r += [f'v_add_u32 v{R.VA+b}, v{R.VA+b-1}, v{t+7}' for b in range(1, 10)]
    r += [f's_cmp_eq_u32 {R.sQb}, 0', 's_cselect_b64 vcc, -1, 0']
    return mk(r)

def vreads():
    r = []
    for b in (1, 2, 3, 4, 5, 6, 7, 8, 0, 9):
        for k in range(4):
            r.append(f'ds_read_b64_tr_b16 {ar(R.aV + 8*b + 2*k, 2)}, v{R.VA+b} offset:{256*k}')
    return r

def stub(P, cold, name, nb, body):
    P(f's_cbranch_vccnz L_{name}\nL_{name}_back:')
    cold(f'L_{name}:')
    if nb is not None:
        cold(f's_cmp_eq_u32 {R.sNb}, {nb}\ns_cbranch_scc0 L_{name}_back')
    cold.add(body)
    cold(f's_branch L_{name}_back')

def spread(head, mf, every):
    out = []; mf = list(mf)
    for i, x in enumerate(head):
        if i % every == 0 and mf: out.append(mf.pop(0))
        out.append(x)
    return out + mf

class NoBg:
    def gap(self, P, where): pass
def pass1(P, cold, pre, bg=NoBg()):
    sb = lambda k: R.S + 16 * (k % 3)
    P.add(spread(pre, [qk(R.D0, 8, 0, '0'), qk(R.A0, 0, 0, '0'), qk(R.D1, 9, 1, '0'), qk(R.A1, 1, 1, '0')], 6))
    stub(P, cold, 'at_anti', None, [f'v_mov_b32 v{a+r}, {NINF}' for a in (R.A0, R.A1) for r in range(16)])
    mg = []
    c = lambda r: 8 * (r >> 2) + (r & 3)
    cmpi = lambda r: f'v_cmp_le_i32 {R.msk[r % 3]}, {c(r)}, v{R.J}'
    mg += [cmpi(0), cmpi(1)]
    for r in range(16):
        if r + 2 < 16: pass
        m = R.msk[r % 3]
        mg.append(f'v_cndmask_b32 v{R.D0+r}, v{R.A0+r}, v{R.D0+r}, {m}')
        mg.append(f'v_cndmask_b32 v{R.D1+r}, v{R.A1+r}, v{R.D1+r}, {m}')
        if r & 1 == 0: mg.append(f'v_cndmask_b32 v{R.PM + r//2}, 0, v{R.J+1}, {m}')
        else: mg.append(f'v_cndmask_b32 v{R.PM + r//2}, v{R.PM + r//2}, -1, {m}')
        if r + 2 < 16: mg.append(cmpi(r + 2))
    P.add(spread(mg, [qk(sb(k), ITEMS[k][1], ITEMS[k][0], '0') for k in range(2)], 30))
    P.waitvm('V'); P.waitlg(); P('s_barrier')
    stamp(P, 'atb')
    vq = vreads()
    for k, (t, b) in enumerate(ITEMS):
        if k + 2 < len(ITEMS): P(qk(sb(k + 2), ITEMS[k+2][1], ITEMS[k+2][0], '0'))
        for _ in range(3 if k + 2 < len(ITEMS) else 2):
            if vq: P(vq.pop(0))
        bg.gap(P, ('p1', k))
        if b % 2 == 0 and (t == 0 or b == 8):
            stub(P, cold, f'at_m{b}', b, [f'v_mov_b32 v{R.M}, {NINF}', f'v_mov_b32 v{R.M+1}, {NINF}'])
        for j in range(8):
            P(f'v_max3_f32 v{R.M+t}, v{R.M+t}, v{sb(k)+2*j}, v{sb(k)+2*j+1}')
    assert not vq
    for j in range(8):
        for t, d in enumerate((R.D0, R.D1)):
            P(f'v_max3_f32 v{R.M+t}, v{R.M+t}, v{d+2*j}, v{d+2*j+1}')
    P(f'''v_permlane32_swap_b32 v{R.M}, v{R.M+1}
    v_min_f32 v{R.N+16}, -v{R.M}, -v{R.M+1}
    v_min_f32 v{R.N}, -v{R.M}, -v{R.M+1}
    v_permlane32_swap_b32 v{R.N}, v{R.N+16}''')

def pass2(P0, cold, bg=NoBg()):
    class W:
        n = 0
        def __call__(self, x): self.add([x])
        def add(self, xs):
            for x in mk(xs):
                P0.add([x])
                if x.cls == 'mfma':
                    bg.gap(P0, ('p2', self.n)); self.n += 1
    P = W()
    sb = lambda k: R.S + 16 * (k & 1)
    n = lambda t: vr(R.N + 16*t, 16)
    for r in range(1, 16): P(f'v_mov_b32 v{R.N+r}, v{R.N}')
    P(qk(sb(0), ITEMS[0][1], 0, n(0)))
    for r in range(1, 16): P(f'v_mov_b32 v{R.N+16+r}, v{R.N+16}')
    sub = [f'v_add_f32 v{d+r}, v{d+r}, v{R.N+16*t}' for t, d in enumerate((R.D0, R.D1)) for r in range(16)]
    P.add(sub)
    ex = lambda x: f'v_exp_f32 v{x}, v{x}'
    cv = lambda p, x: f'v_cvt_pk_bf16_f32 v{p}, v{x}, v{x+1}'
    pend = []
    seen = set()
    for k, (t, b) in enumerate(ITEMS):
        x = sb(k)
        if k + 1 < len(ITEMS): P(qk(sb(k + 1), ITEMS[k+1][1], ITEMS[k+1][0], n(ITEMS[k+1][0])))
        P.add([ex(x + r) for r in range(3)]); P.add(pend); pend = []
        P.add([ex(x + r) for r in range(3, 8)])
        P.add([cv(R.P + j, x + 2*j) for j in range(4)])
        P.add([ex(x + 8), ex(x + 9)])
        if b % 2 == 0 and (t == 0 or b == 8):
            stub(P, cold, f'at_o{b}', b, [f'v_mov_b32 v{R.O+r}, 0' for r in range(32)])
        P(pv(t, b, 0, R.P, t not in seen)); seen.add(t)
        P.add([ex(x + r) for r in range(10, 16)])
        P.add([cv(R.P + j, x + 2*j) for j in range(4, 8)])
        pend = [pv(t, b, 1, R.P)]
    for t, x in enumerate((R.D0, R.D1)):
        def half(h):
            js = range(4*h, 4*h + 4)
            return ([cv(R.PA + j, x + 2*j) for j in js] + [f'v_and_b32 v{R.P+j}, v{R.PM+j}, v{R.PA+j}' for j in js] +
                    [f'v_xor_b32 v{R.PA+j}, v{R.P+j}, v{R.PA+j}' for j in js])
        P.add([ex(x + r) for r in range(2)]); P.add(pend[:1])
        P.add([ex(x + r) for r in range(2, 5)]); P.add(pend[1:])
        P.add([ex(x + r) for r in range(5, 8)])
        P.add(half(0))
        P.add([ex(x + 8), ex(x + 9)])
        P(pv(t, t + 8, 0, R.P))
        P.add([ex(x + r) for r in range(10, 13)])
        P(pv(t, t, 0, R.PA))
        P.add([ex(x + r) for r in range(13, 16)])
        P.add(half(1))
        pend = [pv(t, t + 8, 1, R.P), pv(t, t, 1, R.PA)]
    def fin(t, sc=' sc1'):
        o = R.O + 16*t
        r = [f'v_rcp_f32 v{o+8}, v{o+8}', 's_nop 0'] + [f'v_mul_f32 v{o+k}, v{o+8}, v{o+k}' for k in range(8)]
        r += [f'v_cvt_pk_bf16_f32 v{o+k}, v{o+2*k}, v{o+2*k+1}' for k in range(4)]
        return mk(r) + mk(f'buffer_store_dwordx4 {vr(o, 4)}, v{R.L16}, {sWS}, {R.sOo} offen{sc}', 'sto')
    f0 = fin(0)
    P.add(f0[:2]); P(pend[0]); P.add(f0[2:8]); P(pend[1]); P.add(f0[8:])
    P(f's_add_u32 {R.sOo}, {R.sOo}, 32768')
    P.add(fin(1))

def standalone(P, cold, cfg):
    from g1 import wave_ids
    srd_load(P, sWS, 72)
    stamp_begin(P)
    wave_ids(P)
    srd_const(P, sWS, WS_SIZE)
    ids(P)
    P.waitlg()
    stamp_keep(P)
    P.add(loads())
    su = setup()
    P.add(su[:-14])
    stamp(P, 1)
    pass1(P, cold, su[-14:])
    stamp(P, 2)
    pass2(P, cold)
    stamp(P, 3)
    P(f'''s_or_b32 {s.spin}, s2, {s.w}
    s_cmp_eq_u32 {s.spin}, 0
    s_cbranch_scc0 L_nobump
    v_mov_b32 v2, 0
    buffer_load_dword v3, v2, {sWS}, 0 offen sc1
    v_add_u32 v3, 1, v3
    buffer_store_dword v3, v2, {sWS}, 0 offen sc1
    L_nobump:''')
```

```python
from asmlib import *

WS_EPOCH = 0x0
WS_STATS = 0x10000
WS_FLAGQ = 0x20000
WS_FLAGH = 0x40000
WS_FLAGO = 0x60000
WS_QKV   = 0x100000
WS_O     = 0x700000
WS_H     = 0x900000
WS_SIZE  = 0x1000000

sX, sQ, sU1, sU2, sG, sU, sWS, sWD, sWO, sOUT, sDBG = (f's[{i}:{i+3}]' for i in range(4, 48, 4))
S = {}
def _s(names, start):
    for i, n in enumerate(names.split()):
        S[n] = f's{start + i}'
_s('w th ch rb cg isb str64 kc kx k0 k1 k2 n0 n1 t0 t1 t2 t3 t4 t5 qo0 qo1 qo2 qo3 qo4 qo5 ho0 ho1 ho2 ho3 fac '
   'mx mw spin', 48)
S['m0a'] = 's[82:83]'; S['m0b'] = 's[84:85]'; S['m0c'] = 's[86:87]'
class _NS:
    def __init__(self, d): self.__dict__.update(d)
s = _NS(S)

def vr(b, n=1):
    return f'v{b}' if n == 1 else f'v[{b}:{b+n-1}]'
def ar(b, n=1):
    return f'a{b}' if n == 1 else f'a[{b}:{b+n-1}]'

LOG2E = 1.4426950408889634
import struct
def f32(x):
    return '0x%08x' % struct.unpack('<I', struct.pack('<f', x))[0]

def srd_const(P, srd, size):
    b = int(srd[2:srd.index(':')])
    P(f's_mov_b32 s{b+2}, {hex(size)}')
    P(f's_mov_b32 s{b+3}, 0x20000')
def srd_load(P, srd, off):
    b = int(srd[2:srd.index(':')])
    P(f's_load_dwordx2 s[{b}:{b+1}], s[0:1], {off}')

KD = '''.section .rodata,"a"
.p2align 6
.amdhsa_kernel {name}
  .amdhsa_next_free_vgpr 512
  .amdhsa_next_free_sgpr 102
  .amdhsa_accum_offset 256
  .amdhsa_group_segment_fixed_size 0
  .amdhsa_kernarg_size 80
  .amdhsa_user_sgpr_count 2
  .amdhsa_user_sgpr_kernarg_segment_ptr 1
  .amdhsa_system_sgpr_workgroup_id_x 1
  .amdhsa_float_denorm_mode_32 3
.end_amdhsa_kernel
'''
def kernel_text(name, L):
    return (f'.text\n.globl {name}\n.p2align 8\n.type {name},@function\n{name}:\n' + text(L) + KD.format(name=name))

STAMPS = [False]
aStamp = None
def stamp_begin(P):
    if not STAMPS[0]: return
    P('s_memtime s[98:99]\ns_memrealtime s[100:101]')
def stamp_keep(P):
    if not STAMPS[0]: return
    P('s_mov_b32 s3, s98\ns_mov_b32 s99, s100')
SEL = []
def stamp(P, idx):
    if not STAMPS[0]: return
    if isinstance(idx, str):
        if idx not in SEL: return
        idx = SEL.index(idx) + 1
    elif SEL: return
    if idx == 6: P('s_memtime s[100:101]')
    else: P(f's_memtime s[{86+2*idx}:{87+2*idx}]')
def stamp_end(P):
    if not STAMPS[0]: return
    P('s_waitcnt vmcnt(0) lgkmcnt(0)')
    P('s_mov_b32 s98, s100')
    P('s_memtime s[82:83]\ns_memrealtime s[84:85]\ns_waitcnt lgkmcnt(0)')
    regs = ['s3', 's88', 's90', 's92', 's94', 's96', 's98', 's82'] + ['0'] * 6 + ['s99', 's84']
    for k, r in enumerate(regs): P(f'v_mov_b32 v{16+k}, {r}')
    P(f's_lshl2_add_u32 s82, s2, {s.w}\ns_lshl_b32 s82, s82, 7\ns_add_u32 s82, s82, 0x80000\nv_mov_b32 v2, 0')
    for k in range(4): P(f'buffer_store_dwordx4 v[{16+4*k}:{19+4*k}], v2, {sWS}, s82 offen offset:{16*k}')
```

```python
from common import *

vT = 2
vL16 = 1
vXd = 10; vWd = 14
vXr = 22
vA, vB, vC = 26, 28, 30
vAugW, vAugR = 32, 33
vQo = 34
vSel = 36; vCs = 40; vSt = 52; vXa = 60; vAg = 64; vScq = 70; vWf = 72
vAcc2 = 96; vAcc1 = 160
vXr2 = 156
SLOT = 40960
LDS_AUG = 114688
def acc1(u, t): return vAcc1 + 32 * u + 16 * t
def acc2(u, t): return vAcc2 + 32 * u + 16 * t
def wf(par, u): return vWf + 12 * par + 4 * u
def xf(i, st, t): return 32 * i + 8 * st + 4 * t
BASE = {vA: 0, vB: 49152, vC: 98304}
W1 = [(vA, 0), (vA, SLOT), (vB, 2*SLOT - 49152), (vC, 3*SLOT - 98304)]
W2 = [(r, a - BASE[r], a) for r, a in ((vA, 0), (vA, 16384), (vA, 49152), (vB, 65536), (vB, 81920), (vC, 98304), (vC, 131072), (vC, 147456))]

def entry(P, endlabel):
    P(f's_cmp_ge_u32 s2, 256\ns_cbranch_scc1 {endlabel}')

def wave_ids(P):
    P(f'v_lshrrev_b32 v{vT}, 6, v0')
    P(f'v_and_b32 v0, 63, v0')
    P(f'v_readfirstlane_b32 {s.w}, v{vT}')
    P(f'v_lshlrev_b32 v{vL16}, 4, v0')

def nonce(P, vE):
    P(f'v_readfirstlane_b32 {s.n0}, v{vE}')
    P(f's_add_u32 {s.n0}, {s.n0}, 1')
    P(f's_mul_i32 {s.n1}, {s.n0}, 0x9e3779b1')
    P(f's_xor_b32 {s.n1}, {s.n1}, 0x7f4a7c15')

def kc_next(first=False):
    r = []
    if not first:
        r += [f's_add_u32 {s.kc}, {s.kc}, 1', f's_and_b32 {s.kc}, {s.kc}, 7']
    return r

def dma1(i):
    sl = i & 3
    tag = f'c{i}'
    pre = kc_next(i == 0) + [f's_lshl_b32 {s.kx}, {s.kc}, 7', f's_mul_i32 {s.k0}, {s.kc}, {64*3072}', f's_mul_i32 {s.k1}, {s.kc}, {s.str64}']
    seq = mk(pre)
    seq += mk(f's_add_u32 m0, {s.mx}, {sl*SLOT + 24576}')
    for j in range(4):
        seq += mk(f'buffer_load_dwordx4 v{vXd+j}, {sX}, {s.kx} offen offset:{1024*j} lds', tag)
    for u, (srd, so) in enumerate(((sQ, s.k0), (sU1, s.k1), (sU2, s.k1))):
        seq += mk(f's_add_u32 m0, {s.mw}, {sl*SLOT + u*8192}')
        for j in range(2):
            seq += mk(f'buffer_load_dwordx4 v{vWd+2*u+j}, {srd}, {so} offen offset:{1024*j} lds', tag)
    return seq

def dma2(i):
    tag = f'd{i}'
    seq = mk(kc_next() + [f's_mul_i32 {s.k2}, {s.kc}, {64*3584}'])
    for u, srd in enumerate((sG, sU)):
        seq += mk(f's_add_u32 m0, {s.mw}, {W2[i][2] + u*8192}')
        for j in range(2):
            seq += mk(f'buffer_load_dwordx4 v{vWd+6+j}, {srd}, {s.k2} offen offset:{1024*j} lds', tag)
    return seq

def rd1(i, st):
    sl = i & 3
    x = [f'ds_read_b128 {ar(xf(i, st, t), 4)}, v{(vXr if sl < 2 else vXr2)+st} offset:{(sl & 1)*SLOT + t*4096}' for t in range(2)]
    base = W1[sl][0] + (st >> 1)
    w = [[f'ds_read_b64_tr_b16 {vr(wf(st & 1, u) + 2*j, 2)}, v{base} offset:{W1[sl][1] + u*8192 + (st & 1)*2048 + j*512}'
          for j in range(2)] for u in range(3)]
    return x, w

def rd2(i, st):
    reg, imm, _ = W2[i]
    return [[f'ds_read_b64_tr_b16 {vr(wf(st & 1, u) + 2*j, 2)}, v{reg + (st >> 1)} offset:{imm + u*8192 + (st & 1)*2048 + j*512}'
             for j in range(2)] for u in range(2)]

def mf32(d, a, b, first):
    return f'v_mfma_f32_32x32x16_bf16 {vr(d, 16)}, {a}, {b}, {"0" if first else vr(d, 16)}'

def cs_split(u, off):
    c = vCs + 4 * u
    h, f, l = vT, vT + 2, vT + 6
    r = [f'v_cvt_pk_bf16_f32 v{h}, v{c}, v{c+1}', f'v_cvt_pk_bf16_f32 v{h+1}, v{c+2}, v{c+3}',
         f'v_lshlrev_b32 v{f}, 16, v{h}', f'v_and_b32 v{f+1}, 0xffff0000, v{h}',
         f'v_lshlrev_b32 v{f+2}, 16, v{h+1}', f'v_and_b32 v{f+3}, 0xffff0000, v{h+1}']
    r += [f'v_sub_f32 v{f+k}, v{c+k}, v{f+k}' for k in range(4)]
    r += [f'v_cvt_pk_bf16_f32 v{l}, v{f}, v{f+1}', f'v_cvt_pk_bf16_f32 v{l+1}, v{f+2}, v{f+3}',
          f'ds_write_b64 v{vAugW}, {vr(h, 2)} offset:{off + u*512}', f'ds_write_b64 v{vAugW}, {vr(l, 2)} offset:{off + u*512 + 64}']
    return r

def pack_store(d, voff, so_a, so_b, imm_a, imm_b, tag):
    r = []
    for half, (so, imm) in enumerate(((so_a, imm_a), (so_b, imm_b))):
        b = d + 8 * half
        r += mk([f'v_cvt_pk_bf16_f32 v{b+k}, v{b+2*k}, v{b+2*k+1}' for k in range(4)])
        r += mk(f'buffer_store_dwordx4 {vr(b, 4)}, v{voff}, {sWS}, {so} offen offset:{imm} sc1', tag)
    return r

def epi_qkv(u, voff, scale):
    r = []
    for t in range(2):
        d = acc1(u, t)
        r += mk([f'v_mul_f32 v{d+k}, v{scale(t)}, v{d+k}' for k in range(16)])
        r += pack_store(d, voff, S[f'qo{2*u}'], S[f'qo{2*u+1}'], 1024 * t, 1024 * t, 'st1')
    return r

def epi_h(g, uu, so, tag):
    r = []
    for t in range(2):
        r += mk([f'v_mul_f32 v{g(t)+k}, v{g(t)+k}, v{uu(t)+k}' for k in range(16)])
        r += pack_store(g(t), vL16, so(t), so(t), 0, 1024, tag)
    return r

def prologue(P, cfg):
    for srd, off in ((sX, 0), (sQ, 8), (sG, 32), (sU, 40), (sWS, 72)):
        srd_load(P, srd, off)
    stamp_begin(P)
    wave_ids(P)
    P(f'''s_and_b32 {s.t0}, s2, 7
    s_lshr_b32 {s.t1}, s2, 3
    s_and_b32 {s.rb}, {s.t0}, 1
    s_lshl_b32 {s.rb}, {s.rb}, 3
    s_and_b32 {s.t2}, {s.t1}, 7
    s_add_u32 {s.rb}, {s.rb}, {s.t2}
    s_lshr_b32 {s.t0}, {s.t0}, 1
    s_lshr_b32 {s.t1}, {s.t1}, 3
    s_lshl2_add_u32 {s.cg}, {s.t0}, {s.t1}
    s_and_b32 {s.th}, {s.w}, 1
    s_lshr_b32 {s.ch}, {s.w}, 1
    s_lshl_b32 {s.mx}, {s.w}, 12
    s_lshl_b32 {s.mw}, {s.w}, 11''')
    srd_const(P, sX, 2048*512*2); srd_const(P, sWS, WS_SIZE); srd_const(P, sQ, 512*1536*2)
    srd_const(P, sG, 512*1792*2); srd_const(P, sU, 512*1792*2)
    P('s_mov_b32 s15, 0x20000\ns_mov_b32 s19, 0x20000')
    P(f'''s_lshl_b32 {s.t2}, {s.rb}, 4
    s_add_u32 {s.t2}, {s.t2}, {s.cg}
    s_lshl2_add_u32 {s.t2}, {s.t2}, {s.w}
    s_lshl_b32 {s.t3}, {s.t2}, 11
    s_lshl_b32 {s.t2}, {s.t2}, 5
    s_add_u32 {s.qo5}, {s.t2}, {WS_STATS}''')
    P(f'''s_mul_i32 {s.t4}, {s.t0}, 3
    s_add_u32 {s.t5}, {s.t4}, {s.t1}
    s_add_u32 {s.t4}, {s.t4}, 12
    s_cmp_eq_u32 {s.t1}, 3
    s_cselect_b32 {s.isb}, 1, 0
    s_cselect_b32 {s.qo0}, {s.t4}, {s.t5}
    s_mov_b32 {s.str64}, {64*3072}
    s_cselect_b32 {s.str64}, {s.str64}, {64*3584}
    s_lshl_b32 s14, {s.str64}, 3
    s_mov_b32 s18, s14
    s_lshl_b32 {s.qo1}, {s.qo0}, 7
    s_add_u32 {s.qo2}, {s.qo1}, 128
    s_add_u32 {s.qo3}, {s.qo1}, 256
    s_cmp_eq_u32 {s.isb}, 1
    s_cselect_b32 {s.qo2}, {s.qo2}, {s.qo1}
    s_cselect_b32 {s.qo3}, {s.qo3}, {s.qo1}''')
    P(f's_mov_b32 {s.ho0}, {s.t5}')
    if cfg.get('rot') == 1:
        P(f's_lshr_b32 {s.kc}, {s.rb}, 1')
    elif cfg.get('rot') == 2:
        P(f's_lshl1_add_u32 {s.kc}, {s.cg}, {s.rb}\ns_and_b32 {s.kc}, {s.kc}, 7')
    elif cfg.get('rot') == 3:
        P(f's_and_b32 {s.kc}, {s.rb}, 7')
    elif cfg.get('rot') == 4:
        P(f's_and_b32 {s.kc}, {s.rb}, 3')
    else:
        P(f's_mov_b32 {s.kc}, 0')
    t = vT
    P(f'''v_lshrrev_b32 v{t}, 3, v0
    v_and_b32 v{t+1}, 7, v0
    v_lshrrev_b32 v{t+2}, 4, v0
    v_xor_b32 v{t+3}, v{t+1}, v{t+2}
    v_lshlrev_b32 v{t+3}, 4, v{t+3}
    v_lshl_add_u32 v{t+3}, v{t}, 10, v{t+3}
    s_lshl_b32 {s.t0}, {s.rb}, 17
    s_lshl_b32 {s.t1}, {s.w}, 15
    s_add_u32 {s.t0}, {s.t0}, {s.t1}
    v_add_u32 v{vXd}, {s.t0}, v{t+3}
    v_xor_b32 v{vXd+1}, 64, v{vXd}
    v_add_u32 v{vXd+2}, {2*7168}, v{vXd}
    v_add_u32 v{vXd+3}, {3*7168}, v{vXd+1}
    v_add_u32 v{vXd+1}, 7168, v{vXd+1}
    v_and_b32 v{t+2}, 1, v{t+2}
    v_lshlrev_b32 v{t+2}, 2, v{t+2}
    v_xor_b32 v{t+1}, v{t+1}, v{t+2}
    v_lshlrev_b32 v{t+1}, 4, v{t+1}
    s_lshl_b32 {s.t0}, {s.w}, 4
    v_add_u32 v{t}, {s.t0}, v{t}
    s_lshr_b32 {s.t1}, {s.str64}, 6
    v_mul_u32_u24 v{t+2}, 3072, v{t}
    v_mul_u32_u24 v{t+3}, {s.t1}, v{t}
    v_add3_u32 v{vWd}, v{t+2}, v{t+1}, {s.qo1}
    v_add3_u32 v{vWd+2}, v{t+3}, v{t+1}, {s.qo2}
    v_add3_u32 v{vWd+4}, v{t+3}, v{t+1}, {s.qo3}
    s_lshr_b32 {s.t1}, {s.str64}, 3
    s_sub_u32 {s.t1}, {s.t1}, 1024
    v_add_u32 v{vWd+1}, {8*3072-1024}, v{vWd}
    v_add_u32 v{vWd+3}, {s.t1}, v{vWd+2}
    v_add_u32 v{vWd+5}, {s.t1}, v{vWd+4}
    v_mov_b32 v{t+4}, 0''')
    P.waitlg()
    stamp_keep(P)
    if cfg.get('pro'): stamp(P, 1)
    P(f'''s_cmp_eq_u32 {s.isb}, 1
    s_cselect_b32 s12, s8, s20
    s_cselect_b32 s13, s9, s21
    s_cselect_b32 s16, s8, s24
    s_cselect_b32 s17, s9, s25''')
    R = vAcc2
    P(f'buffer_load_dword v{R+40}, v{t+4}, {sWS}, 0 offen sc1', 'ep')
    P(f'buffer_load_dwordx4 {vr(R, 4)}, v{vL16}, {sX}, {s.t3} offen', 'row')
    P(f'buffer_load_dwordx4 {vr(R+4, 4)}, v{vL16}, {sX}, {s.t3} offen offset:1024', 'row')
    P.add(dma1(0))
    P(f'''s_add_u32 {s.t0}, {s.cg}, 12
    s_lshl_b32 {s.t0}, {s.t0}, 7
    v_mul_u32_u24 v{t+3}, 3584, v{t}
    v_add3_u32 v{vWd+6}, v{t+3}, v{t+1}, {s.t0}
    v_add_u32 v{vWd+7}, {8*3584-1024}, v{vWd+6}''')
    P.add(dma1(1))
    P(f'''v_and_b32 v{t}, 31, v0
    s_lshl_b32 {s.t0}, {s.th}, 6
    v_add_u32 v{t}, {s.t0}, v{t}
    v_lshrrev_b32 v{t+1}, 5, v0
    v_bfe_u32 v{t+2}, v0, 1, 3
    v_xor_b32 v{t+2}, v{t+2}, v{t+1}
    s_lshl_b32 {s.t0}, {s.th}, 2
    v_xor_b32 v{t+2}, {s.t0}, v{t+2}
    v_lshlrev_b32 v{t+2}, 4, v{t+2}
    v_lshl_add_u32 v{vXr}, v{t}, 7, v{t+2}
    v_add_u32 v{vXr}, 24576, v{vXr}
    v_xor_b32 v{vXr+1}, 32, v{vXr}
    v_xor_b32 v{vXr+2}, 64, v{vXr}
    v_xor_b32 v{vXr+3}, 0x60, v{vXr}''')
    for k in range(4): P(f'v_add_u32 v{vXr2+k}, {2*SLOT}, v{vXr+k}')
    P(f'''v_bfe_u32 v{t}, v0, 2, 2
    v_lshl_add_u32 v{t}, v{t+1}, 3, v{t}
    v_bfe_u32 v{t+2}, v0, 4, 1
    v_bfe_u32 v{t+3}, v0, 1, 1
    v_lshl_add_u32 v{t+3}, v{t+2}, 1, v{t+3}
    v_bfe_u32 v{t+4}, v0, 3, 1
    v_xor_b32 v{t+4}, {s.ch}, v{t+4}
    v_lshl_add_u32 v{t+3}, v{t+4}, 2, v{t+3}
    v_and_b32 v{t+4}, 1, v0
    v_lshlrev_b32 v{t+4}, 3, v{t+4}
    v_lshl_add_u32 v{t+3}, v{t+3}, 4, v{t+4}
    v_lshl_add_u32 v{t+3}, v{t}, 7, v{t+3}
    s_lshl_b32 {s.t0}, {s.th}, 12
    s_sub_u32 {s.t1}, 4096, {s.t0}
    v_add_u32 v{vA}, {s.t0}, v{t+3}
    v_add_u32 v{vA+1}, {s.t1}, v{t+3}
    v_add_u32 v{vB}, {BASE[vB]}, v{vA}
    v_add_u32 v{vB+1}, {BASE[vB]}, v{vA+1}
    v_add_u32 v{vC}, {BASE[vC]}, v{vA}
    v_add_u32 v{vC+1}, {BASE[vC]}, v{vA+1}''')
    P(f'''s_lshl_b32 {s.t0}, {s.ch}, 8
    s_add_u32 {s.t0}, {s.t0}, {LDS_AUG}
    s_lshl_b32 {s.t1}, {s.th}, 7
    s_add_u32 {s.t1}, {s.t1}, {s.t0}
    v_lshrrev_b32 v{t}, 4, v0
    v_lshlrev_b32 v{t}, 3, v{t}
    v_lshl_add_u32 v{t}, v{t+4}, 2, v{t}
    v_add_u32 v{t}, {s.t1}, v{t}
    v_lshlrev_b32 v{t+5}, 3, v0
    v_add_u32 v{t+5}, {LDS_AUG+4096}, v{t+5}
    v_and_b32 v{t+6}, 14, v0
    v_cmp_eq_u32 vcc, 0, v{t+6}
    v_bfe_u32 v{t+6}, v0, 2, 2
    v_and_b32 v{t+7}, 3, v0
    v_cndmask_b32 v{vAugW}, v{t+5}, v{t}, vcc
    v_lshlrev_b32 v{t+7}, 3, v{t+7}
    v_lshl_add_u32 v{t+7}, v{t+2}, 5, v{t+7}
    v_lshl_add_u32 v{t+7}, v{t+6}, 6, v{t+7}
    v_add_u32 v{vAugR}, {s.t0}, v{t+7}
    s_mov_b32 s82, 0x00020001
    s_mov_b32 s83, 0x00020001
    v_mov_b32 v{t}, 0x3f803f80
    v_cndmask_b32 v{vSel}, 0, v{t}, s[82:83]
    v_cndmask_b32 v{vSel+1}, 0, v{t}, s[82:83]
    v_cndmask_b32 v{vSel+2}, 0, v{t}, s[82:83]
    v_cndmask_b32 v{vSel+3}, 0, v{t}, s[82:83]''')
    P(f'''v_and_b32 v{t}, 31, v0
    v_lshlrev_b32 v{t}, 5, v{t}
    v_lshl_add_u32 v{vQo}, v{t+1}, 4, v{t}''')
    if cfg.get('pro'): stamp(P, 2)
    nonce(P, R + 40)
    if cfg.get('pro'): stamp(P, 3); P.waitvm('row'); stamp(P, 4)
    E = R + 8
    for r in range(2):
        for k in range(4):
            P(f'v_lshlrev_b32 v{E+8*r+2*k}, 16, v{R+4*r+k}')
            P(f'v_and_b32 v{E+8*r+2*k+1}, 0xffff0000, v{R+4*r+k}')
    A = R + 24
    def reduce2():
        for m in ('quad_perm:[1,0,3,2] row_mask:0xf', 'quad_perm:[2,3,0,1] row_mask:0xf', 'row_half_mirror row_mask:0xf',
                  'row_mirror row_mask:0xf', 'row_bcast:15 row_mask:0xa', 'row_bcast:31 row_mask:0xc'):
            for r in range(2):
                P(f'v_add_f32_dpp v{A+r}, v{A+r}, v{A+r} {m} bank_mask:0xf')
    for r in range(2):
        P(f'v_add_f32 v{A+r}, v{E+8*r}, v{E+8*r+1}')
    for k in range(2, 8):
        for r in range(2):
            P(f'v_add_f32 v{A+r}, v{A+r}, v{E+8*r+k}')
    reduce2()
    for r in range(2):
        P(f'v_mul_f32 v{A+2+r}, {f32(1/512)}, v{A+r}')
    P(f'v_readlane_b32 {s.t0}, v{A+2}, 63\nv_readlane_b32 {s.t1}, v{A+3}, 63')
    G = R + 32
    for r in range(2):
        P(f'v_cvt_pk_bf16_f32 v{G+4*r}, -v{A+2+r}, -v{A+2+r}')
    for k in range(8):
        for r in range(2):
            P(f'v_subrev_f32 v{E+8*r+k}, {(s.t0, s.t1)[r]}, v{E+8*r+k}')
    for k in range(8):
        for r in range(2):
            P(f'v_mul_f32 v{A+r}, v{E+8*r}, v{E+8*r}' if k == 0 else f'v_fmac_f32 v{A+r}, v{E+8*r+k}, v{E+8*r+k}')
    reduce2()
    for r in range(2):
        P(f'v_mul_f32 v{A+r}, {f32(1/512)}, v{A+r}')
    for r in range(2):
        P(f'v_add_f32 v{A+r}, {f32(1e-5)}, v{A+r}')
    for r in range(2):
        P(f'v_rsq_f32 v{G+4*r+1}, v{A+r}')
    for r in range(2):
        P(f'v_mov_b32 v{G+4*r+2}, {s.n0}\nv_mov_b32 v{G+4*r+3}, {s.n1}')
    P(f'v_mov_b32 v{t}, 0')
    P('s_lshl_b64 exec, 1, 63')
    for r in range(2):
        P(f'buffer_store_dwordx4 {vr(G+4*r, 4)}, v{t}, {sWS}, {s.qo5} offen offset:{16*r} sc1', 'stat')
    P('s_mov_b64 exec, -1')
    if cfg.get('pro'): stamp(P, 5)
    P.add(dma1(2))
    if cfg.get('_pro2'): cfg['_pro2'](P)
    P(f'''s_lshl_b32 {s.t0}, {s.rb}, 1
    s_add_u32 {s.t0}, {s.t0}, {s.th}
    s_lshl_b32 {s.t1}, {s.t0}, 11
    s_lshl_b32 {s.t2}, {s.qo0}, 1
    s_add_u32 {s.t2}, {s.t2}, {s.ch}
    s_lshl_b32 {s.t2}, {s.t2}, 17
    s_add_u32 {s.t1}, {s.t1}, {s.t2}
    s_cmp_lt_u32 {s.qo0}, 8
    s_cselect_b32 {s.fac}, {f32(0.25*LOG2E)}, 1.0
    s_mov_b32 {s.t5}, {s.qo0}
    s_add_u32 {s.qo0}, {s.t1}, {WS_QKV}
    s_add_u32 {s.qo1}, {s.qo0}, 0x10000
    s_add_u32 {s.qo2}, {s.qo0}, 0x40000
    s_add_u32 {s.qo3}, {s.qo0}, 0x50000
    s_add_u32 {s.qo4}, {s.qo0}, 0x80000
    s_add_u32 {s.qo5}, {s.qo0}, 0x90000
    s_mul_i32 {s.t1}, {s.t0}, {2*112*1024}
    s_lshl_b32 {s.t2}, {s.ch}, 11
    s_add_u32 {s.t1}, {s.t1}, {s.t2}
    s_add_u32 {s.t1}, {s.t1}, {WS_H}
    s_lshl_b32 {s.ho0}, {s.ho0}, 12
    s_add_u32 {s.ho0}, {s.ho0}, {s.t1}
    s_add_u32 {s.ho1}, {s.ho0}, {112*1024}
    s_add_u32 {s.t2}, {s.cg}, 12
    s_lshl_b32 {s.t2}, {s.t2}, 12
    s_add_u32 {s.ho2}, {s.t2}, {s.t1}
    s_add_u32 {s.ho3}, {s.ho2}, {112*1024}
    s_lshl_b32 {s.t0}, {s.t0}, 10
    s_add_u32 {s.t4}, {s.t0}, {WS_STATS}''')

def stats_load(tag='g'):
    t = vT + 7
    return mk([f'v_and_b32 v{t}, 0x1f0, v{vL16}']) + \
        mk([f'buffer_load_dwordx4 {vr(vSt+4*k, 4)}, v{t}, {sWS}, {s.t4} offen offset:{512*k} sc1' for k in range(2)], tag)

def stats_check(P, cold):
    P('L_stat_check:')
    P(f'''v_cmp_eq_u32 s[82:83], {s.n0}, v{vSt+2}
    v_cmp_eq_u32 s[84:85], {s.n1}, v{vSt+3}
    v_cmp_eq_u32 s[86:87], {s.n0}, v{vSt+6}
    v_cmp_eq_u32 vcc, {s.n1}, v{vSt+7}
    s_and_b64 s[82:83], s[82:83], s[84:85]
    s_and_b64 s[86:87], s[86:87], vcc
    s_and_b64 s[82:83], s[82:83], s[86:87]
    s_cmp_eq_u64 s[82:83], -1
    s_cbranch_scc0 L_stat_retry
    L_stat_ok:''')
    cold.add([forget()])
    cold(f'''L_stat_retry:
    s_sub_u32 {s.spin}, {s.spin}, 1
    s_cmp_le_i32 {s.spin}, 0
    s_cbranch_scc1 L_stat_ok''')
    cold.add(stats_load())
    cold('s_waitcnt vmcnt(0)\ns_branch L_stat_check')

def phase1(P, cold, cfg):
    P(f's_mov_b32 {s.spin}, 0x20000')
    if not cfg.get('pro'): stamp(P, 1)
    else: stamp(P, 6); stamp_end(P); P('s_endpgm')
    stamp(P, 'pro')
    P.waitvm('c0')
    P('s_barrier')
    stamp(P, 'c0')
    if not cfg.get('pro'): stamp(P, 2)
    x, w = rd1(0, 0)
    P.add(mk(x) + mk(w))
    dq = Pool(cfg.get('maxvm', 1)); dq.put(dma1(3))
    bg = Pool()
    for i in range(8):
        for st in range(4):
            if st == 3:
                P.add(dq.rest()); P.add(bg.rest())
                P.waitvm(f'c{i+1}' if i < 7 else ('d0', 'd1', 'd2', 'd3'))
                P.waitlg()
                if not cfg.get('nobar'): P('s_barrier')
                if cfg.get('nodma'): pass
                elif i < 4: dq.put(dma1(i + 4))
                else: dq.put(dma2(2*(i-4))); dq.put(dma2(2*(i-4) + 1))
            if i == 4 and st == 0 and cfg.get('mid'): stamp(P, 3)
            if st == 0: stamp(P, f'p1_{i}')
            first = (i == 0 and st == 0)
            mfs = []; fixed = {}
            nxt = (i, st + 1) if st < 3 else (i + 1, 0)
            if nxt[0] < 8:
                x, w = rd1(*nxt); rd = [x, w[0], w[1], w[2]]
                if cfg.get('nord'): rd = []
                if cfg.get('nox'): rd = rd[1:]
                if cfg.get('now'): rd = rd[:1]
            else:
                w = rd2(0, 0)
                ag = [f'ds_read_b64_tr_b16 {vr(vAg+2*u, 2)}, v{vAugR} offset:{u*512}' for u in range(3)]
                rd = [ag[:2], ag[2:], w[0], w[1]]
            for u in range(3):
                for t in range(2):
                    if rd: fixed[len(mfs)] = rd.pop(0)
                    mfs.append(mf32(acc1(u, t), vr(wf(st & 1, u), 4), ar(xf(i, st, t), 4), first))
                if st < 2 and not cfg.get('nocs'):
                    c = vr(vCs + 4*u, 4)
                    mfs.append(f'v_mfma_f32_16x16x32_bf16 {c}, {vr(wf(st & 1, u), 4)}, {vr(vSel, 4)}, {"0" if first else c}')
            if i == 5 and st == 0: bg.put(stats_load())
            if i == 7 and st == 0:
                stats_check(P, cold)
                hm = vT + 7
                bg.put([f'v_cmp_gt_u32 vcc, 32, v0'] +
                       [f'v_mul_f32 v{vScq+t}, {s.fac}, v{vSt+4*t+1}' for t in range(2)] +
                       [f'v_cndmask_b32 v{vXa+2*t+k}, 0, v{vSt+4*t}, vcc' for t in range(2) for k in range(2)])
            timed = {}
            if i == 7 and st == 1: timed = {5: [(bg, cs_split(0, 0))], 8: [(bg, cs_split(1, 0))]}
            if i == 7 and st == 2: timed = {2: [(bg, cs_split(2, 0))]}
            weave(P, mfs, fixed, (dq, bg), slack=4, timed=timed)
    mfs = [f'v_mfma_f32_32x32x8_bf16 {vr(acc1(u, t), 16)}, {vr(vAg+2*u, 2)}, {vr(vXa+2*t, 2)}, {vr(acc1(u, t), 16)}'
           for u in range(3) for t in range(2)]
    weave(P, mfs, {}, (dq, bg), slack=4)
    P.add(dq.rest()); P.add(bg.rest())

def phase2(P, isb, cfg, ext=None):
    bg = Pool()
    if not isb:
        bg.put(epi_qkv(0, vL16, lambda t: vScq + t))
        bg.put(epi_h(lambda t: acc1(1, t), lambda t: acc1(2, t), lambda t: S[f'ho{t}'], 'st1'))
    else:
        for u in range(3):
            bg.put(f's_cmp_ge_u32 {s.t5}, {16-u}')
            bg.put(f's_cselect_b64 vcc, -1, 0')
            bg.put(f'v_cndmask_b32 v{vXd+u}, v{vL16}, v{vQo}, vcc')
        for u in range(3):
            bg.put(epi_qkv(u, vXd + u, lambda t: vSt + 4*t + 1))
    lo = Pool()
    for i in range(8):
        for st in range(4):
            if st == 3 and i in (3, 7):
                P.add(lo.rest())
                if i == 3: P.waitvm(('d4', 'd5', 'd6', 'd7'))
                P.waitlg()
                P('s_barrier')
            if st == 0: stamp(P, f'p2_{i}')
            if ext: ext.at(P, i, st, bg)
            first = (i == 0 and st == 0)
            mfs = []; fixed = {}
            nxt = (i, st + 1) if st < 3 else (i + 1, 0)
            if nxt[0] < 8:
                rd = rd2(*nxt)
            else:
                rd = [[f'ds_read_b64_tr_b16 {vr(vAg+2*u, 2)}, v{vAugR} offset:{2048 + u*512}' for u in range(2)]]
            for u in range(2):
                for t in range(2):
                    if rd: fixed[len(mfs)] = rd.pop(0)
                    mfs.append(mf32(acc2(u, t), vr(wf(st & 1, u), 4), ar(xf(i, st, t), 4), first))
                if st < 2 and not cfg.get('nocs'):
                    c = vr(vCs + 4*u, 4)
                    mfs.append(f'v_mfma_f32_16x16x32_bf16 {c}, {vr(wf(st & 1, u), 4)}, {vr(vSel, 4)}, {"0" if first else c}')
            timed = {}
            if i == 7 and st == 1: timed = {5: [(lo, cs_split(0, 2048))]}
            if i == 7 and st == 2: timed = {2: [(lo, cs_split(1, 2048))]}
            weave(P, mfs, fixed, (lo,) + (ext.pools(bg) if ext else (bg,)), slack=4, timed=timed)
    assert not bg.q
    mfs = [f'v_mfma_f32_32x32x8_bf16 {vr(acc2(u, t), 16)}, {vr(vAg+2*u, 2)}, {vr(vXa+2*t, 2)}, {vr(acc2(u, t), 16)}'
           for t in range(2) for u in range(2)]
    weave(P, mfs, {}, ext.pools(bg) if ext else ())
    if ext: ext.done(P)

def epilogue2(P):
    P.add(epi_h(lambda t: acc2(0, t), lambda t: acc2(1, t), lambda t: S[f'ho{2+t}'], 'st2'))

def g1_body(P, cold, cfg, mkext=None):
    prologue(P, cfg)
    phase1(P, cold, cfg)
    box0, boxa = {}, {}
    stamp(P, 'p1')
    if not cfg.get('pro'): stamp(P, 4 if cfg.get('mid') else 3)
    P(f's_cmp_eq_u32 {s.isb}, 1')
    P.add([save(box0)])
    P('s_cbranch_scc1 L_p2b')
    phase2(P, False, cfg, mkext and mkext('a'))
    P.add([save(boxa)])
    P('s_branch L_p2done')
    P.add([restore(box0)])
    P('L_p2b:')
    phase2(P, True, cfg, mkext and mkext('b'))
    P.add([join(boxa)])
    P('L_p2done:')
    if not cfg.get('pro'): stamp(P, 5 if cfg.get('mid') else 4)
    stamp(P, 'p2')
    if mkext: return
    epilogue2(P)
    if cfg.get('mid'): stamp(P, 6)
```

```python
import sys, os
sys.path.insert(0, os.path.dirname(os.path.abspath(__file__)))
from common import *
import g1, attn
from g1 import vL16, vT
NAME = 'recurrent_scan__sliding_block__glu_gated_bilinear__prompt'

LDS_V = 65536; LDS_ONE = 81920; LDS_FB = 98304; LDS_EX = 65536
sFl, sWk = 's44', 's45'; sPm = 's[46:47]'
sQo = 's51'; sKo = ('s52', 's53', 's54'); sVo = 's55'; sOo = 's56'; sNb = 's57'
sHe = ('s58', 's59'); sT = 's62'; sXo = 's63'; sSt = 's64'; sHl = ('s65', 's66'); sOi = 's78'; sFA = 's80'
sU = ('s82', 's83', 's84', 's85', 's86', 's87')
sN = 's[60:61]'
vWdD = 13; vRA = 17; vFl = 21; vPq, vPh, vPo = 22, 23, 24; vLn = 25
vFd = 188; vPd = 190
A = attn.R
A.D0, A.D1, A.A0, A.A1 = 32, 48, 64, 80
A.N = 64; A.S = 96; A.O = 128; A.P = 160; A.PA = 168; A.VA = 160; A.J = 176; A.M = 178; A.PM = 180
A.LDS_V = LDS_V; A.LDS_ONE = LDS_ONE
A.sNb = sNb; A.sKo = sKo; A.sQo = sQo; A.sVo = sVo; A.sOo = sOo
aW = 128
def hreg(u):
    if u < 2: return ('a', 224 + 16*u)
    if u < 6: return ('v', 192 + 16*(u - 2))
    return ('a', 16*(u - 6))
def rg(kind, b, n): return vr(b, n) if kind == 'v' else ar(b, n)
def slot(u):
    if u < 8: return (0, (u & 3) * 4096)
    if u < 12: return (1, (u - 8) * 4096)
    return (0, (u - 12) * 4096)
vF = 32; vWF = 96; vE = 112; vXF = 128; vX = 144; vRs = 152; vAd = 154; vSx = 160; aO = 128

def wdma(u):
    reg, off = slot(u)
    r = []
    if u == 6: r += mk(f's_lshl_b32 {sT}, {s.w}, 16\ns_add_u32 {sWk}, {sWk}, {sT}\ns_add_u32 {sWk}, {sWk}, {36*16384}')
    r += mk(f's_add_u32 m0, {sFA}, {reg*LDS_FB + off}')
    r += mk([f'buffer_load_dwordx4 v{vWdD+j}, {sWD}, {sWk} offen offset:{1024*j} lds' for j in range(4)], f'w{u}')
    r += mk(f's_add_u32 {sWk}, {sWk}, 32768')
    return r
def wread(u, ks, kind, base):
    reg, off = slot(u)
    return [[f'ds_read_b64_tr_b16 {rg(kind, base + 4*c + 2*j, 2)}, v{vRA + 2*reg + c} offset:{off + 2048*ks + 1024*j}' for j in range(2)] for c in range(2)]
def stage(u):
    return [waitvm(f'w{u}')] + mk([wread(u, ks, 'a', aW + 16*u + 8*ks) for ks in range(2)], f'r{u}')
def hload(u):
    kind, b = hreg(u)
    so = sHe if u < 6 else sHl
    r = mk([f'buffer_load_dwordx4 {rg(kind, b + 8*ks + 4*t, 4)}, v{vL16}, {sWS}, {so[t]} offen offset:{2048*(u & 1) + 1024*ks} sc1'
            for ks in range(2) for t in range(2)])
    if u & 1: r += mk([f's_add_u32 {so[t]}, {so[t]}, 4096' for t in range(2)])
    return r
def publish(base, tag):
    return mk(f's_add_u32 {sFl}, {sFl}, 0x20000') + [waitvm(tag)] + mk(f'buffer_store_dwordx2 {vr(vFd, 2)}, v{vFl}, {sWS}, {sFl} offen sc1')
def poll(reg, base):
    return mk(f'buffer_load_dwordx2 {vr(vPd, 2)}, v{reg}, {sWS}, 0 offen sc1')
def check(cold, name, reg, base):
    cold.add([forget()])
    cold(f'''L_{name}_retry:
    s_sub_u32 {s.spin}, {s.spin}, 1
    s_cmp_le_i32 {s.spin}, 0
    s_cbranch_scc1 L_{name}_ok''')
    cold.add(poll(reg, base))
    cold(f's_waitcnt vmcnt(0)\ns_branch L_{name}_chk')
    return mk(f'''L_{name}_chk:
    v_cmp_ne_u64 {sPm}, {sN}, {vr(vPd, 2)}
    s_cmp_lg_u64 {sPm}, 0
    s_cbranch_scc1 L_{name}_retry
    L_{name}_ok:''')

def warm():
    return mk(f'''s_lshr_b32 {sU[0]}, s2, 3
    s_lshl2_add_u32 {sU[0]}, {sU[0]}, {s.w}
    s_mul_i32 {sU[1]}, {sU[0]}, 14336
    s_add_u32 {sU[2]}, {sU[1]}, 8192
    s_lshl_b32 {sU[0]}, {sU[0]}, 12
    v_lshlrev_b32 v{vLn}, 7, v0
    v_lshlrev_b32 v35, 6, v0
    buffer_load_dword v2, v{vLn}, {sWD}, {sU[1]} offen
    buffer_load_dword v3, v{vLn}, {sWD}, {sU[2]} offen
    buffer_load_dword v4, v35, {sWO}, {sU[0]} offen''')

def setup_d():
    hi, lo, a, b, c, d = sU
    t = vT
    r = f'''s_and_b32 {hi}, s2, 7
    s_lshr_b32 {lo}, s2, 6
    s_lshl2_add_u32 {hi}, {hi}, {lo}
    s_bfe_u32 {lo}, s2, 0x30003
    s_lshl_b32 {sFA}, {s.w}, 14
    s_mul_i32 {sWk}, {s.w}, {12*16384}
    s_lshl2_add_u32 {sFl}, s2, {s.w}
    s_lshl_b32 {sFl}, {sFl}, 7
    s_lshl_b32 {a}, {lo}, 7
    v_lshrrev_b32 v{vWdD+1}, 3, v0
    v_and_b32 v{vWdD+2}, 7, v0
    v_bfe_u32 v{vWdD+3}, v0, 4, 1
    v_lshlrev_b32 v{vWdD+3}, 2, v{vWdD+3}
    v_xor_b32 v{vWdD+2}, v{vWdD+2}, v{vWdD+3}
    v_lshlrev_b32 v{vWdD+2}, 4, v{vWdD+2}
    v_lshl_add_u32 v{vWdD+2}, v{vWdD+1}, 10, v{vWdD+2}
    v_add_u32 v{vWdD}, {a}, v{vWdD+2}
    v_add_u32 v{vWdD+1}, 7168, v{vWdD}
    v_add_u32 v{vWdD+2}, {2*7168}, v{vWdD}
    v_add_u32 v{vWdD+3}, {3*7168}, v{vWdD}
    v_bfe_u32 v{vRA+1}, v0, 4, 1
    v_bfe_u32 v{vRA+2}, v0, 1, 1
    v_lshl_add_u32 v{vRA+2}, v{vRA+1}, 1, v{vRA+2}
    v_bfe_u32 v{vRA+1}, v0, 3, 1
    v_xor_b32 v{vRA+1}, {s.ch}, v{vRA+1}
    v_lshl_add_u32 v{vRA+2}, v{vRA+1}, 2, v{vRA+2}
    v_and_b32 v{vRA+1}, 1, v0
    v_lshlrev_b32 v{vRA+1}, 3, v{vRA+1}
    v_lshl_add_u32 v{vRA+2}, v{vRA+2}, 4, v{vRA+1}
    v_bfe_u32 v{vRA+1}, v0, 2, 2
    v_lshl_add_u32 v{vRA+2}, v{vRA+1}, 7, v{vRA+2}
    v_lshrrev_b32 v{vRA+1}, 5, v0
    v_lshl_add_u32 v{vRA+2}, v{vRA+1}, 9, v{vRA+2}
    v_add_u32 v{vRA}, {sFA}, v{vRA+2}
    v_xor_b32 v{vRA+1}, 64, v{vRA}
    v_add_u32 v{vRA+2}, {LDS_FB}, v{vRA}
    v_add_u32 v{vRA+3}, {LDS_FB}, v{vRA+1}
    v_cmp_eq_u32 {sPm}, 0, v0
    v_mov_b32 v{vFl}, 0x40000000
    s_lshl_b32 {a}, {s.w}, 1
    s_sub_u32 {sNb}, 8, {a}
    v_cndmask_b32 v{vFl}, v{vFl}, 0, {sPm}
    s_lshl3_add_u32 {a}, {lo}, {a}
    s_lshl_b32 {sOo}, {a}, 5
    s_add_u32 {sOo}, {sOo}, {hi}
    s_lshl_b32 {sOo}, {sOo}, 10
    s_add_u32 {sOo}, {sOo}, {WS_O}
    s_lshl_b32 {sVo}, {hi}, 6
    s_add_u32 {sQo}, {sVo}, {a}
    s_lshl_b32 {sQo}, {sQo}, 10
    s_add_u32 {sQo}, {sQo}, {WS_QKV}
    s_add_u32 {sKo[0]}, {sQo}, {32*65536 - 8*1024}
    s_add_u32 {sKo[1]}, {sKo[0]}, 4096
    s_add_u32 {sKo[2]}, {sKo[0]}, 8192
    s_lshl1_add_u32 {a}, {lo}, {s.w}
    s_sub_u32 {a}, {a}, 2
    s_max_i32 {a}, {a}, 0
    s_lshl2_add_u32 {sVo}, {a}, {sVo}
    s_lshl_b32 {sVo}, {sVo}, 10
    s_add_u32 {sVo}, {sVo}, {WS_QKV + 64*65536}
    s_lshl1_add_u32 {a}, {hi}, {s.th}
    s_xor_b32 {b}, {a}, 1
    s_mul_i32 {sHe[0]}, {a}, {112*1024}
    s_mul_i32 {sHe[1]}, {b}, {112*1024}
    s_mul_i32 {b}, {s.w}, {12*1024}
    s_add_u32 {b}, {b}, {WS_H}
    s_add_u32 {sHe[0]}, {sHe[0]}, {b}
    s_add_u32 {sHe[1]}, {sHe[1]}, {b}
    s_lshl_b32 {b}, {s.w}, 12
    s_add_u32 {b}, {b}, {48*1024}
    s_add_u32 {sHl[0]}, {sHe[0]}, {b}
    s_add_u32 {sHl[1]}, {sHe[1]}, {b}
    s_lshl1_add_u32 {sOi}, {a}, {s.ch}
    s_lshl_b32 {sOi}, {sOi}, 14
    s_add_u32 {sOi}, {sOi}, {WS_O}
    s_lshl_b32 {sSt}, {a}, 9
    s_add_u32 {sSt}, {sSt}, {WS_STATS}
    s_lshl_b32 {sXo}, {a}, 15
    s_lshl1_add_u32 {a}, {lo}, {s.ch}
    s_lshl_b32 {a}, {a}, 6
    s_add_u32 {sXo}, {sXo}, {a}'''
    return mk(r)

def setup_polls():
    hi, lo, a, b, c, d = sU
    x, y = vPd, vPd + 1
    r = f'''s_lshr_b32 {a}, {hi}, 2
    s_mul_i32 {b}, {a}, 43
    s_lshr_b32 {b}, {b}, 7
    s_mul_i32 {c}, {b}, 190
    s_lshl_b32 {d}, {a}, 6
    s_sub_u32 {c}, {d}, {c}
    v_mov_b32 v{vPq}, {c}
    s_add_u32 {b}, {a}, 8
    s_mul_i32 {b}, {b}, 43
    s_lshr_b32 {b}, {b}, 7
    s_mul_i32 {c}, {b}, 190
    s_add_u32 {d}, {d}, 512
    s_sub_u32 {c}, {d}, {c}
    s_lshl1_add_u32 {b}, {b}, 184
    s_cmp_lt_u32 {a}, 4
    s_cselect_b32 {c}, {c}, {b}
    v_mov_b32 v{x}, {c}
    s_add_u32 {b}, {a}, 16
    s_mul_i32 {b}, {b}, 43
    s_lshr_b32 {b}, {b}, 7
    s_lshl1_add_u32 {b}, {b}, 184
    v_mov_b32 v{y}, {b}
    v_bfe_u32 v{vPo}, v0, 3, 2
    v_cmp_eq_u32 {sPm}, 1, v{vPo}
    s_lshl_b32 {a}, {lo}, 1
    s_sub_u32 {a}, {a}, 2
    v_cndmask_b32 v{vPq}, v{vPq}, v{x}, {sPm}
    v_cmp_eq_u32 {sPm}, 2, v{vPo}
    v_bfe_u32 v{x}, v0, 1, 2
    v_add_u32 v{vPh}, {a}, v{x}
    v_cndmask_b32 v{vPq}, v{vPq}, v{y}, {sPm}
    v_max_i32 v{vPh}, 0, v{vPh}
    v_lshrrev_b32 v{y}, 3, v{vPh}
    v_add_u32 v{vPq}, v{vPq}, v{y}
    v_and_b32 v{vPh}, 7, v{vPh}
    v_lshl_add_u32 v{vPq}, v{vPh}, 3, v{vPq}
    v_and_b32 v{y}, 1, v0
    v_lshl_add_u32 v{vPq}, v{vPq}, 2, v{y}
    s_and_b32 {a}, {hi}, 2
    v_add_u32 v{vPq}, {a}, v{vPq}
    s_lshr_b32 {a}, {hi}, 4
    s_bfe_u32 {b}, {hi}, 0x30001
    s_lshl3_add_u32 {a}, {b}, {a}
    s_lshl1_add_u32 {a}, {s.w}, {a}
    s_and_b32 {b}, {hi}, 1
    s_lshl2_add_u32 {a}, {a}, {b}
    v_lshlrev_b32 v{x}, 8, v{x}
    v_lshl_add_u32 v{x}, v{y}, 1, v{x}
    v_add_u32 v{vPh}, {a}, v{x}
    v_cmp_eq_u32 {sPm}, 3, v{vPo}
    v_bfe_u32 v{x}, v0, 2, 2
    v_and_b32 v{y}, 3, v0
    v_cndmask_b32 v{vPq}, v{vPq}, v{vPh}, {sPm}
    s_mov_b32 {c}, {WS_FLAGQ}
    s_mov_b32 {d}, {WS_FLAGH}
    v_lshl_add_u32 v{vPq}, v{vPq}, 7, {c}
    v_lshl_add_u32 v{vPh}, v{vPh}, 7, {d}
    v_lshl_add_u32 v{x}, v{y}, 6, v{x}
    s_lshr_b32 {a}, {hi}, 2
    s_lshl_b32 {a}, {a}, 1
    s_add_u32 {a}, {a}, {s.ch}
    s_lshl_b32 {a}, {a}, 4
    s_and_b32 {b}, {hi}, 3
    s_add_u32 {a}, {a}, {b}
    s_add_u32 {a}, {a}, {WS_FLAGO // 128}
    v_lshl_add_u32 v{x}, v{x}, 2, {a}
    v_lshlrev_b32 v{vPo}, 7, v{x}'''
    return mk(r)

def setup_att():
    a = sU[2]
    x, y, z = A.PM, A.PM + 1, A.PM + 2
    r = f'''v_lshrrev_b32 v{x}, 5, v0
    v_and_b32 v{y}, 15, v0
    v_lshlrev_b32 v{y}, 3, v{y}
    v_lshl_add_u32 v{y}, v{x}, 7, v{y}
    s_lshl_b32 {a}, {s.w}, 11
    s_add_u32 {a}, {a}, {LDS_V}
    v_add_u32 v{z}, {a}, v{y}
    v_xor_b32 v{y}, {LDS_ONE + 128}, v{y}
    v_and_b32 v{A.J}, 16, v0
    v_cmp_eq_u32 s[86:87], 0, v{A.J}
    v_mov_b32 v{A.J+1}, 1024
    v_and_b32 v{A.J}, 31, v0
    v_cndmask_b32 v{A.VA}, v{y}, v{z}, s[86:87]
    v_cndmask_b32 v{z}, 0, v{A.J+1}, s[86:87]
    v_lshlrev_b32 v{x}, 2, v{x}
    v_sub_u32 v{A.J}, v{A.J}, v{x}
    v_mov_b32 v{A.J+1}, 0xffff
    v_mov_b32 v{A.M}, {attn.NINF}
    v_mov_b32 v{A.M+1}, {attn.NINF}'''.split('\n')
    r += [f'v_add_u32 v{A.VA+b}, v{A.VA+b-1}, v{z}' for b in range(1, 10)]
    r += [f'v_mov_b32 v{A.PM+4+k}, 0x3f803f80' for k in range(4)]
    r += [f'v_add_u32 v{A.PM+3}, {LDS_ONE}, v{vL16}']
    return mk(r)

def kqv():
    ld = lambda b: mk(f'buffer_load_dwordx4 {ar(A.aK + 4*b, 4)}, v{vL16}, {sWS}, {sKo[b >> 2]} offen offset:{1024*(b & 3)} sc1')
    r = mk([f'buffer_load_dwordx4 {ar(A.aQ + 4*t, 4)}, v{vL16}, {sWS}, {sQo} offen offset:{1024*t} sc1' for t in range(2)])
    r += mk(f's_add_u32 m0, {s.mx}, {LDS_V}')
    for b in (8, 0, 9, 1, 2): r += ld(b)
    r += mk([f'buffer_load_dwordx4 v{vL16}, {sWS}, {sVo} offen offset:{1024*j} sc1 lds' for j in range(4)], 'V')
    for b in (3, 4, 5, 6, 7): r += ld(b)
    return r

class P2Ext:
    def __init__(self, sfx, cold, cfg):
        self.sfx, self.cold, self.cfg = sfx, cold, cfg
        self.dq = Pool(1, period=cfg.get('per2', 64), burst=cfg.get('burst2', 3), maxds=2)
        self.su = Pool(); self.su2 = Pool(); self.su3 = Pool()
        self.fl = Pool()
    def pools(self, bg): return (self.fl, self.dq, bg, self.su, self.su2, self.su3)
    def flush(self, P, pool, name):
        r = pool.rest()
        if r and self.cfg.get('v'): print('flush', self.sfx, name, len(r))
        P.add(r)
    def at(self, P, i, st, bg):
        cfg, dq, su = self.cfg, self.dq, self.su
        k = 4*i + st
        if k == 0 and not cfg.get('nowarm'): self.fl.put(warm())
        if k == 2:
            assert not self.fl.q
            su.put(setup_d())
        if k == 12:
            self.flush(P, bg, 'bg')
            su.put(f'v_mov_b32 v{vFd}, {s.n0}\nv_mov_b32 v{vFd+1}, {s.n1}')
        if k == 15:
            self.flush(P, su, 'su')
            self.su2.put(setup_polls())
            for u in range(4): dq.put(wdma(u))
        if k == cfg.get('pubq', 17): self.fl.put(publish(WS_FLAGQ, 'st1'))
        if k == 20:
            dq.put(stage(0)); dq.put(stage(1)); dq.put([delay(96), waitlg(('r0', 'r1'))]); dq.put(wdma(4)); dq.put(wdma(5))
        if k == cfg.get('pollq', 23):
            self.flush(P, self.su2, 'su2')
            self.fl.put(poll(vPq, WS_FLAGQ)); self.su3.put(setup_att())
        if k == 24:
            dq.put(stage(2)); dq.put(stage(3))
        if k == cfg.get('chkq', 27):
            self.flush(P, self.fl, 'fl')
            dq.put(check(self.cold, 'q' + self.sfx, vPq, WS_FLAGQ))
            T = Prog(); stamp(T, 'chkq'); dq.put(T.L)
            dq.burst = 8
            dq.put(kqv()); dq.put([waitlg(('r2', 'r3'))]); dq.put(wdma(6))
            if cfg.get('w7', 1): dq.put(wdma(7))
        if k == 31:
            self.flush(P, self.su3, 'su3')
            P(f'ds_write_b128 v{A.PM+3}, {vr(A.PM+4, 4)}')
            P(f's_bfe_u32 {sT}, s2, 0x30003\ns_cmp_eq_u32 {sT}, 0\ns_cselect_b64 vcc, -1, 0')
    def done(self, P):
        self.flush(P, self.fl, 'fl'); self.flush(P, self.dq, 'dq-end')

class AttBg:
    def __init__(self, cold, cfg):
        self.cold, self.cfg = cold, cfg
        self.q = Pool(cfg.get('vm3', 1), period=cfg.get('per3', 64), burst=cfg.get('burst3', 3), maxds=3)
        self.fl = Pool()
    def gap(self, P, where):
        q, cfg = self.q, self.cfg
        if where == ('p1', 0):
            if not cfg.get('w7', 1): q.put(wdma(7))
            for u in (8, 9): q.put(wdma(u))
            q.put(hload(0)); q.put(hload(1))
            q.put(stage(4)); q.put(stage(5))
            for u in (10, 11): q.put(wdma(u))
            q.put([delay(96), waitlg(('r4', 'r5'))])
            for u in (2, 3): q.put(hload(u))
            for u in (12, 13): q.put(wdma(u))
            for u in (4, 5): q.put(hload(u))
        if where == ('p1', cfg.get('pubh', 12)): self.fl.put(publish(WS_FLAGH, 'st2'))
        if where == ('p2', cfg.get('pollh', 40)): self.fl.put(poll(vPh, WS_FLAGH))
        P.add(self.fl.take(99, True, P.now()))
        P.add(q.take(20, True, P.now()))

def mf(d, a, b, first):
    return f'v_mfma_f32_32x32x16_bf16 {vr(d, 16)}, {a}, {b}, {"0" if first else vr(d, 16)}'

def dstage(P, cold, cfg):
    t = vT
    dq = Pool(1, period=cfg.get('per4', 64), burst=cfg.get('burst4', 6))
    fl = Pool(); su = Pool()
    P.add(check(cold, 'h', vPh, WS_FLAGH))
    stamp(P, 'chkh')
    for u in range(6, 10): dq.put(hload(u))
    wo = []
    for q in range(4):
        off = (8192 + 4096*q) if q < 2 else (LDS_FB + 4096*(q - 2))
        g = mk(f's_add_u32 m0, {sFA}, {off}\ns_lshl_b32 {sT}, {s.w}, 17\ns_add_u32 {sT}, {sT}, {q*32768}')
        g += mk([f'buffer_load_dwordx4 v{vWdD+j}, {sWO}, {sT} offen offset:{1024*j} lds' for j in range(4)], 'wo')
        wo.append(g)
    xo, oo, rw, rr, wa = vAd, vAd + 1, vAd + 2, t, t + 4
    su.put(f'''v_and_b32 v{vRs}, 31, v0
    v_lshrrev_b32 v{vRs+1}, 5, v0
    v_lshlrev_b32 v{oo}, 10, v{vRs}
    v_lshl_add_u32 v{xo}, v{vRs+1}, 3, v{oo}
    v_lshl_add_u32 v{oo}, v{vRs+1}, 4, v{oo}
    v_lshlrev_b32 v{vRs}, 4, v{vRs}
    v_add_u32 v{rw}, {sFA}, v{vL16}
    v_add_u32 v{rw+1}, {LDS_FB}, v{rw}
    v_xor_b32 v{rr}, {16384}, v{rw}
    v_add_u32 v{rr}, {LDS_FB}, v{rr}
    v_xor_b32 v{rr+1}, {32768}, v{rw}
    v_add_u32 v{rr+1}, {LDS_FB}, v{rr+1}
    v_xor_b32 v{rr+2}, {49152}, v{rw}
    v_subrev_u32 v{wa}, {sFA}, v{vRA}
    v_lshl_add_u32 v{wa}, v{vRs+1}, 9, v{wa}
    s_lshl_b32 {sU[0]}, {s.ch}, 15
    v_add_u32 v{wa}, {sU[0]}, v{wa}
    v_xor_b32 v{wa+1}, 64, v{wa}
    v_add_u32 v{wa+2}, {LDS_FB}, v{wa}
    v_add_u32 v{wa+3}, {LDS_FB}, v{wa+1}''')
    xl = mk(f'buffer_load_dword v{vRs}, v{vRs}, {sWS}, {sSt} offen offset:4 sc1')
    xl += mk([f'buffer_load_dwordx2 {vr(vX + 2*g, 2)}, v{xo}, {sX}, {sXo} offen offset:{16*g}' for g in range(4)])
    olds = []
    for q in range(4):
        olds += mk([f'buffer_load_dwordx4 {ar(aO + 16*q + 4*j, 4)}, v{vL16}, {sWS}, {sOi} offen offset:{1024*j} sc1' for j in range(4)])
        if q < 3: olds += mk(f's_add_u32 {sOi}, {sOi}, 4096')
    for u in range(14):
        if u == 2:
            P.add(su.rest())
            for v in range(10, 14): dq.put(hload(v))
            dq.put(xl)
        if u == cfg.get('pubo', 5): fl.put(publish(WS_FLAGO, 'sto'))
        if u == 8: dq.put(wo[0]); dq.put(wo[1])
        if u == 10: dq.put(wo[2]); dq.put(wo[3])
        if u == cfg.get('pollo', 12): P.add(dq.rest()); fl.put(poll(vPo, WS_FLAGO))
        if u == 6: stamp(P, 'd1m')
        hk, hb = hreg(u)
        for ks in range(2):
            mfs, fixed = [], {}
            nu, nk = (u, 1) if ks == 0 else (u + 1, 0)
            rd = []
            if 6 <= nu < 14:
                if nk == 0: P.waitvm(f'w{nu}')
                rd = wread(nu, nk, 'v', vWF + 8*nk)
            for c in range(2):
                for tt in range(2):
                    if tt == 0 and rd: fixed[len(mfs)] = rd.pop(0)
                    a = ar(aW + 16*u + 8*ks + 4*c, 4) if u < 6 else vr(vWF + 8*ks + 4*c, 4)
                    mfs.append(mf(vF + 16*(2*c + tt), a, rg(hk, hb + 8*ks + 4*tt, 4), u == 0 and ks == 0))
            weave(P, mfs, fixed, (fl, dq, su), slack=0)
    P.add(fl.rest()); P.add(dq.rest())
    stamp(P, 'd1')
    P(f's_or_b32 {sT}, s2, {s.w}\ns_cmp_eq_u32 {sT}, 0\ns_cbranch_scc1 L_bump\nL_bump_back:')
    cold.add([forget()])
    cold(f'''L_bump:
    v_lshlrev_b32 v{vE}, 9, v0
    L_bump_again:''')
    for k in range(4):
        cold(f's_mov_b32 {sT}, {WS_FLAGQ + k*32768}\nbuffer_load_dwordx2 {vr(vE + 2 + 2*k, 2)}, v{vE}, {sWS}, {sT} offen sc1')
    cold(f'''v_cmp_ne_u64 s[82:83], {sN}, {vr(vE+2, 2)}
    v_cmp_ne_u64 s[84:85], {sN}, {vr(vE+4, 2)}
    v_cmp_ne_u64 s[86:87], {sN}, {vr(vE+6, 2)}
    v_cmp_ne_u64 {sPm}, {sN}, {vr(vE+8, 2)}
    s_or_b64 s[82:83], s[82:83], s[84:85]
    s_or_b64 s[86:87], s[86:87], {sPm}
    s_or_b64 s[82:83], s[82:83], s[86:87]
    s_cbranch_scc0 L_bump_go
    s_sub_u32 {s.spin}, {s.spin}, 1
    s_cmp_gt_i32 {s.spin}, 0
    s_cbranch_scc1 L_bump_again
    L_bump_go:
    buffer_store_dword v{vFd}, v{vFl}, {sWS}, 0 offen sc1
    s_waitcnt vmcnt(0)
    s_branch L_bump_back''')
    wr = [(rw + 1, 8192), (rw + 1, 12288), (rw, 0)]
    for j in (1, 2, 3):
        for q in range(4): P(f'ds_write_b128 v{wr[j-1][0]}, {vr(vF + 16*j + 4*q, 4)} offset:{wr[j-1][1] + 1024*q}')
    P.add(check(cold, 'o', vPo, WS_FLAGO))
    stamp(P, 'chko')
    P.waitvm('wo')
    P.add(olds)
    P.waitlg()
    P('s_barrier')
    for j in (1, 2, 3):
        for q in range(4): P(f'ds_read_b128 {vr(vF + 16*j + 4*q, 4)}, v{rr + j - 1} offset:{wr[j-1][1] + 1024*q}')
    def wor(k):
        src, kk = k >> 3, k & 7
        reg, off = (wa, 8192 + 2048*kk) if kk < 4 else (wa + 2, 2048*(kk - 4))
        return [[f'ds_read_b64_tr_b16 {vr(vWF + 8*(k & 1) + 4*c + 2*j, 2)}, v{reg + c} offset:{off + 16384*src + 512*j}' for j in range(2)] for c in range(2)]
    P.add(wor(0))
    bg = Pool()
    G = vF
    bg.put(f'v_mul_f32 v{vRs}, v{vRs}, v{vRs}\nv_mul_f32 v{vRs+1}, {f32(-LOG2E)}, v{vRs}')
    for g in range(8):
        bg.put([f'v_lshlrev_b32 v{vXF+2*g}, 16, v{vX+g}', f'v_and_b32 v{vXF+2*g+1}, 0xffff0000, v{vX+g}'])
    for k in range(1, 4):
        bg.put([f'v_add_f32 v{G+r}, v{G+r}, v{vF+16*k+r}' for r in range(16)])
    P.add(bg.q[:cfg.get('early', 50)]); del bg.q[:cfg.get('early', 50)]
    for r0 in range(0, 16, 4):
        rs = range(r0, r0 + 4)
        bg.put([f'v_mul_f32 v{vE+r}, v{vRs+1}, v{G+r}' for r in rs])
        bg.put([f'v_exp_f32 v{vE+r}, v{vE+r}' for r in rs])
        bg.put([f'v_mul_f32 v{G+r}, v{vRs}, v{G+r}' for r in rs])
        bg.put([f'v_add_f32 v{vE+r}, 1.0, v{vE+r}' for r in rs])
        bg.put([f'v_rcp_f32 v{vE+r}, v{vE+r}' for r in rs])
    bg.put([f'v_mul_f32 v{G+r}, v{G+r}, v{vE+r}' for r in range(16)])
    bg.put(f'''s_add_u32 {sT}, {s.mx}, {LDS_EX}
    v_add_u32 v{rw}, {sT}, v{vL16}
    v_xor_b32 v{rw+1}, 8192, v{rw}''')
    stamp(P, 'red')
    for k in range(16):
        rd = wor(k + 1) if k < 15 else []
        mfs, fixed = [], {}
        for c in range(2):
            if rd: fixed[len(mfs)] = rd.pop(0)
            mfs.append(mf(vSx + 16*c, vr(vWF + 8*(k & 1) + 4*c, 4), ar(aO + 4*k, 4), k == 0))
        weave(P, mfs, fixed, (bg,), slack=0)
    P.add(bg.rest())
    stamp(P, 'd2')
    for q in range(4): P(f'ds_write_b128 v{rw}, {vr(vSx + 16 + 4*q, 4)} offset:{q*1024}')
    for r in range(16): P(f'v_fmac_f32 v{vXF+r}, v{vSx+r}, v{G+r}')
    P.waitlg()
    P('s_barrier')
    for q in range(4): P(f'ds_read_b128 {vr(vSx + 16 + 4*q, 4)}, v{rw+1} offset:{q*1024}')
    for g in range(2):
        for r in range(8*g, 8*g + 8): P(f'v_fmac_f32 v{vXF+r}, v{vSx+16+r}, v{G+r}')
        for k in range(4*g, 4*g + 4): P(f'v_cvt_pk_bf16_f32 v{vX+k}, v{vXF+2*k}, v{vXF+2*k+1}')
        for k in range(2): P(f'v_permlane32_swap_b32 v{vX+4*g+k}, v{vX+4*g+2+k}')
        P(f'buffer_store_dwordx4 {vr(vX + 4*g, 4)}, v{oo}, {sOUT}, {sXo} offen offset:{32*g}')
    stamp(P, 'out')

def build(cfg):
    P, cold = Prog(), Prog()
    g1.entry(P, 'L_end')
    for srd, off in ((sWO, 16), (sWD, 48), (sOUT, 56)): srd_load(P, srd, off)
    srd_const(P, sWO, 512*512*2); srd_const(P, sWD, 1792*512*2); srd_const(P, sOUT, 2048*512*2)
    g1.g1_body(P, cold, cfg, lambda sfx: P2Ext(sfx, cold, cfg))
    g1.epilogue2(P)
    stamp(P, 'e2')
    bg = AttBg(cold, cfg)
    attn.pass1(P, cold, [], bg)
    stamp(P, 'a1')
    attn.pass2(P, cold, bg)
    if cfg.get('v'): print('att rest', len(bg.fl.q), len(bg.q.q))
    P.add(bg.fl.rest()); P.add(bg.q.rest())
    stamp(P, 'a2')
    dstage(P, cold, cfg)
    stamp_end(P)
    P('L_end:\ns_endpgm')
    P.add(cold.L)
    L = finish(P.L)
    return L

if __name__ == '__main__':
    cfg = {}
    for a in sys.argv[2:]:
        k, _, v = a.partition('=')
        if k == 'st':
            STAMPS[0] = True; SEL.extend(v.split(','))
        elif k == 'dbg':
            STAMPS[0] = 'dbg'; SEL.extend(v.split(','))
        else: cfg[k] = int(v) if v else 1
    L = build(cfg)
    print('instructions', sum(1 for x in L if x.states()), 'estimate', estimate(L), 'nops', sum(1 for x in L if x.cls == 'nop'))
    src = '; @launch grid=(256,1,1) block=(256,1,1) lds=163840\n.amdgcn_target "amdgcn-amd-amdhsa--gfx950"\n' + kernel_text(NAME + '_kernel', L)
    open(sys.argv[1], 'w').write(src)
```

```python
from asmlib import *

WS_EPOCH = 0x0
WS_STATS = 0x10000
WS_FLAGQ = 0x20000
WS_FLAGH = 0x40000
WS_FLAGO = 0x60000
WS_QKV   = 0x100000
WS_O     = 0x700000
WS_H     = 0x900000
WS_SIZE  = 0x1000000

sX, sQ, sU1, sU2, sG, sU, sWS, sWD, sWO, sOUT, sDBG = (f's[{i}:{i+3}]' for i in range(4, 48, 4))
S = {}
def _s(names, start):
    for i, n in enumerate(names.split()):
        S[n] = f's{start + i}'
_s('w th ch rb cg isb str64 kc kx k0 k1 k2 n0 n1 t0 t1 t2 t3 t4 t5 qo0 qo1 qo2 qo3 qo4 qo5 ho0 ho1 ho2 ho3 fac '
   'mx mw spin', 48)
S['m0a'] = 's[82:83]'; S['m0b'] = 's[84:85]'; S['m0c'] = 's[86:87]'
class _NS:
    def __init__(self, d): self.__dict__.update(d)
s = _NS(S)

def vr(b, n=1):
    return f'v{b}' if n == 1 else f'v[{b}:{b+n-1}]'
def ar(b, n=1):
    return f'a{b}' if n == 1 else f'a[{b}:{b+n-1}]'

LOG2E = 1.4426950408889634
import struct
def f32(x):
    return '0x%08x' % struct.unpack('<I', struct.pack('<f', x))[0]

def srd_const(P, srd, size):
    b = int(srd[2:srd.index(':')])
    P(f's_mov_b32 s{b+2}, {hex(size)}')
    P(f's_mov_b32 s{b+3}, 0x20000')
def srd_load(P, srd, off):
    b = int(srd[2:srd.index(':')])
    P(f's_load_dwordx2 s[{b}:{b+1}], s[0:1], {off}')

KD = '''.section .rodata,"a"
.p2align 6
.amdhsa_kernel {name}
  .amdhsa_next_free_vgpr 512
  .amdhsa_next_free_sgpr 102
  .amdhsa_accum_offset 256
  .amdhsa_group_segment_fixed_size 0
  .amdhsa_kernarg_size 80
  .amdhsa_user_sgpr_count 2
  .amdhsa_user_sgpr_kernarg_segment_ptr 1
  .amdhsa_system_sgpr_workgroup_id_x 1
  .amdhsa_float_denorm_mode_32 3
.end_amdhsa_kernel
'''
def kernel_text(name, L):
    return (f'.text\n.globl {name}\n.p2align 8\n.type {name},@function\n{name}:\n' + text(L) + KD.format(name=name))

STAMPS = [False]
aStamp = None
def stamp_begin(P):
    if not STAMPS[0]: return
    P('s_memtime s[98:99]\ns_memrealtime s[100:101]')
def stamp_keep(P):
    if not STAMPS[0]: return
    P('s_mov_b32 s3, s98\ns_mov_b32 s99, s100')
SEL = []
def stamp(P, idx):
    if not STAMPS[0]: return
    if isinstance(idx, str):
        if idx not in SEL: return
        idx = SEL.index(idx) + 1
    elif SEL: return
    if idx == 6: P('s_memtime s[100:101]')
    else: P(f's_memtime s[{86+2*idx}:{87+2*idx}]')
def stamp_end(P):
    if not STAMPS[0]: return
    P('s_waitcnt vmcnt(0) lgkmcnt(0)')
    P('s_mov_b32 s98, s100')
    P('s_memtime s[82:83]\ns_memrealtime s[84:85]\ns_waitcnt lgkmcnt(0)')
    if STAMPS[0] == 'dbg':
        P('s_load_dwordx2 s[44:45], s[0:1], 64\ns_mov_b32 s46, 256\ns_mov_b32 s47, 0x20000')
        seq = ['s3', 's88', 's90', 's92', 's94', 's96', 's98', 's82']
        for k in range(7): P(f's_sub_u32 s86, {seq[k+1]}, {seq[k]}\nv_mov_b32 v{16+k}, s86')
        P('s_sub_u32 s86, s84, s99\nv_mov_b32 v23, s86')
        P(f's_and_b32 s86, s2, 127\ns_or_b32 s86, s86, {s.w}\ns_lshr_b32 s87, s2, 2\nv_mov_b32 v2, 0\ns_waitcnt lgkmcnt(0)')
        P('s_cmp_eq_u32 s86, 0\ns_cbranch_scc0 L_nodbg')
        for k in range(2): P(f'buffer_store_dwordx4 v[{16+4*k}:{19+4*k}], v2, s[44:47], s87 offen offset:{16*k}')
        P('L_nodbg:')
        return
    for k in range(3): P(f'v_readlane_b32 s{85+k}, v25, {k}')
    regs = ['s3', 's88', 's90', 's92', 's94', 's96', 's98', 's82', 's85', 's86', 's87'] + ['0'] * 3 + ['s99', 's84']
    for k, r in enumerate(regs): P(f'v_mov_b32 v{16+k}, {r}')
    P(f's_lshl2_add_u32 s82, s2, {s.w}\ns_lshl_b32 s82, s82, 7\ns_add_u32 s82, s82, 0x80000\nv_mov_b32 v2, 0')
    for k in range(4): P(f'buffer_store_dwordx4 v[{16+4*k}:{19+4*k}], v2, {sWS}, s82 offen offset:{16*k}')
```

```python
import sys, os
sys.path.insert(0, os.path.dirname(os.path.abspath(__file__)))
from common import *
import g1, attn
from g1 import vL16, vT
NAME = 'recurrent_scan__sliding_block__glu_gated_bilinear__prompt'

LDS_V = 65536; LDS_ONE = 81920; LDS_FB = 98304; LDS_EX = 65536
sFl, sWk = 's44', 's45'; sPm = 's[46:47]'
sQo = 's51'; sKo = ('s52', 's53', 's54'); sVo = 's55'; sOo = 's56'; sNb = 's57'
sHe = ('s58', 's59'); sT = 's62'; sXo = 's63'; sSt = 's64'; sHl = ('s65', 's66'); sOi = 's78'; sFA = 's80'
sU = ('s82', 's83', 's84', 's85', 's86', 's87')
sN = 's[60:61]'
vWdD = 13; vRA = 17; vFl = 21; vPq, vPh, vPo = 22, 23, 24; vLn = 25
vFd = 188; vPd = 190
A = attn.R
A.D0, A.D1, A.A0, A.A1 = 32, 48, 64, 80
A.N = 64; A.S = 96; A.O = 128; A.P = 160; A.PA = 168; A.VA = 160; A.J = 176; A.M = 178; A.PM = 180
A.LDS_V = LDS_V; A.LDS_ONE = LDS_ONE
A.sNb = sNb; A.sKo = sKo; A.sQo = sQo; A.sVo = sVo; A.sOo = sOo
aW = 128
def hreg(u):
    if u < 2: return ('a', 224 + 16*u)
    if u < 6: return ('v', 192 + 16*(u - 2))
    return ('a', 16*(u - 6))
def rg(kind, b, n): return vr(b, n) if kind == 'v' else ar(b, n)
def slot(u):
    if u < 8: return (0, (u & 3) * 4096)
    if u < 12: return (1, (u - 8) * 4096)
    return (0, (u - 12) * 4096)
vF = 32; vWF = 96; vE = 112; vXF = 128; vX = 144; vRs = 152; vAd = 154; vSx = 160; aO = 128

def wdma(u):
    reg, off = slot(u)
    r = []
    if u == 6: r += mk(f's_lshl_b32 {sT}, {s.w}, 16\ns_add_u32 {sWk}, {sWk}, {sT}\ns_add_u32 {sWk}, {sWk}, {36*16384}')
    r += mk(f's_add_u32 m0, {sFA}, {reg*LDS_FB + off}')
    r += mk([f'buffer_load_dwordx4 v{vWdD+j}, {sWD}, {sWk} offen offset:{1024*j} lds' for j in range(4)], f'w{u}')
    r += mk(f's_add_u32 {sWk}, {sWk}, 32768')
    return r
def wread(u, ks, kind, base):
    reg, off = slot(u)
    return [[f'ds_read_b64_tr_b16 {rg(kind, base + 4*c + 2*j, 2)}, v{vRA + 2*reg + c} offset:{off + 2048*ks + 1024*j}' for j in range(2)] for c in range(2)]
def stage(u):
    return [waitvm(f'w{u}')] + mk([wread(u, ks, 'a', aW + 16*u + 8*ks) for ks in range(2)], f'r{u}')
def hload(u):
    kind, b = hreg(u)
    so = sHe if u < 6 else sHl
    r = mk([f'buffer_load_dwordx4 {rg(kind, b + 8*ks + 4*t, 4)}, v{vL16}, {sWS}, {so[t]} offen offset:{2048*(u & 1) + 1024*ks} sc1'
            for ks in range(2) for t in range(2)])
    if u & 1: r += mk([f's_add_u32 {so[t]}, {so[t]}, 4096' for t in range(2)])
    return r
def publish(base, tag):
    return mk(f's_add_u32 {sFl}, {sFl}, 0x20000') + [waitvm(tag)] + mk(f'buffer_store_dwordx2 {vr(vFd, 2)}, v{vFl}, {sWS}, {sFl} offen sc1')
def poll(reg, base):
    return mk(f'buffer_load_dwordx2 {vr(vPd, 2)}, v{reg}, {sWS}, 0 offen sc1')
def check(cold, name, reg, base):
    cold.add([forget()])
    cold(f'''L_{name}_retry:
    s_sub_u32 {s.spin}, {s.spin}, 1
    s_cmp_le_i32 {s.spin}, 0
    s_cbranch_scc1 L_{name}_ok''')
    cold.add(poll(reg, base))
    cold(f's_waitcnt vmcnt(0)\ns_branch L_{name}_chk')
    return mk(f'''L_{name}_chk:
    v_cmp_ne_u64 {sPm}, {sN}, {vr(vPd, 2)}
    s_cmp_lg_u64 {sPm}, 0
    s_cbranch_scc1 L_{name}_retry
    L_{name}_ok:''')

def warm():
    return mk(f'''s_lshr_b32 {sU[0]}, s2, 3
    s_lshl2_add_u32 {sU[0]}, {sU[0]}, {s.w}
    s_mul_i32 {sU[1]}, {sU[0]}, 14336
    s_add_u32 {sU[2]}, {sU[1]}, 8192
    s_lshl_b32 {sU[0]}, {sU[0]}, 12
    v_lshlrev_b32 v{vLn}, 7, v0
    v_lshlrev_b32 v35, 6, v0
    buffer_load_dword v2, v{vLn}, {sWD}, {sU[1]} offen
    buffer_load_dword v3, v{vLn}, {sWD}, {sU[2]} offen
    buffer_load_dword v4, v35, {sWO}, {sU[0]} offen''')

def setup_d():
    hi, lo, a, b, c, d = sU
    t = vT
    r = f'''s_and_b32 {hi}, s2, 7
    s_lshr_b32 {lo}, s2, 6
    s_lshl2_add_u32 {hi}, {hi}, {lo}
    s_bfe_u32 {lo}, s2, 0x30003
    s_lshl_b32 {sFA}, {s.w}, 14
    s_mul_i32 {sWk}, {s.w}, {12*16384}
    s_lshl2_add_u32 {sFl}, s2, {s.w}
    s_lshl_b32 {sFl}, {sFl}, 7
    s_lshl_b32 {a}, {lo}, 7
    v_lshrrev_b32 v{vWdD+1}, 3, v0
    v_and_b32 v{vWdD+2}, 7, v0
    v_bfe_u32 v{vWdD+3}, v0, 4, 1
    v_lshlrev_b32 v{vWdD+3}, 2, v{vWdD+3}
    v_xor_b32 v{vWdD+2}, v{vWdD+2}, v{vWdD+3}
    v_lshlrev_b32 v{vWdD+2}, 4, v{vWdD+2}
    v_lshl_add_u32 v{vWdD+2}, v{vWdD+1}, 10, v{vWdD+2}
    v_add_u32 v{vWdD}, {a}, v{vWdD+2}
    v_add_u32 v{vWdD+1}, 7168, v{vWdD}
    v_add_u32 v{vWdD+2}, {2*7168}, v{vWdD}
    v_add_u32 v{vWdD+3}, {3*7168}, v{vWdD}
    v_bfe_u32 v{vRA+1}, v0, 4, 1
    v_bfe_u32 v{vRA+2}, v0, 1, 1
    v_lshl_add_u32 v{vRA+2}, v{vRA+1}, 1, v{vRA+2}
    v_bfe_u32 v{vRA+1}, v0, 3, 1
    v_xor_b32 v{vRA+1}, {s.ch}, v{vRA+1}
    v_lshl_add_u32 v{vRA+2}, v{vRA+1}, 2, v{vRA+2}
    v_and_b32 v{vRA+1}, 1, v0
    v_lshlrev_b32 v{vRA+1}, 3, v{vRA+1}
    v_lshl_add_u32 v{vRA+2}, v{vRA+2}, 4, v{vRA+1}
    v_bfe_u32 v{vRA+1}, v0, 2, 2
    v_lshl_add_u32 v{vRA+2}, v{vRA+1}, 7, v{vRA+2}
    v_lshrrev_b32 v{vRA+1}, 5, v0
    v_lshl_add_u32 v{vRA+2}, v{vRA+1}, 9, v{vRA+2}
    v_add_u32 v{vRA}, {sFA}, v{vRA+2}
    v_xor_b32 v{vRA+1}, 64, v{vRA}
    v_add_u32 v{vRA+2}, {LDS_FB}, v{vRA}
    v_add_u32 v{vRA+3}, {LDS_FB}, v{vRA+1}
    v_cmp_eq_u32 {sPm}, 0, v0
    v_mov_b32 v{vFl}, 0x40000000
    s_lshl_b32 {a}, {s.w}, 1
    s_sub_u32 {sNb}, 8, {a}
    v_cndmask_b32 v{vFl}, v{vFl}, 0, {sPm}
    s_lshl3_add_u32 {a}, {lo}, {a}
    s_lshl_b32 {sOo}, {a}, 5
    s_add_u32 {sOo}, {sOo}, {hi}
    s_lshl_b32 {sOo}, {sOo}, 10
    s_add_u32 {sOo}, {sOo}, {WS_O}
    s_lshl_b32 {sVo}, {hi}, 6
    s_add_u32 {sQo}, {sVo}, {a}
    s_lshl_b32 {sQo}, {sQo}, 10
    s_add_u32 {sQo}, {sQo}, {WS_QKV}
    s_add_u32 {sKo[0]}, {sQo}, {32*65536 - 8*1024}
    s_add_u32 {sKo[1]}, {sKo[0]}, 4096
    s_add_u32 {sKo[2]}, {sKo[0]}, 8192
    s_lshl1_add_u32 {a}, {lo}, {s.w}
    s_sub_u32 {a}, {a}, 2
    s_max_i32 {a}, {a}, 0
    s_lshl2_add_u32 {sVo}, {a}, {sVo}
    s_lshl_b32 {sVo}, {sVo}, 10
    s_add_u32 {sVo}, {sVo}, {WS_QKV + 64*65536}
    s_lshl1_add_u32 {a}, {hi}, {s.th}
    s_xor_b32 {b}, {a}, 1
    s_mul_i32 {sHe[0]}, {a}, {112*1024}
    s_mul_i32 {sHe[1]}, {b}, {112*1024}
    s_mul_i32 {b}, {s.w}, {12*1024}
    s_add_u32 {b}, {b}, {WS_H}
    s_add_u32 {sHe[0]}, {sHe[0]}, {b}
    s_add_u32 {sHe[1]}, {sHe[1]}, {b}
    s_lshl_b32 {b}, {s.w}, 12
    s_add_u32 {b}, {b}, {48*1024}
    s_add_u32 {sHl[0]}, {sHe[0]}, {b}
    s_add_u32 {sHl[1]}, {sHe[1]}, {b}
    s_lshl1_add_u32 {sOi}, {a}, {s.ch}
    s_lshl_b32 {sOi}, {sOi}, 14
    s_add_u32 {sOi}, {sOi}, {WS_O}
    s_lshl_b32 {sSt}, {a}, 9
    s_add_u32 {sSt}, {sSt}, {WS_STATS}
    s_lshl_b32 {sXo}, {a}, 15
    s_lshl1_add_u32 {a}, {lo}, {s.ch}
    s_lshl_b32 {a}, {a}, 6
    s_add_u32 {sXo}, {sXo}, {a}'''
    return mk(r)

def setup_polls():
    hi, lo, a, b, c, d = sU
    x, y = vPd, vPd + 1
    r = f'''s_lshr_b32 {a}, {hi}, 2
    s_mul_i32 {b}, {a}, 43
    s_lshr_b32 {b}, {b}, 7
    s_mul_i32 {c}, {b}, 190
    s_lshl_b32 {d}, {a}, 6
    s_sub_u32 {c}, {d}, {c}
    v_mov_b32 v{vPq}, {c}
    s_add_u32 {b}, {a}, 8
    s_mul_i32 {b}, {b}, 43
    s_lshr_b32 {b}, {b}, 7
    s_mul_i32 {c}, {b}, 190
    s_add_u32 {d}, {d}, 512
    s_sub_u32 {c}, {d}, {c}
    s_lshl1_add_u32 {b}, {b}, 184
    s_cmp_lt_u32 {a}, 4
    s_cselect_b32 {c}, {c}, {b}
    v_mov_b32 v{x}, {c}
    s_add_u32 {b}, {a}, 16
    s_mul_i32 {b}, {b}, 43
    s_lshr_b32 {b}, {b}, 7
    s_lshl1_add_u32 {b}, {b}, 184
    v_mov_b32 v{y}, {b}
    v_bfe_u32 v{vPo}, v0, 3, 2
    v_cmp_eq_u32 {sPm}, 1, v{vPo}
    s_lshl_b32 {a}, {lo}, 1
    s_sub_u32 {a}, {a}, 2
    v_cndmask_b32 v{vPq}, v{vPq}, v{x}, {sPm}
    v_cmp_eq_u32 {sPm}, 2, v{vPo}
    v_bfe_u32 v{x}, v0, 1, 2
    v_add_u32 v{vPh}, {a}, v{x}
    v_cndmask_b32 v{vPq}, v{vPq}, v{y}, {sPm}
    v_max_i32 v{vPh}, 0, v{vPh}
    v_lshrrev_b32 v{y}, 3, v{vPh}
    v_add_u32 v{vPq}, v{vPq}, v{y}
    v_and_b32 v{vPh}, 7, v{vPh}
    v_lshl_add_u32 v{vPq}, v{vPh}, 3, v{vPq}
    v_and_b32 v{y}, 1, v0
    v_lshl_add_u32 v{vPq}, v{vPq}, 2, v{y}
    s_and_b32 {a}, {hi}, 2
    v_add_u32 v{vPq}, {a}, v{vPq}
    s_lshr_b32 {a}, {hi}, 4
    s_bfe_u32 {b}, {hi}, 0x30001
    s_lshl3_add_u32 {a}, {b}, {a}
    s_lshl1_add_u32 {a}, {s.w}, {a}
    s_and_b32 {b}, {hi}, 1
    s_lshl2_add_u32 {a}, {a}, {b}
    v_lshlrev_b32 v{x}, 8, v{x}
    v_lshl_add_u32 v{x}, v{y}, 1, v{x}
    v_add_u32 v{vPh}, {a}, v{x}
    v_cmp_eq_u32 {sPm}, 3, v{vPo}
    v_bfe_u32 v{x}, v0, 2, 2
    v_and_b32 v{y}, 3, v0
    v_cndmask_b32 v{vPq}, v{vPq}, v{vPh}, {sPm}
    s_mov_b32 {c}, {WS_FLAGQ}
    s_mov_b32 {d}, {WS_FLAGH}
    v_lshl_add_u32 v{vPq}, v{vPq}, 7, {c}
    v_lshl_add_u32 v{vPh}, v{vPh}, 7, {d}
    v_lshl_add_u32 v{x}, v{y}, 6, v{x}
    s_lshr_b32 {a}, {hi}, 2
    s_lshl_b32 {a}, {a}, 1
    s_add_u32 {a}, {a}, {s.ch}
    s_lshl_b32 {a}, {a}, 4
    s_and_b32 {b}, {hi}, 3
    s_add_u32 {a}, {a}, {b}
    s_add_u32 {a}, {a}, {WS_FLAGO // 128}
    v_lshl_add_u32 v{x}, v{x}, 2, {a}
    v_lshlrev_b32 v{vPo}, 7, v{x}'''
    return mk(r)

def setup_att():
    a = sU[2]
    x, y, z = A.PM, A.PM + 1, A.PM + 2
    r = f'''v_lshrrev_b32 v{x}, 5, v0
    v_and_b32 v{y}, 15, v0
    v_lshlrev_b32 v{y}, 3, v{y}
    v_lshl_add_u32 v{y}, v{x}, 7, v{y}
    s_lshl_b32 {a}, {s.w}, 11
    s_add_u32 {a}, {a}, {LDS_V}
    v_add_u32 v{z}, {a}, v{y}
    v_xor_b32 v{y}, {LDS_ONE + 128}, v{y}
    v_and_b32 v{A.J}, 16, v0
    v_cmp_eq_u32 s[86:87], 0, v{A.J}
    v_mov_b32 v{A.J+1}, 1024
    v_and_b32 v{A.J}, 31, v0
    v_cndmask_b32 v{A.VA}, v{y}, v{z}, s[86:87]
    v_cndmask_b32 v{z}, 0, v{A.J+1}, s[86:87]
    v_lshlrev_b32 v{x}, 2, v{x}
    v_sub_u32 v{A.J}, v{A.J}, v{x}
    v_mov_b32 v{A.J+1}, 0xffff
    v_mov_b32 v{A.M}, {attn.NINF}
    v_mov_b32 v{A.M+1}, {attn.NINF}'''.split('\n')
    r += [f'v_add_u32 v{A.VA+b}, v{A.VA+b-1}, v{z}' for b in range(1, 10)]
    r += [f'v_mov_b32 v{A.PM+4+k}, 0x3f803f80' for k in range(4)]
    r += [f'v_add_u32 v{A.PM+3}, {LDS_ONE}, v{vL16}']
    return mk(r)

def kqv():
    ld = lambda b: mk(f'buffer_load_dwordx4 {ar(A.aK + 4*b, 4)}, v{vL16}, {sWS}, {sKo[b >> 2]} offen offset:{1024*(b & 3)} sc1')
    r = mk([f'buffer_load_dwordx4 {ar(A.aQ + 4*t, 4)}, v{vL16}, {sWS}, {sQo} offen offset:{1024*t} sc1' for t in range(2)])
    r += mk(f's_add_u32 m0, {s.mx}, {LDS_V}')
    for b in (8, 0, 9, 1, 2): r += ld(b)
    r += mk([f'buffer_load_dwordx4 v{vL16}, {sWS}, {sVo} offen offset:{1024*j} sc1 lds' for j in range(4)], 'V')
    for b in (3, 4, 5, 6, 7): r += ld(b)
    return r

class P2Ext:
    def __init__(self, sfx, cold, cfg):
        self.sfx, self.cold, self.cfg = sfx, cold, cfg
        self.dq = Pool(1, period=cfg.get('per2', 64), burst=cfg.get('burst2', 3), maxds=2)
        self.su = Pool(); self.su2 = Pool(); self.su3 = Pool()
        self.fl = Pool()
    def pools(self, bg): return (self.fl, self.dq, bg, self.su, self.su2, self.su3)
    def flush(self, P, pool, name):
        r = pool.rest()
        if r and self.cfg.get('v'): print('flush', self.sfx, name, len(r))
        P.add(r)
    def at(self, P, i, st, bg):
        cfg, dq, su = self.cfg, self.dq, self.su
        k = 4*i + st
        if k == 0 and not cfg.get('nowarm'): self.fl.put(warm())
        if k == 2:
            assert not self.fl.q
            su.put(setup_d())
        if k == 12:
            self.flush(P, bg, 'bg')
            su.put(f'v_mov_b32 v{vFd}, {s.n0}\nv_mov_b32 v{vFd+1}, {s.n1}')
        if k == 15:
            self.flush(P, su, 'su')
            self.su2.put(setup_polls())
            for u in range(4): dq.put(wdma(u))
        if k == cfg.get('pubq', 17): self.fl.put(publish(WS_FLAGQ, 'st1'))
        if k == 20:
            dq.put(stage(0)); dq.put(stage(1)); dq.put([delay(96), waitlg(('r0', 'r1'))]); dq.put(wdma(4)); dq.put(wdma(5))
        if k == cfg.get('pollq', 23):
            self.flush(P, self.su2, 'su2')
            self.fl.put(poll(vPq, WS_FLAGQ)); self.su3.put(setup_att())
        if k == 24:
            dq.put(stage(2)); dq.put(stage(3))
        if k == cfg.get('chkq', 27):
            self.flush(P, self.fl, 'fl')
            dq.put(check(self.cold, 'q' + self.sfx, vPq, WS_FLAGQ))
            T = Prog(); stamp(T, 'chkq'); dq.put(T.L)
            dq.burst = 8
            dq.put(kqv()); dq.put([waitlg(('r2', 'r3'))]); dq.put(wdma(6))
            if cfg.get('w7', 1): dq.put(wdma(7))
        if k == 31:
            self.flush(P, self.su3, 'su3')
            P(f'ds_write_b128 v{A.PM+3}, {vr(A.PM+4, 4)}')
            P(f's_bfe_u32 {sT}, s2, 0x30003\ns_cmp_eq_u32 {sT}, 0\ns_cselect_b64 vcc, -1, 0')
    def done(self, P):
        self.flush(P, self.fl, 'fl'); self.flush(P, self.dq, 'dq-end')

class AttBg:
    def __init__(self, cold, cfg):
        self.cold, self.cfg = cold, cfg
        self.q = Pool(cfg.get('vm3', 1), period=cfg.get('per3', 64), burst=cfg.get('burst3', 3), maxds=3)
        self.fl = Pool()
    def gap(self, P, where):
        q, cfg = self.q, self.cfg
        if where == ('p1', 0):
            if not cfg.get('w7', 1): q.put(wdma(7))
            for u in (8, 9): q.put(wdma(u))
            q.put(hload(0)); q.put(hload(1))
            q.put(stage(4)); q.put(stage(5))
            for u in (10, 11): q.put(wdma(u))
            q.put([delay(96), waitlg(('r4', 'r5'))])
            for u in (2, 3): q.put(hload(u))
            for u in (12, 13): q.put(wdma(u))
            for u in (4, 5): q.put(hload(u))
        if where == ('p1', cfg.get('pubh', 12)): self.fl.put(publish(WS_FLAGH, 'st2'))
        if where == ('p2', cfg.get('pollh', 40)): self.fl.put(poll(vPh, WS_FLAGH))
        P.add(self.fl.take(99, True, P.now()))
        P.add(q.take(20, True, P.now()))

def mf(d, a, b, first):
    return f'v_mfma_f32_32x32x16_bf16 {vr(d, 16)}, {a}, {b}, {"0" if first else vr(d, 16)}'

def dstage(P, cold, cfg):
    t = vT
    dq = Pool(1, period=cfg.get('per4', 64), burst=cfg.get('burst4', 6))
    fl = Pool(); su = Pool()
    P.add(check(cold, 'h', vPh, WS_FLAGH))
    stamp(P, 'chkh')
    for u in range(6, 10): dq.put(hload(u))
    wo = []
    for q in range(4):
        off = (8192 + 4096*q) if q < 2 else (LDS_FB + 4096*(q - 2))
        g = mk(f's_add_u32 m0, {sFA}, {off}\ns_lshl_b32 {sT}, {s.w}, 17\ns_add_u32 {sT}, {sT}, {q*32768}')
        g += mk([f'buffer_load_dwordx4 v{vWdD+j}, {sWO}, {sT} offen offset:{1024*j} lds' for j in range(4)], 'wo')
        wo.append(g)
    xo, oo, rw, rr, wa = vAd, vAd + 1, vAd + 2, t, t + 4
    su.put(f'''v_and_b32 v{vRs}, 31, v0
    v_lshrrev_b32 v{vRs+1}, 5, v0
    v_lshlrev_b32 v{oo}, 10, v{vRs}
    v_lshl_add_u32 v{xo}, v{vRs+1}, 3, v{oo}
    v_lshl_add_u32 v{oo}, v{vRs+1}, 4, v{oo}
    v_lshlrev_b32 v{vRs}, 4, v{vRs}
    v_add_u32 v{rw}, {sFA}, v{vL16}
    v_add_u32 v{rw+1}, {LDS_FB}, v{rw}
    v_xor_b32 v{rr}, {16384}, v{rw}
    v_add_u32 v{rr}, {LDS_FB}, v{rr}
    v_xor_b32 v{rr+1}, {32768}, v{rw}
    v_add_u32 v{rr+1}, {LDS_FB}, v{rr+1}
    v_xor_b32 v{rr+2}, {49152}, v{rw}
    v_subrev_u32 v{wa}, {sFA}, v{vRA}
    v_lshl_add_u32 v{wa}, v{vRs+1}, 9, v{wa}
    s_lshl_b32 {sU[0]}, {s.ch}, 15
    v_add_u32 v{wa}, {sU[0]}, v{wa}
    v_xor_b32 v{wa+1}, 64, v{wa}
    v_add_u32 v{wa+2}, {LDS_FB}, v{wa}
    v_add_u32 v{wa+3}, {LDS_FB}, v{wa+1}''')
    xl = mk(f'buffer_load_dword v{vRs}, v{vRs}, {sWS}, {sSt} offen offset:4 sc1')
    xl += mk([f'buffer_load_dwordx2 {vr(vX + 2*g, 2)}, v{xo}, {sX}, {sXo} offen offset:{16*g}' for g in range(4)])
    olds = []
    for q in range(4):
        olds += mk([f'buffer_load_dwordx4 {ar(aO + 16*q + 4*j, 4)}, v{vL16}, {sWS}, {sOi} offen offset:{1024*j} sc1' for j in range(4)])
        if q < 3: olds += mk(f's_add_u32 {sOi}, {sOi}, 4096')
    for u in range(14):
        if u == 2:
            P.add(su.rest())
            for v in range(10, 14): dq.put(hload(v))
            dq.put(xl)
        if u == cfg.get('pubo', 5): fl.put(publish(WS_FLAGO, 'sto'))
        if u == 8: dq.put(wo[0]); dq.put(wo[1])
        if u == 10: dq.put(wo[2]); dq.put(wo[3])
        if u == cfg.get('pollo', 12): P.add(dq.rest()); fl.put(poll(vPo, WS_FLAGO))
        if u == 6: stamp(P, 'd1m')
        hk, hb = hreg(u)
        for ks in range(2):
            mfs, fixed = [], {}
            nu, nk = (u, 1) if ks == 0 else (u + 1, 0)
            rd = []
            if 6 <= nu < 14:
                if nk == 0: P.waitvm(f'w{nu}')
                rd = wread(nu, nk, 'v', vWF + 8*nk)
            for c in range(2):
                for tt in range(2):
                    if tt == 0 and rd: fixed[len(mfs)] = rd.pop(0)
                    a = ar(aW + 16*u + 8*ks + 4*c, 4) if u < 6 else vr(vWF + 8*ks + 4*c, 4)
                    mfs.append(mf(vF + 16*(2*c + tt), a, rg(hk, hb + 8*ks + 4*tt, 4), u == 0 and ks == 0))
            weave(P, mfs, fixed, (fl, dq, su), slack=0)
    P.add(fl.rest()); P.add(dq.rest())
    stamp(P, 'd1')
    P(f's_or_b32 {sT}, s2, {s.w}\ns_cmp_eq_u32 {sT}, 0\ns_cbranch_scc1 L_bump\nL_bump_back:')
    cold.add([forget()])
    cold(f'''L_bump:
    v_lshlrev_b32 v{vE}, 9, v0
    L_bump_again:''')
    for k in range(4):
        cold(f's_mov_b32 {sT}, {WS_FLAGQ + k*32768}\nbuffer_load_dwordx2 {vr(vE + 2 + 2*k, 2)}, v{vE}, {sWS}, {sT} offen sc1')
    cold(f'''v_cmp_ne_u64 s[82:83], {sN}, {vr(vE+2, 2)}
    v_cmp_ne_u64 s[84:85], {sN}, {vr(vE+4, 2)}
    v_cmp_ne_u64 s[86:87], {sN}, {vr(vE+6, 2)}
    v_cmp_ne_u64 {sPm}, {sN}, {vr(vE+8, 2)}
    s_or_b64 s[82:83], s[82:83], s[84:85]
    s_or_b64 s[86:87], s[86:87], {sPm}
    s_or_b64 s[82:83], s[82:83], s[86:87]
    s_cbranch_scc0 L_bump_go
    s_sub_u32 {s.spin}, {s.spin}, 1
    s_cmp_gt_i32 {s.spin}, 0
    s_cbranch_scc1 L_bump_again
    L_bump_go:
    buffer_store_dword v{vFd}, v{vFl}, {sWS}, 0 offen sc1
    s_waitcnt vmcnt(0)
    s_branch L_bump_back''')
    wr = [(rw + 1, 8192), (rw + 1, 12288), (rw, 0)]
    for j in (1, 2, 3):
        for q in range(4): P(f'ds_write_b128 v{wr[j-1][0]}, {vr(vF + 16*j + 4*q, 4)} offset:{wr[j-1][1] + 1024*q}')
    P.add(check(cold, 'o', vPo, WS_FLAGO))
    stamp(P, 'chko')
    P.waitvm('wo')
    P.add(olds)
    P.waitlg()
    P('s_barrier')
    for j in (1, 2, 3):
        for q in range(4): P(f'ds_read_b128 {vr(vF + 16*j + 4*q, 4)}, v{rr + j - 1} offset:{wr[j-1][1] + 1024*q}')
    def wor(k):
        src, kk = k >> 3, k & 7
        reg, off = (wa, 8192 + 2048*kk) if kk < 4 else (wa + 2, 2048*(kk - 4))
        return [[f'ds_read_b64_tr_b16 {vr(vWF + 8*(k & 1) + 4*c + 2*j, 2)}, v{reg + c} offset:{off + 16384*src + 512*j}' for j in range(2)] for c in range(2)]
    P.add(wor(0))
    bg = Pool()
    G = vF
    bg.put(f'v_mul_f32 v{vRs}, v{vRs}, v{vRs}\nv_mul_f32 v{vRs+1}, {f32(-LOG2E)}, v{vRs}')
    for g in range(8):
        bg.put([f'v_lshlrev_b32 v{vXF+2*g}, 16, v{vX+g}', f'v_and_b32 v{vXF+2*g+1}, 0xffff0000, v{vX+g}'])
    for k in range(1, 4):
        bg.put([f'v_add_f32 v{G+r}, v{G+r}, v{vF+16*k+r}' for r in range(16)])
    P.add(bg.q[:cfg.get('early', 50)]); del bg.q[:cfg.get('early', 50)]
    for r0 in range(0, 16, 4):
        rs = range(r0, r0 + 4)
        bg.put([f'v_mul_f32 v{vE+r}, v{vRs+1}, v{G+r}' for r in rs])
        bg.put([f'v_exp_f32 v{vE+r}, v{vE+r}' for r in rs])
        bg.put([f'v_mul_f32 v{G+r}, v{vRs}, v{G+r}' for r in rs])
        bg.put([f'v_add_f32 v{vE+r}, 1.0, v{vE+r}' for r in rs])
        bg.put([f'v_rcp_f32 v{vE+r}, v{vE+r}' for r in rs])
    bg.put([f'v_mul_f32 v{G+r}, v{G+r}, v{vE+r}' for r in range(16)])
    bg.put(f'''s_add_u32 {sT}, {s.mx}, {LDS_EX}
    v_add_u32 v{rw}, {sT}, v{vL16}
    v_xor_b32 v{rw+1}, 8192, v{rw}''')
    stamp(P, 'red')
    for k in range(16):
        rd = wor(k + 1) if k < 15 else []
        mfs, fixed = [], {}
        for c in range(2):
            if rd: fixed[len(mfs)] = rd.pop(0)
            mfs.append(mf(vSx + 16*c, vr(vWF + 8*(k & 1) + 4*c, 4), ar(aO + 4*k, 4), k == 0))
        weave(P, mfs, fixed, (bg,), slack=0)
    P.add(bg.rest())
    stamp(P, 'd2')
    if cfg.get('extra'):
        P(f's_mov_b32 {sT}, {cfg["extra"]}\nL_extra:')
        for k in range(16): P(f'v_mfma_f32_32x32x16_bf16 v[192:207], v[96:99], a[128:131], v[192:207]')
        P(f's_sub_u32 {sT}, {sT}, 1\ns_cmp_lg_u32 {sT}, 0\ns_cbranch_scc1 L_extra')
    for q in range(4): P(f'ds_write_b128 v{rw}, {vr(vSx + 16 + 4*q, 4)} offset:{q*1024}')
    for r in range(16): P(f'v_fmac_f32 v{vXF+r}, v{vSx+r}, v{G+r}')
    P.waitlg()
    P('s_barrier')
    for q in range(4): P(f'ds_read_b128 {vr(vSx + 16 + 4*q, 4)}, v{rw+1} offset:{q*1024}')
    for g in range(2):
        for r in range(8*g, 8*g + 8): P(f'v_fmac_f32 v{vXF+r}, v{vSx+16+r}, v{G+r}')
        for k in range(4*g, 4*g + 4): P(f'v_cvt_pk_bf16_f32 v{vX+k}, v{vXF+2*k}, v{vXF+2*k+1}')
        for k in range(2): P(f'v_permlane32_swap_b32 v{vX+4*g+k}, v{vX+4*g+2+k}')
        P(f'buffer_store_dwordx4 {vr(vX + 4*g, 4)}, v{oo}, {sOUT}, {sXo} offen offset:{32*g}')
    stamp(P, 'out')

def build(cfg):
    P, cold = Prog(), Prog()
    g1.entry(P, 'L_end')
    for srd, off in ((sWO, 16), (sWD, 48), (sOUT, 56)): srd_load(P, srd, off)
    srd_const(P, sWO, 512*512*2); srd_const(P, sWD, 1792*512*2); srd_const(P, sOUT, 2048*512*2)
    g1.g1_body(P, cold, cfg, lambda sfx: P2Ext(sfx, cold, cfg))
    g1.epilogue2(P)
    stamp(P, 'e2')
    bg = AttBg(cold, cfg)
    attn.pass1(P, cold, [], bg)
    stamp(P, 'a1')
    attn.pass2(P, cold, bg)
    if cfg.get('v'): print('att rest', len(bg.fl.q), len(bg.q.q))
    P.add(bg.fl.rest()); P.add(bg.q.rest())
    stamp(P, 'a2')
    dstage(P, cold, cfg)
    stamp_end(P)
    P('L_end:\ns_endpgm')
    P.add(cold.L)
    L = finish(P.L)
    return L

if __name__ == '__main__':
    cfg = {}
    for a in sys.argv[2:]:
        k, _, v = a.partition('=')
        if k == 'st':
            STAMPS[0] = True; SEL.extend(v.split(','))
        elif k == 'dbg':
            STAMPS[0] = 'dbg'; SEL.extend(v.split(','))
        else: cfg[k] = int(v) if v else 1
    L = build(cfg)
    print('instructions', sum(1 for x in L if x.states()), 'estimate', estimate(L), 'nops', sum(1 for x in L if x.cls == 'nop'))
    src = '; @launch grid=(256,1,1) block=(256,1,1) lds=163840\n.amdgcn_target "amdgcn-amd-amdhsa--gfx950"\n' + kernel_text(NAME + '_kernel', L)
    open(sys.argv[1], 'w').write(src)
```

```python
import sys, os
sys.path.insert(0, os.path.dirname(os.path.abspath(__file__)))
from common import *
import g1, attn
from g1 import vL16, vT
NAME = 'recurrent_scan__sliding_block__glu_gated_bilinear__prompt'

LDS_V = 65536; LDS_ONE = 81920; LDS_FB = 98304; LDS_EX = 65536
sFl, sWk = 's44', 's45'; sPm = 's[46:47]'
sQo = 's51'; sKo = ('s52', 's53', 's54'); sVo = 's55'; sOo = 's56'; sNb = 's57'
sHe = ('s58', 's59'); sT = 's62'; sXo = 's63'; sSt = 's64'; sHl = ('s65', 's66'); sOi = 's78'; sFA = 's80'
sU = ('s82', 's83', 's84', 's85', 's86', 's87')
sN = 's[60:61]'
vWdD = 13; vRA = 17; vFl = 21; vPq, vPh, vPo = 22, 23, 24; vLn = 25
vFd = 188; vPd = 190
A = attn.R
A.D0, A.D1, A.A0, A.A1 = 32, 48, 64, 80
A.N = 64; A.S = 96; A.O = 128; A.P = 160; A.PA = 168; A.VA = 160; A.J = 176; A.M = 178; A.PM = 180
A.LDS_V = LDS_V; A.LDS_ONE = LDS_ONE
A.sNb = sNb; A.sKo = sKo; A.sQo = sQo; A.sVo = sVo; A.sOo = sOo
aW = 128
def hreg(u):
    if u < 2: return ('a', 224 + 16*u)
    if u < 6: return ('v', 192 + 16*(u - 2))
    return ('a', 16*(u - 6))
def rg(kind, b, n): return vr(b, n) if kind == 'v' else ar(b, n)
def slot(u):
    if u < 8: return (0, (u & 3) * 4096)
    if u < 12: return (1, (u - 8) * 4096)
    return (0, (u - 12) * 4096)
vF = 32; vWF = 96; vE = 112; vXF = 128; vX = 144; vRs = 152; vAd = 154; vSx = 160; aO = 128

def wdma(u):
    reg, off = slot(u)
    r = []
    if u == 6: r += mk(f's_lshl_b32 {sT}, {s.w}, 16\ns_add_u32 {sWk}, {sWk}, {sT}\ns_add_u32 {sWk}, {sWk}, {36*16384}')
    r += mk(f's_add_u32 m0, {sFA}, {reg*LDS_FB + off}')
    r += mk([f'buffer_load_dwordx4 v{vWdD+j}, {sWD}, {sWk} offen offset:{1024*j} lds' for j in range(4)], f'w{u}')
    r += mk(f's_add_u32 {sWk}, {sWk}, 32768')
    return r
def wread(u, ks, kind, base):
    reg, off = slot(u)
    return [[f'ds_read_b64_tr_b16 {rg(kind, base + 4*c + 2*j, 2)}, v{vRA + 2*reg + c} offset:{off + 2048*ks + 1024*j}' for j in range(2)] for c in range(2)]
def stage(u):
    return [waitvm(f'w{u}')] + mk([wread(u, ks, 'a', aW + 16*u + 8*ks) for ks in range(2)], f'r{u}')
def hload(u):
    kind, b = hreg(u)
    so = sHe if u < 6 else sHl
    r = mk([f'buffer_load_dwordx4 {rg(kind, b + 8*ks + 4*t, 4)}, v{vL16}, {sWS}, {so[t]} offen offset:{2048*(u & 1) + 1024*ks} sc1'
            for ks in range(2) for t in range(2)])
    if u & 1: r += mk([f's_add_u32 {so[t]}, {so[t]}, 4096' for t in range(2)])
    return r
def publish(base, tag):
    return mk(f's_add_u32 {sFl}, {sFl}, 0x20000') + [waitvm(tag)] + mk(f'buffer_store_dwordx2 {vr(vFd, 2)}, v{vFl}, {sWS}, {sFl} offen sc1')
def poll(reg, base):
    return mk(f'buffer_load_dwordx2 {vr(vPd, 2)}, v{reg}, {sWS}, 0 offen sc1')
def check(cold, name, reg, base):
    cold.add([forget()])
    cold(f'''L_{name}_retry:
    s_sub_u32 {s.spin}, {s.spin}, 1
    s_cmp_le_i32 {s.spin}, 0
    s_cbranch_scc1 L_{name}_ok''')
    cold.add(poll(reg, base))
    cold(f's_waitcnt vmcnt(0)\ns_branch L_{name}_chk')
    return mk(f'''L_{name}_chk:
    v_cmp_ne_u64 {sPm}, {sN}, {vr(vPd, 2)}
    s_cmp_lg_u64 {sPm}, 0
    s_cbranch_scc1 L_{name}_retry
    L_{name}_ok:''' + (f'\nv_writelane_b32 v25, {s.spin}, {"qho".index(name[0])}' if STAMPS[0] == True else ''))

def warm():
    return mk(f'''s_lshr_b32 {sU[0]}, s2, 3
    s_lshl2_add_u32 {sU[0]}, {sU[0]}, {s.w}
    s_mul_i32 {sU[1]}, {sU[0]}, 14336
    s_add_u32 {sU[2]}, {sU[1]}, 8192
    s_lshl_b32 {sU[0]}, {sU[0]}, 12
    v_lshlrev_b32 v{vLn}, 7, v0
    v_lshlrev_b32 v35, 6, v0
    buffer_load_dword v2, v{vLn}, {sWD}, {sU[1]} offen
    buffer_load_dword v3, v{vLn}, {sWD}, {sU[2]} offen
    buffer_load_dword v4, v35, {sWO}, {sU[0]} offen''')

def warm3():
    return mk(f'''s_lshr_b32 {sU[0]}, s2, 3
    s_lshl2_add_u32 {sU[0]}, {sU[0]}, {s.w}
    s_mul_i32 {sU[1]}, {sU[0]}, 14336
    s_lshl_b32 {sU[0]}, {sU[0]}, 12
    v_lshlrev_b32 v{vLn}, 10, v0
    v_cmp_gt_u32 {sPm}, 14, v0
    v_mov_b32 v35, 0x40000000
    v_cmp_gt_u32 s[84:85], 4, v0
    v_cndmask_b32 v2, v35, v{vLn}, {sPm}
    v_cndmask_b32 v35, v35, v{vLn}, s[84:85]
    buffer_load_dword v2, v2, {sWD}, {sU[1]} offen offset:384
    buffer_load_dword v3, v35, {sWO}, {sU[0]} offen offset:384''')

def pro2(P, cfg):
    if cfg.get('pf'):
        n = cfg['pf']
        P(f'''s_lshr_b32 s82, s2, 3
        s_lshl2_add_u32 s82, s82, {s.w}
        s_getpc_b64 s[84:85]
        L_pc:
        s_lshl_b32 s82, s82, 13
        v_lshlrev_b32 v2, 7, v0
        v_add_u32 v2, s82, v2
        v_min_u32 v2, L_last-L_pc-4, v2
        v_mov_b32 v3, s85
        v_add_co_u32 v2, vcc, s84, v2
        v_addc_co_u32 v3, vcc, 0, v3, vcc
        global_load_dword v4, v[2:3], off''')
    if cfg.get('tlb'):
        P(f'''v_lshlrev_b32 v5, 16, v0
        v_lshlrev_b32 v6, 18, v0
        buffer_load_dword v7, v5, {sWD}, 0 offen
        buffer_load_dword v8, v5, {sWO}, 0 offen
        buffer_load_dword v9, v6, {sWS}, 0 offen''')
        if cfg['tlb'] > 1: P(f'buffer_load_dword v5, v5, {sOUT}, 0 offen')

def setup_d(cx=0):
    hi, lo, a, b, c, d = sU
    t = vT
    r = f'''s_and_b32 {hi}, s2, 7
    s_lshr_b32 {lo}, s2, 6
    s_lshl2_add_u32 {hi}, {hi}, {lo}
    s_bfe_u32 {lo}, s2, 0x30003
    s_lshl_b32 {sFA}, {s.w}, 14
    s_mul_i32 {sWk}, {s.w}, {12*16384}
    s_lshl2_add_u32 {sFl}, s2, {s.w}
    s_lshl_b32 {sFl}, {sFl}, 7
    s_xor_b32 {a}, {lo}, {cx}
    s_lshl_b32 {a}, {a}, 7
    v_lshrrev_b32 v{vWdD+1}, 3, v0
    v_and_b32 v{vWdD+2}, 7, v0
    v_bfe_u32 v{vWdD+3}, v0, 4, 1
    v_lshlrev_b32 v{vWdD+3}, 2, v{vWdD+3}
    v_xor_b32 v{vWdD+2}, v{vWdD+2}, v{vWdD+3}
    v_lshlrev_b32 v{vWdD+2}, 4, v{vWdD+2}
    v_lshl_add_u32 v{vWdD+2}, v{vWdD+1}, 10, v{vWdD+2}
    v_add_u32 v{vWdD}, {a}, v{vWdD+2}
    v_add_u32 v{vWdD+1}, 7168, v{vWdD}
    v_add_u32 v{vWdD+2}, {2*7168}, v{vWdD}
    v_add_u32 v{vWdD+3}, {3*7168}, v{vWdD}
    v_bfe_u32 v{vRA+1}, v0, 4, 1
    v_bfe_u32 v{vRA+2}, v0, 1, 1
    v_lshl_add_u32 v{vRA+2}, v{vRA+1}, 1, v{vRA+2}
    v_bfe_u32 v{vRA+1}, v0, 3, 1
    v_xor_b32 v{vRA+1}, {s.ch}, v{vRA+1}
    v_lshl_add_u32 v{vRA+2}, v{vRA+1}, 2, v{vRA+2}
    v_and_b32 v{vRA+1}, 1, v0
    v_lshlrev_b32 v{vRA+1}, 3, v{vRA+1}
    v_lshl_add_u32 v{vRA+2}, v{vRA+2}, 4, v{vRA+1}
    v_bfe_u32 v{vRA+1}, v0, 2, 2
    v_lshl_add_u32 v{vRA+2}, v{vRA+1}, 7, v{vRA+2}
    v_lshrrev_b32 v{vRA+1}, 5, v0
    v_lshl_add_u32 v{vRA+2}, v{vRA+1}, 9, v{vRA+2}
    v_add_u32 v{vRA}, {sFA}, v{vRA+2}
    v_xor_b32 v{vRA+1}, 64, v{vRA}
    v_add_u32 v{vRA+2}, {LDS_FB}, v{vRA}
    v_add_u32 v{vRA+3}, {LDS_FB}, v{vRA+1}
    v_cmp_eq_u32 {sPm}, 0, v0
    v_mov_b32 v{vFl}, 0x40000000
    s_lshl_b32 {a}, {s.w}, 1
    s_sub_u32 {sNb}, 8, {a}
    v_cndmask_b32 v{vFl}, v{vFl}, 0, {sPm}
    s_lshl3_add_u32 {a}, {lo}, {a}
    s_lshl_b32 {sOo}, {a}, 5
    s_add_u32 {sOo}, {sOo}, {hi}
    s_lshl_b32 {sOo}, {sOo}, 10
    s_add_u32 {sOo}, {sOo}, {WS_O}
    s_lshl_b32 {sVo}, {hi}, 6
    s_add_u32 {sQo}, {sVo}, {a}
    s_lshl_b32 {sQo}, {sQo}, 10
    s_add_u32 {sQo}, {sQo}, {WS_QKV}
    s_add_u32 {sKo[0]}, {sQo}, {32*65536 - 8*1024}
    s_add_u32 {sKo[1]}, {sKo[0]}, 4096
    s_add_u32 {sKo[2]}, {sKo[0]}, 8192
    s_lshl1_add_u32 {a}, {lo}, {s.w}
    s_sub_u32 {a}, {a}, 2
    s_max_i32 {a}, {a}, 0
    s_lshl2_add_u32 {sVo}, {a}, {sVo}
    s_lshl_b32 {sVo}, {sVo}, 10
    s_add_u32 {sVo}, {sVo}, {WS_QKV + 64*65536}
    s_lshl1_add_u32 {a}, {hi}, {s.th}
    s_xor_b32 {b}, {a}, 1
    s_mul_i32 {sHe[0]}, {a}, {112*1024}
    s_mul_i32 {sHe[1]}, {b}, {112*1024}
    s_mul_i32 {b}, {s.w}, {12*1024}
    s_add_u32 {b}, {b}, {WS_H}
    s_add_u32 {sHe[0]}, {sHe[0]}, {b}
    s_add_u32 {sHe[1]}, {sHe[1]}, {b}
    s_lshl_b32 {b}, {s.w}, 12
    s_add_u32 {b}, {b}, {48*1024}
    s_add_u32 {sHl[0]}, {sHe[0]}, {b}
    s_add_u32 {sHl[1]}, {sHe[1]}, {b}
    s_lshl1_add_u32 {sOi}, {a}, {s.ch}
    s_lshl_b32 {sOi}, {sOi}, 14
    s_add_u32 {sOi}, {sOi}, {WS_O}
    s_lshl_b32 {sSt}, {a}, 9
    s_add_u32 {sSt}, {sSt}, {WS_STATS}
    s_lshl_b32 {sXo}, {a}, 15
    s_xor_b32 {a}, {lo}, {cx}
    s_lshl1_add_u32 {a}, {a}, {s.ch}
    s_lshl_b32 {a}, {a}, 6
    s_add_u32 {sXo}, {sXo}, {a}'''
    return mk(r)

def setup_polls():
    hi, lo, a, b, c, d = sU
    x, y = vPd, vPd + 1
    r = f'''s_lshr_b32 {a}, {hi}, 2
    s_mul_i32 {b}, {a}, 43
    s_lshr_b32 {b}, {b}, 7
    s_mul_i32 {c}, {b}, 190
    s_lshl_b32 {d}, {a}, 6
    s_sub_u32 {c}, {d}, {c}
    v_mov_b32 v{vPq}, {c}
    s_add_u32 {b}, {a}, 8
    s_mul_i32 {b}, {b}, 43
    s_lshr_b32 {b}, {b}, 7
    s_mul_i32 {c}, {b}, 190
    s_add_u32 {d}, {d}, 512
    s_sub_u32 {c}, {d}, {c}
    s_lshl1_add_u32 {b}, {b}, 184
    s_cmp_lt_u32 {a}, 4
    s_cselect_b32 {c}, {c}, {b}
    v_mov_b32 v{x}, {c}
    s_add_u32 {b}, {a}, 16
    s_mul_i32 {b}, {b}, 43
    s_lshr_b32 {b}, {b}, 7
    s_lshl1_add_u32 {b}, {b}, 184
    v_mov_b32 v{y}, {b}
    v_bfe_u32 v{vPo}, v0, 3, 2
    v_cmp_eq_u32 {sPm}, 1, v{vPo}
    s_lshl_b32 {a}, {lo}, 1
    s_sub_u32 {a}, {a}, 2
    v_cndmask_b32 v{vPq}, v{vPq}, v{x}, {sPm}
    v_cmp_eq_u32 {sPm}, 2, v{vPo}
    v_bfe_u32 v{x}, v0, 1, 2
    v_add_u32 v{vPh}, {a}, v{x}
    v_cndmask_b32 v{vPq}, v{vPq}, v{y}, {sPm}
    v_max_i32 v{vPh}, 0, v{vPh}
    v_lshrrev_b32 v{y}, 3, v{vPh}
    v_add_u32 v{vPq}, v{vPq}, v{y}
    v_and_b32 v{vPh}, 7, v{vPh}
    v_lshl_add_u32 v{vPq}, v{vPh}, 3, v{vPq}
    v_and_b32 v{y}, 1, v0
    v_lshl_add_u32 v{vPq}, v{vPq}, 2, v{y}
    s_and_b32 {a}, {hi}, 2
    v_add_u32 v{vPq}, {a}, v{vPq}
    s_lshr_b32 {a}, {hi}, 4
    s_bfe_u32 {b}, {hi}, 0x30001
    s_lshl3_add_u32 {a}, {b}, {a}
    s_lshl1_add_u32 {a}, {s.w}, {a}
    s_and_b32 {b}, {hi}, 1
    s_lshl2_add_u32 {a}, {a}, {b}
    v_lshlrev_b32 v{x}, 8, v{x}
    v_lshl_add_u32 v{x}, v{y}, 1, v{x}
    v_add_u32 v{vPh}, {a}, v{x}
    v_cmp_eq_u32 {sPm}, 3, v{vPo}
    v_bfe_u32 v{x}, v0, 2, 2
    v_and_b32 v{y}, 3, v0
    v_cndmask_b32 v{vPq}, v{vPq}, v{vPh}, {sPm}
    s_mov_b32 {c}, {WS_FLAGQ}
    s_mov_b32 {d}, {WS_FLAGH}
    v_lshl_add_u32 v{vPq}, v{vPq}, 7, {c}
    v_lshl_add_u32 v{vPh}, v{vPh}, 7, {d}
    v_lshl_add_u32 v{x}, v{y}, 6, v{x}
    s_lshr_b32 {a}, {hi}, 2
    s_lshl_b32 {a}, {a}, 1
    s_add_u32 {a}, {a}, {s.ch}
    s_lshl_b32 {a}, {a}, 4
    s_and_b32 {b}, {hi}, 3
    s_add_u32 {a}, {a}, {b}
    s_add_u32 {a}, {a}, {WS_FLAGO // 128}
    v_lshl_add_u32 v{x}, v{x}, 2, {a}
    v_lshlrev_b32 v{vPo}, 7, v{x}'''
    return mk(r)

def setup_att():
    a = sU[2]
    x, y, z = A.PM, A.PM + 1, A.PM + 2
    r = f'''v_lshrrev_b32 v{x}, 5, v0
    v_and_b32 v{y}, 15, v0
    v_lshlrev_b32 v{y}, 3, v{y}
    v_lshl_add_u32 v{y}, v{x}, 7, v{y}
    s_lshl_b32 {a}, {s.w}, 11
    s_add_u32 {a}, {a}, {LDS_V}
    v_add_u32 v{z}, {a}, v{y}
    v_xor_b32 v{y}, {LDS_ONE + 128}, v{y}
    v_and_b32 v{A.J}, 16, v0
    v_cmp_eq_u32 s[86:87], 0, v{A.J}
    v_mov_b32 v{A.J+1}, 1024
    v_and_b32 v{A.J}, 31, v0
    v_cndmask_b32 v{A.VA}, v{y}, v{z}, s[86:87]
    v_cndmask_b32 v{z}, 0, v{A.J+1}, s[86:87]
    v_lshlrev_b32 v{x}, 2, v{x}
    v_sub_u32 v{A.J}, v{A.J}, v{x}
    v_mov_b32 v{A.J+1}, 0xffff
    v_mov_b32 v{A.M}, {attn.NINF}
    v_mov_b32 v{A.M+1}, {attn.NINF}'''.split('\n')
    r += [f'v_add_u32 v{A.VA+b}, v{A.VA+b-1}, v{z}' for b in range(1, 10)]
    r += [f'v_mov_b32 v{A.PM+4+k}, 0x3f803f80' for k in range(4)]
    r += [f'v_add_u32 v{A.PM+3}, {LDS_ONE}, v{vL16}']
    return mk(r)

def kqv():
    ld = lambda b: mk(f'buffer_load_dwordx4 {ar(A.aK + 4*b, 4)}, v{vL16}, {sWS}, {sKo[b >> 2]} offen offset:{1024*(b & 3)} sc1')
    r = mk([f'buffer_load_dwordx4 {ar(A.aQ + 4*t, 4)}, v{vL16}, {sWS}, {sQo} offen offset:{1024*t} sc1' for t in range(2)])
    r += mk(f's_add_u32 m0, {s.mx}, {LDS_V}')
    for b in (8, 0, 9, 1, 2): r += ld(b)
    r += mk([f'buffer_load_dwordx4 v{vL16}, {sWS}, {sVo} offen offset:{1024*j} sc1 lds' for j in range(4)], 'V')
    for b in (3, 4, 5, 6, 7): r += ld(b)
    return r

class P2Ext:
    def __init__(self, sfx, cold, cfg):
        self.sfx, self.cold, self.cfg = sfx, cold, cfg
        self.dq = Pool(1, period=cfg.get('per2', 64), burst=cfg.get('burst2', 3), maxds=2)
        self.su = Pool(); self.su2 = Pool(); self.su3 = Pool()
        self.fl = Pool()
    def pools(self, bg): return (self.fl, self.dq, bg, self.su, self.su2, self.su3)
    def flush(self, P, pool, name):
        r = pool.rest()
        if r and self.cfg.get('v'): print('flush', self.sfx, name, len(r))
        P.add(r)
    def at(self, P, i, st, bg):
        cfg, dq, su = self.cfg, self.dq, self.su
        k = 4*i + st
        if k == 0 and not cfg.get('nowarm'): self.fl.put(warm3() if cfg.get('w3') else warm())
        if k == 2:
            assert not self.fl.q
            su.put(setup_d(cfg.get('cx', 0)))
        if k == 12:
            self.flush(P, bg, 'bg')
            su.put(f'v_mov_b32 v{vFd}, {s.n0}\nv_mov_b32 v{vFd+1}, {s.n1}')
        if k == 15:
            self.flush(P, su, 'su')
            self.su2.put(setup_polls())
            for u in range(4): dq.put(wdma(u))
        if k == cfg.get('pubq', 17):
            assert k > 12
            self.flush(P, su, 'su'); self.fl.put(publish(WS_FLAGQ, 'st1'))
        if k == 20:
            dq.put(stage(0)); dq.put(stage(1)); dq.put([delay(96), waitlg(('r0', 'r1'))]); dq.put(wdma(4)); dq.put(wdma(5))
        if k == cfg.get('pollq', 23):
            self.flush(P, self.su2, 'su2')
            self.fl.put(poll(vPq, WS_FLAGQ)); self.su3.put(setup_att())
        if k == 24:
            dq.put(stage(2)); dq.put(stage(3))
        if k == cfg.get('chkq', 27):
            self.flush(P, self.fl, 'fl')
            dq.put(check(self.cold, 'q' + self.sfx, vPq, WS_FLAGQ))
            T = Prog(); stamp(T, 'chkq'); dq.put(T.L)
            dq.burst = 8
            dq.put(kqv()); dq.put([waitlg(('r2', 'r3'))]); dq.put(wdma(6))
            if cfg.get('w7', 1): dq.put(wdma(7))
        if k == 31:
            self.flush(P, self.su3, 'su3')
            P(f'ds_write_b128 v{A.PM+3}, {vr(A.PM+4, 4)}')
            P(f's_bfe_u32 {sT}, s2, 0x30003\ns_cmp_eq_u32 {sT}, 0\ns_cselect_b64 vcc, -1, 0')
    def done(self, P):
        self.flush(P, self.fl, 'fl'); self.flush(P, self.dq, 'dq-end')

class AttBg:
    def __init__(self, cold, cfg):
        self.cold, self.cfg = cold, cfg
        self.q = Pool(cfg.get('vm3', 1), period=cfg.get('per3', 64), burst=cfg.get('burst3', 3), maxds=3)
        self.fl = Pool()
    def gap(self, P, where):
        q, cfg = self.q, self.cfg
        if where == ('p1', 0):
            if not cfg.get('w7', 1): q.put(wdma(7))
            for u in (8, 9): q.put(wdma(u))
            q.put(hload(0)); q.put(hload(1))
            q.put(stage(4)); q.put(stage(5))
            for u in (10, 11): q.put(wdma(u))
            q.put([delay(96), waitlg(('r4', 'r5'))])
            for u in (2, 3): q.put(hload(u))
            for u in (12, 13): q.put(wdma(u))
            for u in (4, 5): q.put(hload(u))
        if where == ('p1', cfg.get('pubh', 12)): self.fl.put(publish(WS_FLAGH, 'st2'))
        if where == ('p2', cfg.get('pollh', 40)): self.fl.put(poll(vPh, WS_FLAGH))
        P.add(self.fl.take(99, True, P.now()))
        P.add(q.take(20, True, P.now()))

def mf(d, a, b, first):
    return f'v_mfma_f32_32x32x16_bf16 {vr(d, 16)}, {a}, {b}, {"0" if first else vr(d, 16)}'

def dstage(P, cold, cfg):
    t = vT
    dq = Pool(1, period=cfg.get('per4', 64), burst=cfg.get('burst4', 6))
    fl = Pool(); su = Pool()
    P.add(check(cold, 'h', vPh, WS_FLAGH))
    stamp(P, 'chkh')
    for u in range(6, 10): dq.put(hload(u))
    wo = []
    for q in range(4):
        off = (8192 + 4096*q) if q < 2 else (LDS_FB + 4096*(q - 2))
        g = mk(f's_add_u32 m0, {sFA}, {off}\ns_lshl_b32 {sT}, {s.w}, 17\ns_add_u32 {sT}, {sT}, {q*32768}')
        g += mk([f'buffer_load_dwordx4 v{vWdD+j}, {sWO}, {sT} offen offset:{1024*j} lds' for j in range(4)], 'wo')
        wo.append(g)
    xo, oo, rw, rr, wa = vAd, vAd + 1, vAd + 2, t, t + 4
    su.put(f'''v_and_b32 v{vRs}, 31, v0
    v_lshrrev_b32 v{vRs+1}, 5, v0
    v_lshlrev_b32 v{oo}, 10, v{vRs}
    v_lshl_add_u32 v{xo}, v{vRs+1}, 3, v{oo}
    v_lshl_add_u32 v{oo}, v{vRs+1}, 4, v{oo}
    v_lshlrev_b32 v{vRs}, 4, v{vRs}
    v_add_u32 v{rw}, {sFA}, v{vL16}
    v_add_u32 v{rw+1}, {LDS_FB}, v{rw}
    v_xor_b32 v{rr}, {16384}, v{rw}
    v_add_u32 v{rr}, {LDS_FB}, v{rr}
    v_xor_b32 v{rr+1}, {32768}, v{rw}
    v_add_u32 v{rr+1}, {LDS_FB}, v{rr+1}
    v_xor_b32 v{rr+2}, {49152}, v{rw}
    v_subrev_u32 v{wa}, {sFA}, v{vRA}
    v_lshl_add_u32 v{wa}, v{vRs+1}, 9, v{wa}
    s_lshl_b32 {sU[0]}, {s.ch}, 15
    v_add_u32 v{wa}, {sU[0]}, v{wa}
    v_xor_b32 v{wa+1}, 64, v{wa}
    v_add_u32 v{wa+2}, {LDS_FB}, v{wa}
    v_add_u32 v{wa+3}, {LDS_FB}, v{wa+1}''')
    xl = mk(f'buffer_load_dword v{vRs}, v{vRs}, {sWS}, {sSt} offen offset:4 sc1')
    xl += mk([f'buffer_load_dwordx2 {vr(vX + 2*g, 2)}, v{xo}, {sX}, {sXo} offen offset:{16*g}' for g in range(4)])
    olds = []
    for q in range(4):
        olds += mk([f'buffer_load_dwordx4 {ar(aO + 16*q + 4*j, 4)}, v{vL16}, {sWS}, {sOi} offen offset:{1024*j} sc1' for j in range(4)])
        if q < 3: olds += mk(f's_add_u32 {sOi}, {sOi}, 4096')
    for u in range(14):
        if u == 2:
            P.add(su.rest())
            for v in range(10, 14): dq.put(hload(v))
            dq.put(xl)
        if u == cfg.get('pubo', 5): fl.put(publish(WS_FLAGO, 'sto'))
        if u == 8: dq.put(wo[0]); dq.put(wo[1])
        if u == 10: dq.put(wo[2]); dq.put(wo[3])
        if u == cfg.get('pollo', 12): P.add(dq.rest()); fl.put(poll(vPo, WS_FLAGO))
        if u == 6: stamp(P, 'd1m')
        hk, hb = hreg(u)
        for ks in range(2):
            mfs, fixed = [], {}
            nu, nk = (u, 1) if ks == 0 else (u + 1, 0)
            rd = []
            if 6 <= nu < 14:
                if nk == 0: P.waitvm(f'w{nu}')
                rd = wread(nu, nk, 'v', vWF + 8*nk)
            for c in range(2):
                for tt in range(2):
                    if tt == 0 and rd: fixed[len(mfs)] = rd.pop(0)
                    a = ar(aW + 16*u + 8*ks + 4*c, 4) if u < 6 else vr(vWF + 8*ks + 4*c, 4)
                    mfs.append(mf(vF + 16*(2*c + tt), a, rg(hk, hb + 8*ks + 4*tt, 4), u == 0 and ks == 0))
            weave(P, mfs, fixed, (fl, dq, su), slack=0)
    P.add(fl.rest()); P.add(dq.rest())
    stamp(P, 'd1')
    P(f's_or_b32 {sT}, s2, {s.w}\ns_cmp_eq_u32 {sT}, 0\ns_cbranch_scc1 L_bump\nL_bump_back:')
    cold.add([forget()])
    cold(f'''L_bump:
    v_lshlrev_b32 v{vE}, 9, v0
    L_bump_again:''')
    for k in range(4):
        cold(f's_mov_b32 {sT}, {WS_FLAGQ + k*32768}\nbuffer_load_dwordx2 {vr(vE + 2 + 2*k, 2)}, v{vE}, {sWS}, {sT} offen sc1')
    cold(f'''v_cmp_ne_u64 s[82:83], {sN}, {vr(vE+2, 2)}
    v_cmp_ne_u64 s[84:85], {sN}, {vr(vE+4, 2)}
    v_cmp_ne_u64 s[86:87], {sN}, {vr(vE+6, 2)}
    v_cmp_ne_u64 {sPm}, {sN}, {vr(vE+8, 2)}
    s_or_b64 s[82:83], s[82:83], s[84:85]
    s_or_b64 s[86:87], s[86:87], {sPm}
    s_or_b64 s[82:83], s[82:83], s[86:87]
    s_cbranch_scc0 L_bump_go
    s_sub_u32 {s.spin}, {s.spin}, 1
    s_cmp_gt_i32 {s.spin}, 0
    s_cbranch_scc1 L_bump_again
    L_bump_go:
    buffer_store_dword v{vFd}, v{vFl}, {sWS}, 0 offen sc1
    s_waitcnt vmcnt(0)
    s_branch L_bump_back''')
    wr = [(rw + 1, 8192), (rw + 1, 12288), (rw, 0)]
    for j in (1, 2, 3):
        for q in range(4): P(f'ds_write_b128 v{wr[j-1][0]}, {vr(vF + 16*j + 4*q, 4)} offset:{wr[j-1][1] + 1024*q}')
    P.add(check(cold, 'o', vPo, WS_FLAGO))
    stamp(P, 'chko')
    P.waitvm('wo')
    P.add(olds)
    P.waitlg()
    P('s_barrier')
    for j in (1, 2, 3):
        for q in range(4): P(f'ds_read_b128 {vr(vF + 16*j + 4*q, 4)}, v{rr + j - 1} offset:{wr[j-1][1] + 1024*q}')
    def wor(k):
        src, kk = k >> 3, k & 7
        reg, off = (wa, 8192 + 2048*kk) if kk < 4 else (wa + 2, 2048*(kk - 4))
        return [[f'ds_read_b64_tr_b16 {vr(vWF + 8*(k & 1) + 4*c + 2*j, 2)}, v{reg + c} offset:{off + 16384*src + 512*j}' for j in range(2)] for c in range(2)]
    P.add(wor(0))
    bg = Pool()
    G = vF
    bg.put(f'v_mul_f32 v{vRs}, v{vRs}, v{vRs}\nv_mul_f32 v{vRs+1}, {f32(-LOG2E)}, v{vRs}')
    for g in range(8):
        bg.put([f'v_lshlrev_b32 v{vXF+2*g}, 16, v{vX+g}', f'v_and_b32 v{vXF+2*g+1}, 0xffff0000, v{vX+g}'])
    for k in range(1, 4):
        bg.put([f'v_add_f32 v{G+r}, v{G+r}, v{vF+16*k+r}' for r in range(16)])
    P.add(bg.q[:cfg.get('early', 50)]); del bg.q[:cfg.get('early', 50)]
    for r0 in range(0, 16, 4):
        rs = range(r0, r0 + 4)
        bg.put([f'v_mul_f32 v{vE+r}, v{vRs+1}, v{G+r}' for r in rs])
        bg.put([f'v_exp_f32 v{vE+r}, v{vE+r}' for r in rs])
        bg.put([f'v_mul_f32 v{G+r}, v{vRs}, v{G+r}' for r in rs])
        bg.put([f'v_add_f32 v{vE+r}, 1.0, v{vE+r}' for r in rs])
        bg.put([f'v_rcp_f32 v{vE+r}, v{vE+r}' for r in rs])
    bg.put([f'v_mul_f32 v{G+r}, v{G+r}, v{vE+r}' for r in range(16)])
    bg.put(f'''s_add_u32 {sT}, {s.mx}, {LDS_EX}
    v_add_u32 v{rw}, {sT}, v{vL16}
    v_xor_b32 v{rw+1}, 8192, v{rw}''')
    stamp(P, 'red')
    for k in range(16):
        rd = wor(k + 1) if k < 15 else []
        mfs, fixed = [], {}
        for c in range(2):
            if rd: fixed[len(mfs)] = rd.pop(0)
            mfs.append(mf(vSx + 16*c, vr(vWF + 8*(k & 1) + 4*c, 4), ar(aO + 4*k, 4), k == 0))
        weave(P, mfs, fixed, (bg,), slack=0)
    P.add(bg.rest())
    stamp(P, 'd2')
    if cfg.get('extra'):
        P(f's_mov_b32 {sT}, {cfg["extra"]}\nL_extra:')
        for k in range(16): P(f'v_mfma_f32_32x32x16_bf16 v[192:207], v[96:99], a[128:131], v[192:207]')
        P(f's_sub_u32 {sT}, {sT}, 1\ns_cmp_lg_u32 {sT}, 0\ns_cbranch_scc1 L_extra')
    for q in range(4): P(f'ds_write_b128 v{rw}, {vr(vSx + 16 + 4*q, 4)} offset:{q*1024}')
    for r in range(16): P(f'v_fmac_f32 v{vXF+r}, v{vSx+r}, v{G+r}')
    P.waitlg()
    P('s_barrier')
    for q in range(4): P(f'ds_read_b128 {vr(vSx + 16 + 4*q, 4)}, v{rw+1} offset:{q*1024}')
    for g in range(2):
        for r in range(8*g, 8*g + 8): P(f'v_fmac_f32 v{vXF+r}, v{vSx+16+r}, v{G+r}')
        for k in range(4*g, 4*g + 4): P(f'v_cvt_pk_bf16_f32 v{vX+k}, v{vXF+2*k}, v{vXF+2*k+1}')
        for k in range(2): P(f'v_permlane32_swap_b32 v{vX+4*g+k}, v{vX+4*g+2+k}')
        P(f'buffer_store_dwordx4 {vr(vX + 4*g, 4)}, v{oo}, {sOUT}, {sXo} offen offset:{32*g}')
    stamp(P, 'out')

def build(cfg):
    P, cold = Prog(), Prog()
    g1.entry(P, 'L_end')
    for srd, off in ((sWO, 16), (sWD, 48), (sOUT, 56)): srd_load(P, srd, off)
    srd_const(P, sWO, 512*512*2); srd_const(P, sWD, 1792*512*2); srd_const(P, sOUT, 2048*512*2)
    cfg['_pro2'] = lambda P: pro2(P, cfg)
    g1.g1_body(P, cold, cfg, lambda sfx: P2Ext(sfx, cold, cfg))
    g1.epilogue2(P)
    stamp(P, 'e2')
    bg = AttBg(cold, cfg)
    attn.pass1(P, cold, [], bg)
    stamp(P, 'a1')
    attn.pass2(P, cold, bg)
    if cfg.get('v'): print('att rest', len(bg.fl.q), len(bg.q.q))
    P.add(bg.fl.rest()); P.add(bg.q.rest())
    stamp(P, 'a2')
    dstage(P, cold, cfg)
    stamp_end(P)
    P('L_end:\ns_endpgm')
    P.add(cold.L)
    P('L_last:')
    L = finish(P.L)
    return L

if __name__ == '__main__':
    cfg = {}
    for a in sys.argv[2:]:
        k, _, v = a.partition('=')
        if k == 'st':
            STAMPS[0] = True; SEL.extend(v.split(','))
        elif k == 'dbg':
            STAMPS[0] = 'dbg'; SEL.extend(v.split(','))
        else: cfg[k] = int(v) if v else 1
    L = build(cfg)
    print('instructions', sum(1 for x in L if x.states()), 'estimate', estimate(L), 'nops', sum(1 for x in L if x.cls == 'nop'))
    src = '; @launch grid=(256,1,1) block=(256,1,1) lds=163840\n.amdgcn_target "amdgcn-amd-amdhsa--gfx950"\n' + kernel_text(NAME + '_kernel', L)
    open(sys.argv[1], 'w').write(src)
```

```python
from common import *

vT = 2
vL16 = 1
vXd = 10; vWd = 14
vXr = 22
vA, vB, vC = 26, 28, 30
vAugW, vAugR = 32, 33
vQo = 34
vSel = 36; vCs = 40; vSt = 52; vXa = 60; vAg = 64; vScq = 70; vWf = 72
vAcc2 = 96; vAcc1 = 160
vXr2 = 156
SLOT = 40960
LDS_AUG = 114688
def acc1(u, t): return vAcc1 + 32 * u + 16 * t
def acc2(u, t): return vAcc2 + 32 * u + 16 * t
def wf(par, u): return vWf + 12 * par + 4 * u
def xf(i, st, t): return 32 * i + 8 * st + 4 * t
BASE = {vA: 0, vB: 49152, vC: 98304}
W1 = [(vA, 0), (vA, SLOT), (vB, 2*SLOT - 49152), (vC, 3*SLOT - 98304)]
W2 = [(r, a - BASE[r], a) for r, a in ((vA, 0), (vA, 16384), (vA, 49152), (vB, 65536), (vB, 81920), (vC, 98304), (vC, 131072), (vC, 147456))]

def entry(P, endlabel):
    P(f's_cmp_ge_u32 s2, 256\ns_cbranch_scc1 {endlabel}')

def wave_ids(P):
    P(f'v_lshrrev_b32 v{vT}, 6, v0')
    P(f'v_and_b32 v0, 63, v0')
    P(f'v_readfirstlane_b32 {s.w}, v{vT}')
    P(f'v_lshlrev_b32 v{vL16}, 4, v0')

def nonce(P, vE):
    P(f'v_readfirstlane_b32 {s.n0}, v{vE}')
    P(f's_add_u32 {s.n0}, {s.n0}, 1')
    P(f's_mul_i32 {s.n1}, {s.n0}, 0x9e3779b1')
    P(f's_xor_b32 {s.n1}, {s.n1}, 0x7f4a7c15')

def kc_next(first=False):
    r = []
    if not first:
        r += [f's_add_u32 {s.kc}, {s.kc}, 1', f's_and_b32 {s.kc}, {s.kc}, 7']
    return r

def dma1(i):
    sl = i & 3
    tag = f'c{i}'
    pre = kc_next(i == 0) + [f's_lshl_b32 {s.kx}, {s.kc}, 7', f's_mul_i32 {s.k0}, {s.kc}, {64*3072}', f's_mul_i32 {s.k1}, {s.kc}, {s.str64}']
    seq = mk(pre)
    seq += mk(f's_add_u32 m0, {s.mx}, {sl*SLOT + 24576}')
    for j in range(4):
        seq += mk(f'buffer_load_dwordx4 v{vXd+j}, {sX}, {s.kx} offen offset:{1024*j} lds', tag)
    for u, (srd, so) in enumerate(((sQ, s.k0), (sU1, s.k1), (sU2, s.k1))):
        seq += mk(f's_add_u32 m0, {s.mw}, {sl*SLOT + u*8192}')
        for j in range(2):
            seq += mk(f'buffer_load_dwordx4 v{vWd+2*u+j}, {srd}, {so} offen offset:{1024*j} lds', tag)
    return seq

def dma2(i):
    tag = f'd{i}'
    seq = mk(kc_next() + [f's_mul_i32 {s.k2}, {s.kc}, {64*3584}'])
    for u, srd in enumerate((sG, sU)):
        seq += mk(f's_add_u32 m0, {s.mw}, {W2[i][2] + u*8192}')
        for j in range(2):
            seq += mk(f'buffer_load_dwordx4 v{vWd+6+j}, {srd}, {s.k2} offen offset:{1024*j} lds', tag)
    return seq

def rd1(i, st):
    sl = i & 3
    x = [f'ds_read_b128 {ar(xf(i, st, t), 4)}, v{(vXr if sl < 2 else vXr2)+st} offset:{(sl & 1)*SLOT + t*4096}' for t in range(2)]
    base = W1[sl][0] + (st >> 1)
    w = [[f'ds_read_b64_tr_b16 {vr(wf(st & 1, u) + 2*j, 2)}, v{base} offset:{W1[sl][1] + u*8192 + (st & 1)*2048 + j*512}'
          for j in range(2)] for u in range(3)]
    return x, w

def rd2(i, st):
    reg, imm, _ = W2[i]
    return [[f'ds_read_b64_tr_b16 {vr(wf(st & 1, u) + 2*j, 2)}, v{reg + (st >> 1)} offset:{imm + u*8192 + (st & 1)*2048 + j*512}'
             for j in range(2)] for u in range(2)]

def mf32(d, a, b, first):
    return f'v_mfma_f32_32x32x16_bf16 {vr(d, 16)}, {a}, {b}, {"0" if first else vr(d, 16)}'

def cs_split(u, off):
    c = vCs + 4 * u
    h, f, l = vT, vT + 2, vT + 6
    r = [f'v_cvt_pk_bf16_f32 v{h}, v{c}, v{c+1}', f'v_cvt_pk_bf16_f32 v{h+1}, v{c+2}, v{c+3}',
         f'v_lshlrev_b32 v{f}, 16, v{h}', f'v_and_b32 v{f+1}, 0xffff0000, v{h}',
         f'v_lshlrev_b32 v{f+2}, 16, v{h+1}', f'v_and_b32 v{f+3}, 0xffff0000, v{h+1}']
    r += [f'v_sub_f32 v{f+k}, v{c+k}, v{f+k}' for k in range(4)]
    r += [f'v_cvt_pk_bf16_f32 v{l}, v{f}, v{f+1}', f'v_cvt_pk_bf16_f32 v{l+1}, v{f+2}, v{f+3}',
          f'ds_write_b64 v{vAugW}, {vr(h, 2)} offset:{off + u*512}', f'ds_write_b64 v{vAugW}, {vr(l, 2)} offset:{off + u*512 + 64}']
    return r

def pack_store(d, voff, so_a, so_b, imm_a, imm_b, tag):
    r = []
    for half, (so, imm) in enumerate(((so_a, imm_a), (so_b, imm_b))):
        b = d + 8 * half
        r += mk([f'v_cvt_pk_bf16_f32 v{b+k}, v{b+2*k}, v{b+2*k+1}' for k in range(4)])
        r += mk(f'buffer_store_dwordx4 {vr(b, 4)}, v{voff}, {sWS}, {so} offen offset:{imm} sc1', tag)
    return r

def epi_qkv(u, voff, scale):
    r = []
    for t in range(2):
        d = acc1(u, t)
        r += mk([f'v_mul_f32 v{d+k}, v{scale(t)}, v{d+k}' for k in range(16)])
        r += pack_store(d, voff, S[f'qo{2*u}'], S[f'qo{2*u+1}'], 1024 * t, 1024 * t, 'st1')
    return r

def epi_h(g, uu, so, tag):
    r = []
    for t in range(2):
        r += mk([f'v_mul_f32 v{g(t)+k}, v{g(t)+k}, v{uu(t)+k}' for k in range(16)])
        r += pack_store(g(t), vL16, so(t), so(t), 0, 1024, tag)
    return r

def prologue(P, cfg):
    for srd, off in ((sX, 0), (sQ, 8), (sG, 32), (sU, 40), (sWS, 72)):
        srd_load(P, srd, off)
    stamp_begin(P)
    wave_ids(P)
    P(f'''s_and_b32 {s.t0}, s2, 7
    s_lshr_b32 {s.t1}, s2, 3
    s_and_b32 {s.rb}, {s.t0}, 1
    s_lshl_b32 {s.rb}, {s.rb}, 3
    s_and_b32 {s.t2}, {s.t1}, 7
    s_add_u32 {s.rb}, {s.rb}, {s.t2}
    s_lshr_b32 {s.t0}, {s.t0}, 1
    s_lshr_b32 {s.t1}, {s.t1}, 3
    s_lshl2_add_u32 {s.cg}, {s.t0}, {s.t1}
    s_and_b32 {s.th}, {s.w}, 1
    s_lshr_b32 {s.ch}, {s.w}, 1
    s_lshl_b32 {s.mx}, {s.w}, 12
    s_lshl_b32 {s.mw}, {s.w}, 11''')
    srd_const(P, sX, 2048*512*2); srd_const(P, sWS, WS_SIZE); srd_const(P, sQ, 512*1536*2)
    srd_const(P, sG, 512*1792*2); srd_const(P, sU, 512*1792*2)
    P('s_mov_b32 s15, 0x20000\ns_mov_b32 s19, 0x20000')
    P(f'''s_lshl_b32 {s.t2}, {s.rb}, 4
    s_add_u32 {s.t2}, {s.t2}, {s.cg}
    s_lshl2_add_u32 {s.t2}, {s.t2}, {s.w}
    s_lshl_b32 {s.t3}, {s.t2}, 11
    s_lshl_b32 {s.t2}, {s.t2}, 5
    s_add_u32 {sStat}, {s.t2}, {WS_STATS}''')
    P(f'''s_mul_i32 {s.t4}, {s.t0}, 3
    s_add_u32 {s.t5}, {s.t4}, {s.t1}
    s_add_u32 {s.t4}, {s.t4}, 12
    s_cmp_eq_u32 {s.t1}, 3
    s_cselect_b32 {s.isb}, 1, 0
    s_cselect_b32 {s.qo0}, {s.t4}, {s.t5}
    s_mov_b32 {s.str64}, {64*3072}
    s_cselect_b32 {s.str64}, {s.str64}, {64*3584}
    s_lshl_b32 s14, {s.str64}, 3
    s_mov_b32 s18, s14
    s_lshl_b32 {s.qo1}, {s.qo0}, 7
    s_add_u32 {s.qo2}, {s.qo1}, 128
    s_add_u32 {s.qo3}, {s.qo1}, 256
    s_cmp_eq_u32 {s.isb}, 1
    s_cselect_b32 {s.qo2}, {s.qo2}, {s.qo1}
    s_cselect_b32 {s.qo3}, {s.qo3}, {s.qo1}''')
    P(f's_mov_b32 {s.ho0}, {s.t5}')
    if cfg.get('rot') == 1:
        P(f's_lshr_b32 {s.kc}, {s.rb}, 1')
    elif cfg.get('rot') == 2:
        P(f's_lshl1_add_u32 {s.kc}, {s.cg}, {s.rb}\ns_and_b32 {s.kc}, {s.kc}, 7')
    elif cfg.get('rot') == 3:
        P(f's_and_b32 {s.kc}, {s.rb}, 7')
    elif cfg.get('rot') == 4:
        P(f's_and_b32 {s.kc}, {s.rb}, 3')
    else:
        P(f's_mov_b32 {s.kc}, 0')
    t = vT
    P(f'''v_lshrrev_b32 v{t}, 3, v0
    v_and_b32 v{t+1}, 7, v0
    v_lshrrev_b32 v{t+2}, 4, v0
    v_xor_b32 v{t+3}, v{t+1}, v{t+2}
    v_lshlrev_b32 v{t+3}, 4, v{t+3}
    v_lshl_add_u32 v{t+3}, v{t}, 10, v{t+3}
    s_lshl_b32 {s.t0}, {s.rb}, 17
    s_lshl_b32 {s.t1}, {s.w}, 15
    s_add_u32 {s.t0}, {s.t0}, {s.t1}
    v_add_u32 v{vXd}, {s.t0}, v{t+3}
    v_xor_b32 v{vXd+1}, 64, v{vXd}
    v_add_u32 v{vXd+2}, {2*7168}, v{vXd}
    v_add_u32 v{vXd+3}, {3*7168}, v{vXd+1}
    v_add_u32 v{vXd+1}, 7168, v{vXd+1}
    v_and_b32 v{t+2}, 1, v{t+2}
    v_lshlrev_b32 v{t+2}, 2, v{t+2}
    v_xor_b32 v{t+1}, v{t+1}, v{t+2}
    v_lshlrev_b32 v{t+1}, 4, v{t+1}
    s_lshl_b32 {s.t0}, {s.w}, 4
    v_add_u32 v{t}, {s.t0}, v{t}
    s_lshr_b32 {s.t1}, {s.str64}, 6
    v_mul_u32_u24 v{t+2}, 3072, v{t}
    v_mul_u32_u24 v{t+3}, {s.t1}, v{t}
    v_add3_u32 v{vWd}, v{t+2}, v{t+1}, {s.qo1}
    v_add3_u32 v{vWd+2}, v{t+3}, v{t+1}, {s.qo2}
    v_add3_u32 v{vWd+4}, v{t+3}, v{t+1}, {s.qo3}
    s_lshr_b32 {s.t1}, {s.str64}, 3
    s_sub_u32 {s.t1}, {s.t1}, 1024
    v_add_u32 v{vWd+1}, {8*3072-1024}, v{vWd}
    v_add_u32 v{vWd+3}, {s.t1}, v{vWd+2}
    v_add_u32 v{vWd+5}, {s.t1}, v{vWd+4}
    v_mov_b32 v{vAcc2+41}, 0''')
    P.waitlg()
    stamp_keep(P)
    if cfg.get('pro'): stamp(P, 1)
    P(f'''s_cmp_eq_u32 {s.isb}, 1
    s_cselect_b32 s12, s8, s20
    s_cselect_b32 s13, s9, s21
    s_cselect_b32 s16, s8, s24
    s_cselect_b32 s17, s9, s25''')
    R = vAcc2
    rows = mk(f'buffer_load_dword v{R+40}, v{R+41}, {sWS}, 0 offen sc1', 'ep') + \
        mk([f'buffer_load_dwordx4 {vr(R+4*k, 4)}, v{vL16}, {sX}, {s.t3} offen offset:{1024*k}' for k in range(2)], 'row')
    late = cfg.get('late', 1)
    if not late: P.add(rows)
    P.add(dma1(0))
    P(f'''s_add_u32 {s.t0}, {s.cg}, 12
    s_lshl_b32 {s.t0}, {s.t0}, 7
    v_mul_u32_u24 v{t+3}, 3584, v{t}
    v_add3_u32 v{vWd+6}, v{t+3}, v{t+1}, {s.t0}
    v_add_u32 v{vWd+7}, {8*3584-1024}, v{vWd+6}''')
    if not late: P.add(dma1(1))
    P(f'''v_and_b32 v{t}, 31, v0
    s_lshl_b32 {s.t0}, {s.th}, 6
    v_add_u32 v{t}, {s.t0}, v{t}
    v_lshrrev_b32 v{t+1}, 5, v0
    v_bfe_u32 v{t+2}, v0, 1, 3
    v_xor_b32 v{t+2}, v{t+2}, v{t+1}
    s_lshl_b32 {s.t0}, {s.th}, 2
    v_xor_b32 v{t+2}, {s.t0}, v{t+2}
    v_lshlrev_b32 v{t+2}, 4, v{t+2}
    v_lshl_add_u32 v{vXr}, v{t}, 7, v{t+2}
    v_add_u32 v{vXr}, 24576, v{vXr}
    v_xor_b32 v{vXr+1}, 32, v{vXr}
    v_xor_b32 v{vXr+2}, 64, v{vXr}
    v_xor_b32 v{vXr+3}, 0x60, v{vXr}''')
    for k in range(4): P(f'v_add_u32 v{vXr2+k}, {2*SLOT}, v{vXr+k}')
    P(f'''v_bfe_u32 v{t}, v0, 2, 2
    v_lshl_add_u32 v{t}, v{t+1}, 3, v{t}
    v_bfe_u32 v{t+2}, v0, 4, 1
    v_bfe_u32 v{t+3}, v0, 1, 1
    v_lshl_add_u32 v{t+3}, v{t+2}, 1, v{t+3}
    v_bfe_u32 v{t+4}, v0, 3, 1
    v_xor_b32 v{t+4}, {s.ch}, v{t+4}
    v_lshl_add_u32 v{t+3}, v{t+4}, 2, v{t+3}
    v_and_b32 v{t+4}, 1, v0
    v_lshlrev_b32 v{t+4}, 3, v{t+4}
    v_lshl_add_u32 v{t+3}, v{t+3}, 4, v{t+4}
    v_lshl_add_u32 v{t+3}, v{t}, 7, v{t+3}
    s_lshl_b32 {s.t0}, {s.th}, 12
    s_sub_u32 {s.t1}, 4096, {s.t0}
    v_add_u32 v{vA}, {s.t0}, v{t+3}
    v_add_u32 v{vA+1}, {s.t1}, v{t+3}
    v_add_u32 v{vB}, {BASE[vB]}, v{vA}
    v_add_u32 v{vB+1}, {BASE[vB]}, v{vA+1}
    v_add_u32 v{vC}, {BASE[vC]}, v{vA}
    v_add_u32 v{vC+1}, {BASE[vC]}, v{vA+1}''')
    P(f'''s_lshl_b32 {s.t0}, {s.ch}, 8
    s_add_u32 {s.t0}, {s.t0}, {LDS_AUG}
    s_lshl_b32 {s.t1}, {s.th}, 7
    s_add_u32 {s.t1}, {s.t1}, {s.t0}
    v_lshrrev_b32 v{t}, 4, v0
    v_lshlrev_b32 v{t}, 3, v{t}
    v_lshl_add_u32 v{t}, v{t+4}, 2, v{t}
    v_add_u32 v{t}, {s.t1}, v{t}
    v_lshlrev_b32 v{t+5}, 3, v0
    v_add_u32 v{t+5}, {LDS_AUG+4096}, v{t+5}
    v_and_b32 v{t+6}, 14, v0
    v_cmp_eq_u32 vcc, 0, v{t+6}
    v_bfe_u32 v{t+6}, v0, 2, 2
    v_and_b32 v{t+7}, 3, v0
    v_cndmask_b32 v{vAugW}, v{t+5}, v{t}, vcc
    v_lshlrev_b32 v{t+7}, 3, v{t+7}
    v_lshl_add_u32 v{t+7}, v{t+2}, 5, v{t+7}
    v_lshl_add_u32 v{t+7}, v{t+6}, 6, v{t+7}
    v_add_u32 v{vAugR}, {s.t0}, v{t+7}
    s_mov_b32 s82, 0x00020001
    s_mov_b32 s83, 0x00020001
    v_mov_b32 v{t}, 0x3f803f80
    v_cndmask_b32 v{vSel}, 0, v{t}, s[82:83]
    v_cndmask_b32 v{vSel+1}, 0, v{t}, s[82:83]
    v_cndmask_b32 v{vSel+2}, 0, v{t}, s[82:83]
    v_cndmask_b32 v{vSel+3}, 0, v{t}, s[82:83]''')
    P(f'''v_and_b32 v{t}, 31, v0
    v_lshlrev_b32 v{t}, 5, v{t}
    v_lshl_add_u32 v{vQo}, v{t+1}, 4, v{t}''')
    if not late:
        P.add(row_stats())
        P.add(dma1(2))
    if cfg.get('_pro2'): cfg['_pro2'](P)
    P(f'''s_lshl_b32 {s.t0}, {s.rb}, 1
    s_add_u32 {s.t0}, {s.t0}, {s.th}
    s_lshl_b32 {s.t1}, {s.t0}, 11
    s_lshl_b32 {s.t2}, {s.qo0}, 1
    s_add_u32 {s.t2}, {s.t2}, {s.ch}
    s_lshl_b32 {s.t2}, {s.t2}, 17
    s_add_u32 {s.t1}, {s.t1}, {s.t2}
    s_cmp_lt_u32 {s.qo0}, 8
    s_cselect_b32 {s.fac}, {f32(0.25*LOG2E)}, 1.0
    s_mov_b32 {s.t5}, {s.qo0}
    s_add_u32 {s.qo0}, {s.t1}, {WS_QKV}
    s_add_u32 {s.qo1}, {s.qo0}, 0x10000
    s_add_u32 {s.qo2}, {s.qo0}, 0x40000
    s_add_u32 {s.qo3}, {s.qo0}, 0x50000
    s_add_u32 {s.qo4}, {s.qo0}, 0x80000
    s_add_u32 {s.qo5}, {s.qo0}, 0x90000
    s_mul_i32 {s.t1}, {s.t0}, {2*112*1024}
    s_lshl_b32 {s.t2}, {s.ch}, 11
    s_add_u32 {s.t1}, {s.t1}, {s.t2}
    s_add_u32 {s.t1}, {s.t1}, {WS_H}
    s_lshl_b32 {s.ho0}, {s.ho0}, 12
    s_add_u32 {s.ho0}, {s.ho0}, {s.t1}
    s_add_u32 {s.ho1}, {s.ho0}, {112*1024}
    s_add_u32 {s.t2}, {s.cg}, 12
    s_lshl_b32 {s.t2}, {s.t2}, 12
    s_add_u32 {s.ho2}, {s.t2}, {s.t1}
    s_add_u32 {s.ho3}, {s.ho2}, {112*1024}
    s_lshl_b32 {s.t0}, {s.t0}, 10
    s_add_u32 {s.t4}, {s.t0}, {WS_STATS}''')
    if late:
        P.add(dma1(1))
        P.add(rows)

sStat = 's44'
def row_stats():
    P = Prog()
    R = vAcc2
    nonce(P, R + 40)
    E = R + 8
    for r in range(2):
        for k in range(4):
            P(f'v_lshlrev_b32 v{E+8*r+2*k}, 16, v{R+4*r+k}')
            P(f'v_and_b32 v{E+8*r+2*k+1}, 0xffff0000, v{R+4*r+k}')
    A = R + 24
    def reduce2():
        for m in ('quad_perm:[1,0,3,2] row_mask:0xf', 'quad_perm:[2,3,0,1] row_mask:0xf', 'row_half_mirror row_mask:0xf',
                  'row_mirror row_mask:0xf', 'row_bcast:15 row_mask:0xa', 'row_bcast:31 row_mask:0xc'):
            for r in range(2):
                P(f'v_add_f32_dpp v{A+r}, v{A+r}, v{A+r} {m} bank_mask:0xf')
    for r in range(2):
        P(f'v_add_f32 v{A+r}, v{E+8*r}, v{E+8*r+1}')
    for k in range(2, 8):
        for r in range(2):
            P(f'v_add_f32 v{A+r}, v{A+r}, v{E+8*r+k}')
    reduce2()
    for r in range(2):
        P(f'v_mul_f32 v{A+2+r}, {f32(1/512)}, v{A+r}')
    P(f'v_readlane_b32 {s.t0}, v{A+2}, 63\nv_readlane_b32 {s.t1}, v{A+3}, 63')
    G = R + 32
    for r in range(2):
        P(f'v_cvt_pk_bf16_f32 v{G+4*r}, -v{A+2+r}, -v{A+2+r}')
    P(f'v_cmp_eq_u32 s[82:83], 63, v0\nv_mov_b32 v{R+41}, 0x40000000')
    for k in range(8):
        for r in range(2):
            P(f'v_subrev_f32 v{E+8*r+k}, {(s.t0, s.t1)[r]}, v{E+8*r+k}')
    P(f'v_cndmask_b32 v{R+41}, v{R+41}, 0, s[82:83]')
    for k in range(8):
        for r in range(2):
            P(f'v_mul_f32 v{A+r}, v{E+8*r}, v{E+8*r}' if k == 0 else f'v_fmac_f32 v{A+r}, v{E+8*r+k}, v{E+8*r+k}')
    reduce2()
    for r in range(2):
        P(f'v_mul_f32 v{A+r}, {f32(1/512)}, v{A+r}')
    for r in range(2):
        P(f'v_add_f32 v{A+r}, {f32(1e-5)}, v{A+r}')
    for r in range(2):
        P(f'v_rsq_f32 v{G+4*r+1}, v{A+r}')
    for r in range(2):
        P(f'v_mov_b32 v{G+4*r+2}, {s.n0}\nv_mov_b32 v{G+4*r+3}, {s.n1}')
    for r in range(2):
        P(f'buffer_store_dwordx4 {vr(G+4*r, 4)}, v{R+41}, {sWS}, {sStat} offen offset:{16*r} sc1', 'stat')
    return P.L

def stats_load(tag='g'):
    t = vT + 7
    return mk([f'v_and_b32 v{t}, 0x1f0, v{vL16}']) + \
        mk([f'buffer_load_dwordx4 {vr(vSt+4*k, 4)}, v{t}, {sWS}, {s.t4} offen offset:{512*k} sc1' for k in range(2)], tag)

def stats_check(P, cold):
    P('L_stat_check:')
    P(f'''v_cmp_eq_u32 s[82:83], {s.n0}, v{vSt+2}
    v_cmp_eq_u32 s[84:85], {s.n1}, v{vSt+3}
    v_cmp_eq_u32 s[86:87], {s.n0}, v{vSt+6}
    v_cmp_eq_u32 vcc, {s.n1}, v{vSt+7}
    s_and_b64 s[82:83], s[82:83], s[84:85]
    s_and_b64 s[86:87], s[86:87], vcc
    s_and_b64 s[82:83], s[82:83], s[86:87]
    s_cmp_eq_u64 s[82:83], -1
    s_cbranch_scc0 L_stat_retry
    L_stat_ok:''')
    cold.add([forget()])
    cold(f'''L_stat_retry:
    s_sub_u32 {s.spin}, {s.spin}, 1
    s_cmp_le_i32 {s.spin}, 0
    s_cbranch_scc1 L_stat_ok''')
    cold.add(stats_load())
    cold('s_waitcnt vmcnt(0)\ns_branch L_stat_check')

def phase1(P, cold, cfg):
    P(f's_mov_b32 {s.spin}, 0x20000')
    if not cfg.get('pro'): stamp(P, 1)
    else: stamp(P, 6); stamp_end(P); P('s_endpgm')
    stamp(P, 'pro')
    P.waitvm('c0')
    P('s_barrier')
    stamp(P, 'c0')
    if not cfg.get('pro'): stamp(P, 2)
    x, w = rd1(0, 0)
    P.add(mk(x) + mk(w))
    dq = Pool(cfg.get('maxvm', 1), period=cfg.get('per1', 0), burst=cfg.get('burst1', 1))
    late = cfg.get('late', 1)
    if late: dq.put(dma1(2))
    dq.put(dma1(3))
    bg = Pool(); st_bg = Pool()
    for i in range(8):
        for st in range(4):
            if st == 3:
                need = (f'c{i+1}',) if i < 7 else ('d0', 'd1', 'd2', 'd3')
                n = max((j + 1 for j, x in enumerate(dq.q) if x.tag in need), default=0)
                if cfg.get('v') and dq.q: print('p1 queue', i, len(dq.q), 'forced', n)
                P.add(dq.q[:n]); del dq.q[:n]
                P.add(bg.rest())
                P.waitvm(f'c{i+1}' if i < 7 else ('d0', 'd1', 'd2', 'd3'))
                P.waitlg()
                if not cfg.get('nobar'): P('s_barrier')
                if cfg.get('nodma'): pass
                elif i < 4: dq.put(dma1(i + 4))
                else: dq.put(dma2(2*(i-4))); dq.put(dma2(2*(i-4) + 1))
            if i == 4 and st == 0 and cfg.get('mid'): stamp(P, 3)
            if st == 0: stamp(P, f'p1_{i}')
            first = (i == 0 and st == 0)
            mfs = []; fixed = {}
            nxt = (i, st + 1) if st < 3 else (i + 1, 0)
            if nxt[0] < 8:
                x, w = rd1(*nxt); rd = [x, w[0], w[1], w[2]]
                if cfg.get('nord'): rd = []
                if cfg.get('nox'): rd = rd[1:]
                if cfg.get('now'): rd = rd[:1]
            else:
                w = rd2(0, 0)
                ag = [f'ds_read_b64_tr_b16 {vr(vAg+2*u, 2)}, v{vAugR} offset:{u*512}' for u in range(3)]
                rd = [ag[:2], ag[2:], w[0], w[1]]
            for u in range(3):
                for t in range(2):
                    if rd: fixed[len(mfs)] = rd.pop(0)
                    mfs.append(mf32(acc1(u, t), vr(wf(st & 1, u), 4), ar(xf(i, st, t), 4), first))
                if st < 2 and not cfg.get('nocs'):
                    c = vr(vCs + 4*u, 4)
                    mfs.append(f'v_mfma_f32_16x16x32_bf16 {c}, {vr(wf(st & 1, u), 4)}, {vr(vSel, 4)}, {"0" if first else c}')
            if late and (i, st) == (cfg.get('sti', 1), 0): st_bg.put(row_stats())
            if (i, st) == (cfg.get('stl', 5), 0):
                assert not st_bg.q
                bg.put(stats_load())
            if i == 7 and st == 0:
                stats_check(P, cold)
                hm = vT + 7
                bg.put([f'v_cmp_gt_u32 vcc, 32, v0'] +
                       [f'v_mul_f32 v{vScq+t}, {s.fac}, v{vSt+4*t+1}' for t in range(2)] +
                       [f'v_cndmask_b32 v{vXa+2*t+k}, 0, v{vSt+4*t}, vcc' for t in range(2) for k in range(2)])
            timed = {}
            if i == 7 and st == 1: timed = {5: [(bg, cs_split(0, 0))], 8: [(bg, cs_split(1, 0))]}
            if i == 7 and st == 2: timed = {2: [(bg, cs_split(2, 0))]}
            weave(P, mfs, fixed, (dq, bg, st_bg), slack=4, timed=timed)
    mfs = [f'v_mfma_f32_32x32x8_bf16 {vr(acc1(u, t), 16)}, {vr(vAg+2*u, 2)}, {vr(vXa+2*t, 2)}, {vr(acc1(u, t), 16)}'
           for u in range(3) for t in range(2)]
    weave(P, mfs, {}, (dq, bg), slack=4)
    P.add(dq.rest()); P.add(bg.rest())

def phase2(P, isb, cfg, ext=None):
    bg = Pool()
    if not isb:
        bg.put(epi_qkv(0, vL16, lambda t: vScq + t))
        bg.put(epi_h(lambda t: acc1(1, t), lambda t: acc1(2, t), lambda t: S[f'ho{t}'], 'st1'))
    else:
        for u in range(3):
            bg.put(f's_cmp_ge_u32 {s.t5}, {16-u}')
            bg.put(f's_cselect_b64 vcc, -1, 0')
            bg.put(f'v_cndmask_b32 v{vXd+u}, v{vL16}, v{vQo}, vcc')
        for u in range(3):
            bg.put(epi_qkv(u, vXd + u, lambda t: vSt + 4*t + 1))
    lo = Pool()
    for i in range(8):
        for st in range(4):
            if st == 3 and i in (3, 7):
                P.add(lo.rest())
                if i == 3: P.waitvm(('d4', 'd5', 'd6', 'd7'))
                P.waitlg()
                P('s_barrier')
            if st == 0: stamp(P, f'p2_{i}')
            if ext: ext.at(P, i, st, bg)
            first = (i == 0 and st == 0)
            mfs = []; fixed = {}
            nxt = (i, st + 1) if st < 3 else (i + 1, 0)
            if nxt[0] < 8:
                rd = rd2(*nxt)
            else:
                rd = [[f'ds_read_b64_tr_b16 {vr(vAg+2*u, 2)}, v{vAugR} offset:{2048 + u*512}' for u in range(2)]]
            for u in range(2):
                for t in range(2):
                    if rd: fixed[len(mfs)] = rd.pop(0)
                    mfs.append(mf32(acc2(u, t), vr(wf(st & 1, u), 4), ar(xf(i, st, t), 4), first))
                if st < 2 and not cfg.get('nocs'):
                    c = vr(vCs + 4*u, 4)
                    mfs.append(f'v_mfma_f32_16x16x32_bf16 {c}, {vr(wf(st & 1, u), 4)}, {vr(vSel, 4)}, {"0" if first else c}')
            timed = {}
            if i == 7 and st == 1: timed = {5: [(lo, cs_split(0, 2048))]}
            if i == 7 and st == 2: timed = {2: [(lo, cs_split(1, 2048))]}
            weave(P, mfs, fixed, (lo,) + (ext.pools(bg) if ext else (bg,)), slack=4, timed=timed)
    assert not bg.q
    mfs = [f'v_mfma_f32_32x32x8_bf16 {vr(acc2(u, t), 16)}, {vr(vAg+2*u, 2)}, {vr(vXa+2*t, 2)}, {vr(acc2(u, t), 16)}'
           for t in range(2) for u in range(2)]
    weave(P, mfs, {}, ext.pools(bg) if ext else ())
    if ext: ext.done(P)

def epilogue2(P):
    P.add(epi_h(lambda t: acc2(0, t), lambda t: acc2(1, t), lambda t: S[f'ho{2+t}'], 'st2'))

def g1_body(P, cold, cfg, mkext=None):
    prologue(P, cfg)
    phase1(P, cold, cfg)
    box0, boxa = {}, {}
    stamp(P, 'p1')
    if not cfg.get('pro'): stamp(P, 4 if cfg.get('mid') else 3)
    P(f's_cmp_eq_u32 {s.isb}, 1')
    P.add([save(box0)])
    P('s_cbranch_scc1 L_p2b')
    phase2(P, False, cfg, mkext and mkext('a'))
    P.add([save(boxa)])
    P('s_branch L_p2done')
    P.add([restore(box0)])
    P('L_p2b:')
    phase2(P, True, cfg, mkext and mkext('b'))
    P.add([join(boxa)])
    P('L_p2done:')
    if not cfg.get('pro'): stamp(P, 5 if cfg.get('mid') else 4)
    stamp(P, 'p2')
    if mkext: return
    epilogue2(P)
    if cfg.get('mid'): stamp(P, 6)
```

```python
from common import *

class AR:
    L16 = 1; T = 2; J = 10; PM = 12; VA = 20; M = 30
    S = 32
    D0, A0, D1, A1 = 80, 96, 112, 128
    N = 144; O = 176; P = 208; PA = 216
    aQ = 0; aK = 8; aV = 48
    LDS_V = 0; LDS_ONE = 16384
    kpre = None
    sHead = 's62'; sQb = 's63'; sNb = 's64'; sKo = ('s65', 's66', 's67'); sQo = 's68'; sVo = 's69'; sOo = 's70'
    msk = ('s[82:83]', 's[84:85]', 's[86:87]')
R = AR
NINF = '0xff800000'
ITEMS = [(0, 1)] + [(t, b) for b in range(2, 8) for t in range(2)] + [(1, 8)]

def qk(d, b, t, c):
    return f'v_mfma_f32_32x32x16_bf16 {vr(d, 16)}, {ar(R.aK + 4*b, 4)}, {ar(R.aQ + 4*t, 4)}, {c}'
def pv(t, b, half, p, first=False):
    o = vr(R.O + 16*t, 16)
    return f'v_mfma_f32_32x32x16_bf16 {o}, {ar(R.aV + 8*b + 4*half, 4)}, {vr(p + 4*half, 4)}, {"0" if first else o}'

def ids(P):
    P(f'''s_and_b32 {R.sHead}, s2, 31
    s_lshr_b32 {R.sQb}, s2, 5
    s_lshl_b32 {s.spin}, {s.w}, 1
    s_sub_u32 {R.sNb}, 8, {s.spin}
    s_lshl3_add_u32 {s.spin}, {R.sQb}, {s.spin}
    s_lshl_b32 {R.sOo}, {s.spin}, 5
    s_add_u32 {R.sOo}, {R.sOo}, {R.sHead}
    s_lshl_b32 {R.sOo}, {R.sOo}, 10
    s_add_u32 {R.sOo}, {R.sOo}, {WS_O}
    s_lshl_b32 {R.sVo}, {R.sHead}, 6
    s_add_u32 {R.sQo}, {R.sVo}, {s.spin}
    s_lshl_b32 {R.sQo}, {R.sQo}, 10
    s_add_u32 {R.sQo}, {R.sQo}, {WS_QKV}
    s_add_u32 {R.sKo[0]}, {R.sQo}, {32*65536 - 8*1024}
    s_add_u32 {R.sKo[1]}, {R.sKo[0]}, 4096
    s_add_u32 {R.sKo[2]}, {R.sKo[0]}, 8192
    s_lshl_b32 {s.spin}, {R.sQb}, 1
    s_add_u32 {s.spin}, {s.spin}, {s.w}
    s_sub_u32 {s.spin}, {s.spin}, 2
    s_max_i32 {s.spin}, {s.spin}, 0
    s_lshl2_add_u32 {R.sVo}, {s.spin}, {R.sVo}
    s_lshl_b32 {R.sVo}, {R.sVo}, 10
    s_add_u32 {R.sVo}, {R.sVo}, {WS_QKV + 64*65536}''')

def loads(sc=' sc1'):
    r = []
    for t in range(2):
        r += mk(f'buffer_load_dwordx4 {ar(R.aQ + 4*t, 4)}, v{R.L16}, {sWS}, {R.sQo} offen offset:{1024*t}{sc}')
    for b in (8, 0, 9, 1, 2, 3, 4, 5, 6, 7):
        r += mk(f'buffer_load_dwordx4 {ar(R.aK + 4*b, 4)}, v{R.L16}, {sWS}, {R.sKo[b >> 2]} offen offset:{1024*(b & 3)}{sc}')
    r += mk(f's_lshl_b32 m0, {s.w}, 12' if R.LDS_V == 0 else f's_add_u32 m0, {s.mx}, {R.LDS_V}')
    r += mk('s_nop 0')
    for j in range(4):
        r += mk(f'buffer_load_dwordx4 v{R.L16}, {sWS}, {R.sVo} offen offset:{1024*j}{sc} lds', 'V')
    return r

def setup():
    t = R.T
    r = [f'v_mov_b32 v{t+k}, 0x3f803f80' for k in range(4)]
    r += [f'v_add_u32 v{t+4}, {R.LDS_ONE}, v{R.L16}', f'ds_write_b128 v{t+4}, {vr(t, 4)}']
    r += f'''v_lshrrev_b32 v{t+5}, 5, v0
    v_and_b32 v{t+6}, 15, v0
    v_lshlrev_b32 v{t+6}, 3, v{t+6}
    v_lshl_add_u32 v{t+6}, v{t+5}, 7, v{t+6}
    s_lshl_b32 {s.spin}, {s.w}, 11
    s_add_u32 {s.spin}, {s.spin}, {R.LDS_V}
    v_add_u32 v{t+7}, {s.spin}, v{t+6}
    v_xor_b32 v{t+6}, {R.LDS_ONE + 128}, v{t+6}
    v_and_b32 v{R.J}, 16, v0
    v_cmp_eq_u32 {R.msk[0]}, 0, v{R.J}
    v_mov_b32 v{R.J+1}, 1024
    v_and_b32 v{R.J}, 31, v0
    v_cndmask_b32 v{R.VA}, v{t+6}, v{t+7}, {R.msk[0]}
    v_cndmask_b32 v{t+7}, 0, v{R.J+1}, {R.msk[0]}
    v_lshlrev_b32 v{t+5}, 2, v{t+5}
    v_sub_u32 v{R.J}, v{R.J}, v{t+5}
    v_mov_b32 v{R.J+1}, 0xffff
    v_mov_b32 v{R.M}, {NINF}
    v_mov_b32 v{R.M+1}, {NINF}'''.split('\n')
    r += [f'v_add_u32 v{R.VA+b}, v{R.VA+b-1}, v{t+7}' for b in range(1, 10)]
    r += [f's_cmp_eq_u32 {R.sQb}, 0', 's_cselect_b64 vcc, -1, 0']
    return mk(r)

def vreads():
    r = []
    for b in (1, 2, 3, 4, 5, 6, 7, 8, 0, 9):
        for k in range(4):
            r.append(f'ds_read_b64_tr_b16 {ar(R.aV + 8*b + 2*k, 2)}, v{R.VA+b} offset:{256*k}')
    return r

def stub(P, cold, name, nb, body):
    P(f's_cbranch_vccnz L_{name}\nL_{name}_back:')
    cold(f'L_{name}:')
    if nb is not None:
        cold(f's_cmp_eq_u32 {R.sNb}, {nb}\ns_cbranch_scc0 L_{name}_back')
    cold.add(body)
    cold(f's_branch L_{name}_back')

def spread(head, mf, every):
    out = []; mf = list(mf)
    for i, x in enumerate(head):
        if i % every == 0 and mf: out.append(mf.pop(0))
        out.append(x)
    return out + mf

class NoBg:
    def gap(self, P, where): pass
def pass1(P, cold, pre, bg=NoBg()):
    sb = lambda k: R.S + 16 * (k % 3)
    if R.kpre:
        P.waitvm(('V', 'K')); P.waitlg(); P('s_barrier')
        stamp(P, 'atb')
        P.add(R.kpre)
    P.add(spread(pre, [qk(R.D0, 8, 0, '0'), qk(R.A0, 0, 0, '0'), qk(R.D1, 9, 1, '0'), qk(R.A1, 1, 1, '0')], 6))
    stub(P, cold, 'at_anti', None, [f'v_mov_b32 v{a+r}, {NINF}' for a in (R.A0, R.A1) for r in range(16)])
    mg = []
    c = lambda r: 8 * (r >> 2) + (r & 3)
    cmpi = lambda r: f'v_cmp_le_i32 {R.msk[r % 3]}, {c(r)}, v{R.J}'
    mg += [cmpi(0), cmpi(1)]
    for r in range(16):
        if r + 2 < 16: pass
        m = R.msk[r % 3]
        mg.append(f'v_cndmask_b32 v{R.D0+r}, v{R.A0+r}, v{R.D0+r}, {m}')
        mg.append(f'v_cndmask_b32 v{R.D1+r}, v{R.A1+r}, v{R.D1+r}, {m}')
        if r & 1 == 0: mg.append(f'v_cndmask_b32 v{R.PM + r//2}, 0, v{R.J+1}, {m}')
        else: mg.append(f'v_cndmask_b32 v{R.PM + r//2}, v{R.PM + r//2}, -1, {m}')
        if r + 2 < 16: mg.append(cmpi(r + 2))
    P.add(spread(mg, [qk(sb(k), ITEMS[k][1], ITEMS[k][0], '0') for k in range(2)], 30))
    if not R.kpre:
        P.waitvm('V'); P.waitlg(); P('s_barrier')
        stamp(P, 'atb')
    vq = vreads()
    for k, (t, b) in enumerate(ITEMS):
        if k + 2 < len(ITEMS): P(qk(sb(k + 2), ITEMS[k+2][1], ITEMS[k+2][0], '0'))
        for _ in range(3 if k + 2 < len(ITEMS) else 2):
            if vq: P(vq.pop(0))
        bg.gap(P, ('p1', k))
        if b % 2 == 0 and (t == 0 or b == 8):
            stub(P, cold, f'at_m{b}', b, [f'v_mov_b32 v{R.M}, {NINF}', f'v_mov_b32 v{R.M+1}, {NINF}'])
        for j in range(8):
            P(f'v_max3_f32 v{R.M+t}, v{R.M+t}, v{sb(k)+2*j}, v{sb(k)+2*j+1}')
    assert not vq
    for j in range(8):
        for t, d in enumerate((R.D0, R.D1)):
            P(f'v_max3_f32 v{R.M+t}, v{R.M+t}, v{d+2*j}, v{d+2*j+1}')
    P(f'''v_permlane32_swap_b32 v{R.M}, v{R.M+1}
    v_min_f32 v{R.N+16}, -v{R.M}, -v{R.M+1}
    v_min_f32 v{R.N}, -v{R.M}, -v{R.M+1}
    v_permlane32_swap_b32 v{R.N}, v{R.N+16}''')

def pass2(P0, cold, bg=NoBg()):
    class W:
        n = 0
        def __call__(self, x): self.add([x])
        def add(self, xs):
            for x in mk(xs):
                P0.add([x])
                if x.cls == 'mfma':
                    bg.gap(P0, ('p2', self.n)); self.n += 1
    P = W()
    sb = lambda k: R.S + 16 * (k & 1)
    n = lambda t: vr(R.N + 16*t, 16)
    for r in range(1, 16): P(f'v_mov_b32 v{R.N+r}, v{R.N}')
    P(qk(sb(0), ITEMS[0][1], 0, n(0)))
    for r in range(1, 16): P(f'v_mov_b32 v{R.N+16+r}, v{R.N+16}')
    sub = [f'v_add_f32 v{d+r}, v{d+r}, v{R.N+16*t}' for t, d in enumerate((R.D0, R.D1)) for r in range(16)]
    P.add(sub)
    ex = lambda x: f'v_exp_f32 v{x}, v{x}'
    cv = lambda p, x: f'v_cvt_pk_bf16_f32 v{p}, v{x}, v{x+1}'
    pend = []
    seen = set()
    for k, (t, b) in enumerate(ITEMS):
        x = sb(k)
        if k + 1 < len(ITEMS): P(qk(sb(k + 1), ITEMS[k+1][1], ITEMS[k+1][0], n(ITEMS[k+1][0])))
        P.add([ex(x + r) for r in range(3)]); P.add(pend); pend = []
        P.add([ex(x + r) for r in range(3, 8)])
        P.add([cv(R.P + j, x + 2*j) for j in range(4)])
        P.add([ex(x + 8), ex(x + 9)])
        if b % 2 == 0 and (t == 0 or b == 8):
            stub(P, cold, f'at_o{b}', b, [f'v_mov_b32 v{R.O+r}, 0' for r in range(32)])
        P(pv(t, b, 0, R.P, t not in seen)); seen.add(t)
        P.add([ex(x + r) for r in range(10, 16)])
        P.add([cv(R.P + j, x + 2*j) for j in range(4, 8)])
        pend = [pv(t, b, 1, R.P)]
    for t, x in enumerate((R.D0, R.D1)):
        def half(h):
            js = range(4*h, 4*h + 4)
            return ([cv(R.PA + j, x + 2*j) for j in js] + [f'v_and_b32 v{R.P+j}, v{R.PM+j}, v{R.PA+j}' for j in js] +
                    [f'v_xor_b32 v{R.PA+j}, v{R.P+j}, v{R.PA+j}' for j in js])
        P.add([ex(x + r) for r in range(2)]); P.add(pend[:1])
        P.add([ex(x + r) for r in range(2, 5)]); P.add(pend[1:])
        P.add([ex(x + r) for r in range(5, 8)])
        P.add(half(0))
        P.add([ex(x + 8), ex(x + 9)])
        P(pv(t, t + 8, 0, R.P))
        P.add([ex(x + r) for r in range(10, 13)])
        P(pv(t, t, 0, R.PA))
        P.add([ex(x + r) for r in range(13, 16)])
        P.add(half(1))
        pend = [pv(t, t + 8, 1, R.P), pv(t, t, 1, R.PA)]
    def fin(t, sc=' sc1'):
        o = R.O + 16*t
        r = [f'v_rcp_f32 v{o+8}, v{o+8}', 's_nop 0'] + [f'v_mul_f32 v{o+k}, v{o+8}, v{o+k}' for k in range(8)]
        r += [f'v_cvt_pk_bf16_f32 v{o+k}, v{o+2*k}, v{o+2*k+1}' for k in range(4)]
        return mk(r) + mk(f'buffer_store_dwordx4 {vr(o, 4)}, v{R.L16}, {sWS}, {R.sOo} offen{sc}', 'sto')
    f0 = fin(0)
    P.add(f0[:2]); P(pend[0]); P.add(f0[2:8]); P(pend[1]); P.add(f0[8:])
    P(f's_add_u32 {R.sOo}, {R.sOo}, 32768')
    P.add(fin(1))

def standalone(P, cold, cfg):
    from g1 import wave_ids
    srd_load(P, sWS, 72)
    stamp_begin(P)
    wave_ids(P)
    srd_const(P, sWS, WS_SIZE)
    ids(P)
    P.waitlg()
    stamp_keep(P)
    P.add(loads())
    su = setup()
    P.add(su[:-14])
    stamp(P, 1)
    pass1(P, cold, su[-14:])
    stamp(P, 2)
    pass2(P, cold)
    stamp(P, 3)
    P(f'''s_or_b32 {s.spin}, s2, {s.w}
    s_cmp_eq_u32 {s.spin}, 0
    s_cbranch_scc0 L_nobump
    v_mov_b32 v2, 0
    buffer_load_dword v3, v2, {sWS}, 0 offen sc1
    v_add_u32 v3, 1, v3
    buffer_store_dword v3, v2, {sWS}, 0 offen sc1
    L_nobump:''')
```

```python
from asmlib import *

WS_EPOCH = 0x0
WS_STATS = 0x10000
WS_FLAGQ = 0x20000
WS_FLAGE = 0x40000
WS_FLAGH = 0x60000
WS_FLAGO = 0x80000
WS_STAMP = 0xc0000
WS_QKV   = 0x100000
WS_O     = 0x700000
WS_H     = 0x900000
WS_SIZE  = 0x1000000

sX, sQ, sU1, sU2, sG, sU, sWS, sWD, sWO, sOUT, sDBG = (f's[{i}:{i+3}]' for i in range(4, 48, 4))
S = {}
def _s(names, start):
    for i, n in enumerate(names.split()):
        S[n] = f's{start + i}'
_s('w th ch rb cg isb str64 kc kx k0 k1 k2 n0 n1 t0 t1 t2 t3 t4 t5 qo0 qo1 qo2 qo3 qo4 qo5 ho0 ho1 ho2 ho3 fac '
   'mx mw spin', 48)
S['m0a'] = 's[82:83]'; S['m0b'] = 's[84:85]'; S['m0c'] = 's[86:87]'
class _NS:
    def __init__(self, d): self.__dict__.update(d)
s = _NS(S)

def vr(b, n=1):
    return f'v{b}' if n == 1 else f'v[{b}:{b+n-1}]'
def ar(b, n=1):
    return f'a{b}' if n == 1 else f'a[{b}:{b+n-1}]'

LOG2E = 1.4426950408889634
import struct
def f32(x):
    return '0x%08x' % struct.unpack('<I', struct.pack('<f', x))[0]

def srd_const(P, srd, size):
    b = int(srd[2:srd.index(':')])
    P(f's_mov_b32 s{b+2}, {hex(size)}')
    P(f's_mov_b32 s{b+3}, 0x20000')
def srd_load(P, srd, off):
    b = int(srd[2:srd.index(':')])
    P(f's_load_dwordx2 s[{b}:{b+1}], s[0:1], {off}')

KD = '''.section .rodata,"a"
.p2align 6
.amdhsa_kernel {name}
  .amdhsa_next_free_vgpr 512
  .amdhsa_next_free_sgpr 102
  .amdhsa_accum_offset 256
  .amdhsa_group_segment_fixed_size 0
  .amdhsa_kernarg_size 80
  .amdhsa_user_sgpr_count 2
  .amdhsa_user_sgpr_kernarg_segment_ptr 1
  .amdhsa_system_sgpr_workgroup_id_x 1
  .amdhsa_float_denorm_mode_32 3
.end_amdhsa_kernel
'''
def kernel_text(name, L, lead=None):
    pad = '' if lead is None else '.p2align 12\n' + 's_endpgm\n.p2align 8\n' * lead
    return (f'.text\n{pad}.globl {name}\n.p2align 8\n.type {name},@function\n{name}:\n' + text(L) + KD.format(name=name))

STAMPS = [False]
aStamp = None
def stamp_begin(P):
    if not STAMPS[0]: return
    P('s_memtime s[98:99]\ns_memrealtime s[100:101]')
def stamp_keep(P):
    if not STAMPS[0]: return
    P('s_mov_b32 s3, s98\ns_mov_b32 s99, s100')
SEL = []
def stamp(P, idx):
    if not STAMPS[0]: return
    if isinstance(idx, str):
        if idx not in SEL: return
        idx = SEL.index(idx) + 1
    elif SEL: return
    if idx == 6: P('s_memtime s[100:101]')
    else: P(f's_memtime s[{86+2*idx}:{87+2*idx}]')
def stamp_end(P):
    if not STAMPS[0]: return
    P('s_waitcnt vmcnt(0) lgkmcnt(0)')
    P('s_mov_b32 s98, s100')
    P('s_memtime s[82:83]\ns_memrealtime s[84:85]\ns_waitcnt lgkmcnt(0)')
    if STAMPS[0] == 'dbg':
        P('s_load_dwordx2 s[44:45], s[0:1], 64\ns_mov_b32 s46, 256\ns_mov_b32 s47, 0x20000')
        seq = ['s3', 's88', 's90', 's92', 's94', 's96', 's98', 's82']
        for k in range(7): P(f's_sub_u32 s86, {seq[k+1]}, {seq[k]}\nv_mov_b32 v{16+k}, s86')
        P('s_sub_u32 s86, s84, s99\nv_mov_b32 v23, s86')
        P(f's_and_b32 s86, s2, 127\ns_or_b32 s86, s86, {s.w}\ns_lshr_b32 s87, s2, 2\nv_mov_b32 v2, 0\ns_waitcnt lgkmcnt(0)')
        P('s_cmp_eq_u32 s86, 0\ns_cbranch_scc0 L_nodbg')
        for k in range(2): P(f'buffer_store_dwordx4 v[{16+4*k}:{19+4*k}], v2, s[44:47], s87 offen offset:{16*k}')
        P('L_nodbg:')
        return
    for k in range(3): P(f'v_readlane_b32 s{85+k}, v25, {k}')
    P('v_readlane_b32 s81, v25, 3')
    regs = ['s3', 's88', 's90', 's92', 's94', 's96', 's98', 's82', 's85', 's86', 's87', 's81'] + ['0'] * 2 + ['s99', 's84']
    for k, r in enumerate(regs): P(f'v_mov_b32 v{16+k}, {r}')
    P(f's_lshl2_add_u32 s82, s2, {s.w}\ns_lshl_b32 s82, s82, 7\ns_add_u32 s82, s82, {WS_STAMP}\nv_mov_b32 v2, 0')
    for k in range(4): P(f'buffer_store_dwordx4 v[{16+4*k}:{19+4*k}], v2, {sWS}, s82 offen offset:{16*k}')
```

```python
from common import *

vT = 2
vL16 = 1
vXd = 10; vWd = 14
vXr = 22
vA, vB, vC = 26, 28, 30
vAugW, vAugR = 32, 33
vQo = 34
vSel = 36; vCs = 40; vSt = 52; vXa = 60; vAg = 64; vScq = 70; vWf = 72
vAcc2 = 96; vAcc1 = 160
vXr2 = 156
SLOT = 40960
LDS_AUG = 114688
def acc1(u, t): return vAcc1 + 32 * u + 16 * t
def acc2(u, t): return vAcc2 + 32 * u + 16 * t
def wf(par, u): return vWf + 12 * par + 4 * u
def xf(i, st, t): return 32 * i + 8 * st + 4 * t
BASE = {vA: 0, vB: 49152, vC: 98304}
W1 = [(vA, 0), (vA, SLOT), (vB, 2*SLOT - 49152), (vC, 3*SLOT - 98304)]
W2 = [(r, a - BASE[r], a) for r, a in ((vA, 0), (vA, 16384), (vA, 49152), (vB, 65536), (vB, 81920), (vC, 98304), (vC, 131072), (vC, 147456))]

def entry(P, endlabel):
    P(f's_cmp_ge_u32 s2, 256\ns_cbranch_scc1 {endlabel}')

def wave_ids(P):
    P(f'v_lshrrev_b32 v{vT}, 6, v0')
    P(f'v_and_b32 v0, 63, v0')
    P(f'v_readfirstlane_b32 {s.w}, v{vT}')
    P(f'v_lshlrev_b32 v{vL16}, 4, v0')

def nonce(P, vE):
    P(f'v_readfirstlane_b32 {s.n0}, v{vE}')
    P(f's_add_u32 {s.n0}, {s.n0}, 1')
    P(f's_mul_i32 {s.n1}, {s.n0}, 0x9e3779b1')
    P(f's_xor_b32 {s.n1}, {s.n1}, 0x7f4a7c15')

def kc_next(first=False):
    r = []
    if not first:
        r += [f's_add_u32 {s.kc}, {s.kc}, 1', f's_and_b32 {s.kc}, {s.kc}, 7']
    return r

def dma1(i):
    sl = i & 3
    tag = f'c{i}'
    pre = kc_next(i == 0) + [f's_lshl_b32 {s.kx}, {s.kc}, 7', f's_mul_i32 {s.k0}, {s.kc}, {64*3072}', f's_mul_i32 {s.k1}, {s.kc}, {s.str64}']
    seq = mk(pre)
    seq += mk(f's_add_u32 m0, {s.mx}, {sl*SLOT + 24576}')
    for j in range(4):
        seq += mk(f'buffer_load_dwordx4 v{vXd+j}, {sX}, {s.kx} offen offset:{1024*j} lds', tag)
    for u, (srd, so) in enumerate(((sQ, s.k0), (sU1, s.k1), (sU2, s.k1))):
        seq += mk(f's_add_u32 m0, {s.mw}, {sl*SLOT + u*8192}')
        for j in range(2):
            seq += mk(f'buffer_load_dwordx4 v{vWd+2*u+j}, {srd}, {so} offen offset:{1024*j} lds', tag)
    return seq

def dma2(i):
    tag = f'd{i}'
    seq = mk(kc_next() + [f's_mul_i32 {s.k2}, {s.kc}, {64*3584}'])
    for u, srd in enumerate((sG, sU)):
        seq += mk(f's_add_u32 m0, {s.mw}, {W2[i][2] + u*8192}')
        for j in range(2):
            seq += mk(f'buffer_load_dwordx4 v{vWd+6+j}, {srd}, {s.k2} offen offset:{1024*j} lds', tag)
    return seq

def rd1(i, st):
    sl = i & 3
    x = [f'ds_read_b128 {ar(xf(i, st, t), 4)}, v{(vXr if sl < 2 else vXr2)+st} offset:{(sl & 1)*SLOT + t*4096}' for t in range(2)]
    base = W1[sl][0] + (st >> 1)
    w = [[f'ds_read_b64_tr_b16 {vr(wf(st & 1, u) + 2*j, 2)}, v{base} offset:{W1[sl][1] + u*8192 + (st & 1)*2048 + j*512}'
          for j in range(2)] for u in range(3)]
    return x, w

def rd2(i, st):
    reg, imm, _ = W2[i]
    return [[f'ds_read_b64_tr_b16 {vr(wf(st & 1, u) + 2*j, 2)}, v{reg + (st >> 1)} offset:{imm + u*8192 + (st & 1)*2048 + j*512}'
             for j in range(2)] for u in range(2)]

def mf32(d, a, b, first):
    return f'v_mfma_f32_32x32x16_bf16 {vr(d, 16)}, {a}, {b}, {"0" if first else vr(d, 16)}'

def cs_split(u, off):
    c = vCs + 4 * u
    h, f, l = vT, vT + 2, vT + 6
    r = [f'v_cvt_pk_bf16_f32 v{h}, v{c}, v{c+1}', f'v_cvt_pk_bf16_f32 v{h+1}, v{c+2}, v{c+3}',
         f'v_lshlrev_b32 v{f}, 16, v{h}', f'v_and_b32 v{f+1}, 0xffff0000, v{h}',
         f'v_lshlrev_b32 v{f+2}, 16, v{h+1}', f'v_and_b32 v{f+3}, 0xffff0000, v{h+1}']
    r += [f'v_sub_f32 v{f+k}, v{c+k}, v{f+k}' for k in range(4)]
    r += [f'v_cvt_pk_bf16_f32 v{l}, v{f}, v{f+1}', f'v_cvt_pk_bf16_f32 v{l+1}, v{f+2}, v{f+3}',
          f'ds_write_b64 v{vAugW}, {vr(h, 2)} offset:{off + u*512}', f'ds_write_b64 v{vAugW}, {vr(l, 2)} offset:{off + u*512 + 64}']
    return r

def pack_store(d, voff, so_a, so_b, imm_a, imm_b, tag):
    r = []
    for half, (so, imm) in enumerate(((so_a, imm_a), (so_b, imm_b))):
        b = d + 8 * half
        r += mk([f'v_cvt_pk_bf16_f32 v{b+k}, v{b+2*k}, v{b+2*k+1}' for k in range(4)])
        r += mk(f'buffer_store_dwordx4 {vr(b, 4)}, v{voff}, {sWS}, {so} offen offset:{imm} sc1', tag)
    return r

def epi_qkv(u, voff, scale):
    r = []
    for t in range(2):
        d = acc1(u, t)
        r += mk([f'v_mul_f32 v{d+k}, v{scale(t)}, v{d+k}' for k in range(16)])
        r += pack_store(d, voff, S[f'qo{2*u}'], S[f'qo{2*u+1}'], 1024 * t, 1024 * t, 'st1')
    return r

def epi_h(g, uu, so, tag):
    r = []
    for t in range(2):
        r += mk([f'v_mul_f32 v{g(t)+k}, v{g(t)+k}, v{uu(t)+k}' for k in range(16)])
        r += pack_store(g(t), vL16, so(t), so(t), 0, 1024, tag)
    return r

def hook(P, cfg, pos):
    if cfg.get('_hook'): cfg['_hook'](P, pos)

def prologue(P, cfg):
    for srd, off in ((sX, 0), (sQ, 8), (sG, 32), (sU, 40), (sWS, 72)):
        srd_load(P, srd, off)
    stamp_begin(P)
    hook(P, cfg, 0)
    wave_ids(P)
    P(f'''s_and_b32 {s.t0}, s2, 7
    s_lshr_b32 {s.t1}, s2, 3
    s_and_b32 {s.rb}, {s.t0}, 1
    s_lshl_b32 {s.rb}, {s.rb}, 3
    s_and_b32 {s.t2}, {s.t1}, 7
    s_add_u32 {s.rb}, {s.rb}, {s.t2}
    s_lshr_b32 {s.t0}, {s.t0}, 1
    s_lshr_b32 {s.t1}, {s.t1}, 3
    s_lshl2_add_u32 {s.cg}, {s.t0}, {s.t1}
    s_and_b32 {s.th}, {s.w}, 1
    s_lshr_b32 {s.ch}, {s.w}, 1
    s_lshl_b32 {s.mx}, {s.w}, 12
    s_lshl_b32 {s.mw}, {s.w}, 11''')
    srd_const(P, sX, 2048*512*2); srd_const(P, sWS, WS_SIZE); srd_const(P, sQ, 512*1536*2)
    srd_const(P, sG, 512*1792*2); srd_const(P, sU, 512*1792*2)
    P('s_mov_b32 s15, 0x20000\ns_mov_b32 s19, 0x20000')
    P(f'''s_lshl_b32 {s.t2}, {s.rb}, 4
    s_add_u32 {s.t2}, {s.t2}, {s.cg}
    s_lshl2_add_u32 {s.t2}, {s.t2}, {s.w}
    s_lshl_b32 {s.t3}, {s.t2}, 11
    s_lshl_b32 {s.t2}, {s.t2}, 5
    s_add_u32 {sStat}, {s.t2}, {WS_STATS}''')
    P(f'''s_mul_i32 {s.t4}, {s.t0}, 3
    s_add_u32 {s.t5}, {s.t4}, {s.t1}
    s_add_u32 {s.t4}, {s.t4}, 12
    s_cmp_eq_u32 {s.t1}, 3
    s_cselect_b32 {s.isb}, 1, 0
    s_cselect_b32 {s.qo0}, {s.t4}, {s.t5}
    s_mov_b32 {s.str64}, {64*3072}
    s_cselect_b32 {s.str64}, {s.str64}, {64*3584}
    s_lshl_b32 s14, {s.str64}, 3
    s_mov_b32 s18, s14
    s_lshl_b32 {s.qo1}, {s.qo0}, 7
    s_add_u32 {s.qo2}, {s.qo1}, 128
    s_add_u32 {s.qo3}, {s.qo1}, 256
    s_cmp_eq_u32 {s.isb}, 1
    s_cselect_b32 {s.qo2}, {s.qo2}, {s.qo1}
    s_cselect_b32 {s.qo3}, {s.qo3}, {s.qo1}''')
    P(f's_mov_b32 {s.ho0}, {s.t5}')
    if cfg.get('rot') == 1:
        P(f's_lshr_b32 {s.kc}, {s.rb}, 1')
    elif cfg.get('rot') == 2:
        P(f's_lshl1_add_u32 {s.kc}, {s.cg}, {s.rb}\ns_and_b32 {s.kc}, {s.kc}, 7')
    elif cfg.get('rot') == 3:
        P(f's_and_b32 {s.kc}, {s.rb}, 7')
    elif cfg.get('rot') == 4:
        P(f's_and_b32 {s.kc}, {s.rb}, 3')
    else:
        P(f's_mov_b32 {s.kc}, 0')
    t = vT
    P(f'''v_lshrrev_b32 v{t}, 3, v0
    v_and_b32 v{t+1}, 7, v0
    v_lshrrev_b32 v{t+2}, 4, v0
    v_xor_b32 v{t+3}, v{t+1}, v{t+2}
    v_lshlrev_b32 v{t+3}, 4, v{t+3}
    v_lshl_add_u32 v{t+3}, v{t}, 10, v{t+3}
    s_lshl_b32 {s.t0}, {s.rb}, 17
    s_lshl_b32 {s.t1}, {s.w}, 15
    s_add_u32 {s.t0}, {s.t0}, {s.t1}
    v_add_u32 v{vXd}, {s.t0}, v{t+3}
    v_xor_b32 v{vXd+1}, 64, v{vXd}
    v_add_u32 v{vXd+2}, {2*7168}, v{vXd}
    v_add_u32 v{vXd+3}, {3*7168}, v{vXd+1}
    v_add_u32 v{vXd+1}, 7168, v{vXd+1}
    v_and_b32 v{t+2}, 1, v{t+2}
    v_lshlrev_b32 v{t+2}, 2, v{t+2}
    v_xor_b32 v{t+1}, v{t+1}, v{t+2}
    v_lshlrev_b32 v{t+1}, 4, v{t+1}
    s_lshl_b32 {s.t0}, {s.w}, 4
    v_add_u32 v{t}, {s.t0}, v{t}
    s_lshr_b32 {s.t1}, {s.str64}, 6
    v_mul_u32_u24 v{t+2}, 3072, v{t}
    v_mul_u32_u24 v{t+3}, {s.t1}, v{t}
    v_add3_u32 v{vWd}, v{t+2}, v{t+1}, {s.qo1}
    v_add3_u32 v{vWd+2}, v{t+3}, v{t+1}, {s.qo2}
    v_add3_u32 v{vWd+4}, v{t+3}, v{t+1}, {s.qo3}
    s_lshr_b32 {s.t1}, {s.str64}, 3
    s_sub_u32 {s.t1}, {s.t1}, 1024
    v_add_u32 v{vWd+1}, {8*3072-1024}, v{vWd}
    v_add_u32 v{vWd+3}, {s.t1}, v{vWd+2}
    v_add_u32 v{vWd+5}, {s.t1}, v{vWd+4}
    v_mov_b32 v{vAcc2+41}, 0''')
    P.waitlg()
    stamp_keep(P)
    if cfg.get('pro'): stamp(P, 1)
    P(f'''s_cmp_eq_u32 {s.isb}, 1
    s_cselect_b32 s12, s8, s20
    s_cselect_b32 s13, s9, s21
    s_cselect_b32 s16, s8, s24
    s_cselect_b32 s17, s9, s25''')
    R = vAcc2
    rows = mk(f'buffer_load_dword v{R+40}, v{R+41}, {sWS}, 0 offen sc1', 'ep') + \
        mk([f'buffer_load_dwordx4 {vr(R+4*k, 4)}, v{vL16}, {sX}, {s.t3} offen offset:{1024*k}' for k in range(2)], 'row')
    late = cfg.get('late', 1)
    if not late: P.add(rows)
    hook(P, cfg, 1)
    P.add(dma1(0))
    P(f'''s_add_u32 {s.t0}, {s.cg}, 12
    s_lshl_b32 {s.t0}, {s.t0}, 7
    v_mul_u32_u24 v{t+3}, 3584, v{t}
    v_add3_u32 v{vWd+6}, v{t+3}, v{t+1}, {s.t0}
    v_add_u32 v{vWd+7}, {8*3584-1024}, v{vWd+6}''')
    if not late: P.add(dma1(1))
    P(f'''v_and_b32 v{t}, 31, v0
    s_lshl_b32 {s.t0}, {s.th}, 6
    v_add_u32 v{t}, {s.t0}, v{t}
    v_lshrrev_b32 v{t+1}, 5, v0
    v_bfe_u32 v{t+2}, v0, 1, 3
    v_xor_b32 v{t+2}, v{t+2}, v{t+1}
    s_lshl_b32 {s.t0}, {s.th}, 2
    v_xor_b32 v{t+2}, {s.t0}, v{t+2}
    v_lshlrev_b32 v{t+2}, 4, v{t+2}
    v_lshl_add_u32 v{vXr}, v{t}, 7, v{t+2}
    v_add_u32 v{vXr}, 24576, v{vXr}
    v_xor_b32 v{vXr+1}, 32, v{vXr}
    v_xor_b32 v{vXr+2}, 64, v{vXr}
    v_xor_b32 v{vXr+3}, 0x60, v{vXr}''')
    for k in range(4): P(f'v_add_u32 v{vXr2+k}, {2*SLOT}, v{vXr+k}')
    P(f'''v_bfe_u32 v{t}, v0, 2, 2
    v_lshl_add_u32 v{t}, v{t+1}, 3, v{t}
    v_bfe_u32 v{t+2}, v0, 4, 1
    v_bfe_u32 v{t+3}, v0, 1, 1
    v_lshl_add_u32 v{t+3}, v{t+2}, 1, v{t+3}
    v_bfe_u32 v{t+4}, v0, 3, 1
    v_xor_b32 v{t+4}, {s.ch}, v{t+4}
    v_lshl_add_u32 v{t+3}, v{t+4}, 2, v{t+3}
    v_and_b32 v{t+4}, 1, v0
    v_lshlrev_b32 v{t+4}, 3, v{t+4}
    v_lshl_add_u32 v{t+3}, v{t+3}, 4, v{t+4}
    v_lshl_add_u32 v{t+3}, v{t}, 7, v{t+3}
    s_lshl_b32 {s.t0}, {s.th}, 12
    s_sub_u32 {s.t1}, 4096, {s.t0}
    v_add_u32 v{vA}, {s.t0}, v{t+3}
    v_add_u32 v{vA+1}, {s.t1}, v{t+3}
    v_add_u32 v{vB}, {BASE[vB]}, v{vA}
    v_add_u32 v{vB+1}, {BASE[vB]}, v{vA+1}
    v_add_u32 v{vC}, {BASE[vC]}, v{vA}
    v_add_u32 v{vC+1}, {BASE[vC]}, v{vA+1}''')
    P(f'''s_lshl_b32 {s.t0}, {s.ch}, 8
    s_add_u32 {s.t0}, {s.t0}, {LDS_AUG}
    s_lshl_b32 {s.t1}, {s.th}, 7
    s_add_u32 {s.t1}, {s.t1}, {s.t0}
    v_lshrrev_b32 v{t}, 4, v0
    v_lshlrev_b32 v{t}, 3, v{t}
    v_lshl_add_u32 v{t}, v{t+4}, 2, v{t}
    v_add_u32 v{t}, {s.t1}, v{t}
    v_lshlrev_b32 v{t+5}, 3, v0
    v_add_u32 v{t+5}, {LDS_AUG+4096}, v{t+5}
    v_and_b32 v{t+6}, 14, v0
    v_cmp_eq_u32 vcc, 0, v{t+6}
    v_bfe_u32 v{t+6}, v0, 2, 2
    v_and_b32 v{t+7}, 3, v0
    v_cndmask_b32 v{vAugW}, v{t+5}, v{t}, vcc
    v_lshlrev_b32 v{t+7}, 3, v{t+7}
    v_lshl_add_u32 v{t+7}, v{t+2}, 5, v{t+7}
    v_lshl_add_u32 v{t+7}, v{t+6}, 6, v{t+7}
    v_add_u32 v{vAugR}, {s.t0}, v{t+7}
    s_mov_b32 s82, 0x00020001
    s_mov_b32 s83, 0x00020001
    v_mov_b32 v{t}, 0x3f803f80
    v_cndmask_b32 v{vSel}, 0, v{t}, s[82:83]
    v_cndmask_b32 v{vSel+1}, 0, v{t}, s[82:83]
    v_cndmask_b32 v{vSel+2}, 0, v{t}, s[82:83]
    v_cndmask_b32 v{vSel+3}, 0, v{t}, s[82:83]''')
    P(f'''v_and_b32 v{t}, 31, v0
    v_lshlrev_b32 v{t}, 5, v{t}
    v_lshl_add_u32 v{vQo}, v{t+1}, 4, v{t}''')
    if not late:
        P.add(row_stats())
        P.add(dma1(2))
    P(f'''s_lshl_b32 {s.t0}, {s.rb}, 1
    s_add_u32 {s.t0}, {s.t0}, {s.th}
    s_lshl_b32 {s.t1}, {s.t0}, 11
    s_lshl_b32 {s.t2}, {s.qo0}, 1
    s_add_u32 {s.t2}, {s.t2}, {s.ch}
    s_lshl_b32 {s.t2}, {s.t2}, 17
    s_add_u32 {s.t1}, {s.t1}, {s.t2}
    s_cmp_lt_u32 {s.qo0}, 8
    s_cselect_b32 {s.fac}, {f32(0.25*LOG2E)}, 1.0
    s_mov_b32 {s.t5}, {s.qo0}
    s_add_u32 {s.qo0}, {s.t1}, {WS_QKV}
    s_add_u32 {s.qo1}, {s.qo0}, 0x10000
    s_add_u32 {s.qo2}, {s.qo0}, 0x40000
    s_add_u32 {s.qo3}, {s.qo0}, 0x50000
    s_add_u32 {s.qo4}, {s.qo0}, 0x80000
    s_add_u32 {s.qo5}, {s.qo0}, 0x90000
    s_mul_i32 {s.t1}, {s.t0}, {2*112*1024}
    s_lshl_b32 {s.t2}, {s.ch}, 11
    s_add_u32 {s.t1}, {s.t1}, {s.t2}
    s_add_u32 {s.t1}, {s.t1}, {WS_H}
    s_lshl_b32 {s.ho0}, {s.ho0}, 12
    s_add_u32 {s.ho0}, {s.ho0}, {s.t1}
    s_add_u32 {s.ho1}, {s.ho0}, {112*1024}
    s_add_u32 {s.t2}, {s.cg}, 12
    s_lshl_b32 {s.t2}, {s.t2}, 12
    s_add_u32 {s.ho2}, {s.t2}, {s.t1}
    s_add_u32 {s.ho3}, {s.ho2}, {112*1024}
    s_lshl_b32 {s.t0}, {s.t0}, 10
    s_add_u32 {s.t4}, {s.t0}, {WS_STATS}''')
    if late:
        hook(P, cfg, 2)
        P.add(dma1(1))
        P.add(rows)
        hook(P, cfg, 3)

sStat = 's44'
def row_stats():
    P = Prog()
    R = vAcc2
    nonce(P, R + 40)
    E = R + 8
    for r in range(2):
        for k in range(4):
            P(f'v_lshlrev_b32 v{E+8*r+2*k}, 16, v{R+4*r+k}')
            P(f'v_and_b32 v{E+8*r+2*k+1}, 0xffff0000, v{R+4*r+k}')
    A = R + 24
    def reduce2():
        for m in ('quad_perm:[1,0,3,2] row_mask:0xf', 'quad_perm:[2,3,0,1] row_mask:0xf', 'row_half_mirror row_mask:0xf',
                  'row_mirror row_mask:0xf', 'row_bcast:15 row_mask:0xa', 'row_bcast:31 row_mask:0xc'):
            for r in range(2):
                P(f'v_add_f32_dpp v{A+r}, v{A+r}, v{A+r} {m} bank_mask:0xf')
    for r in range(2):
        P(f'v_add_f32 v{A+r}, v{E+8*r}, v{E+8*r+1}')
    for k in range(2, 8):
        for r in range(2):
            P(f'v_add_f32 v{A+r}, v{A+r}, v{E+8*r+k}')
    reduce2()
    for r in range(2):
        P(f'v_mul_f32 v{A+2+r}, {f32(1/512)}, v{A+r}')
    P(f'v_readlane_b32 {s.t0}, v{A+2}, 63\nv_readlane_b32 {s.t1}, v{A+3}, 63')
    G = R + 32
    for r in range(2):
        P(f'v_cvt_pk_bf16_f32 v{G+4*r}, -v{A+2+r}, -v{A+2+r}')
    P(f'v_cmp_ne_u32 vcc, 63, v0\nv_mov_b32 v{R+41}, 0x40000000')
    for k in range(8):
        for r in range(2):
            P(f'v_subrev_f32 v{E+8*r+k}, {(s.t0, s.t1)[r]}, v{E+8*r+k}')
    P(f'v_cndmask_b32 v{R+41}, 0, v{R+41}, vcc')
    for k in range(8):
        for r in range(2):
            P(f'v_mul_f32 v{A+r}, v{E+8*r}, v{E+8*r}' if k == 0 else f'v_fmac_f32 v{A+r}, v{E+8*r+k}, v{E+8*r+k}')
    reduce2()
    for r in range(2):
        P(f'v_mul_f32 v{A+r}, {f32(1/512)}, v{A+r}')
    for r in range(2):
        P(f'v_add_f32 v{A+r}, {f32(1e-5)}, v{A+r}')
    for r in range(2):
        P(f'v_rsq_f32 v{G+4*r+1}, v{A+r}')
    for r in range(2):
        P(f'v_mov_b32 v{G+4*r+2}, {s.n0}\nv_mov_b32 v{G+4*r+3}, {s.n1}')
    for r in range(2):
        P(f'buffer_store_dwordx4 {vr(G+4*r, 4)}, v{R+41}, {sWS}, {sStat} offen offset:{16*r} sc1', 'stat')
    return P.L

def stats_load(tag='g'):
    t = vT + 7
    return mk([f'v_and_b32 v{t}, 0x1f0, v{vL16}']) + \
        mk([f'buffer_load_dwordx4 {vr(vSt+4*k, 4)}, v{t}, {sWS}, {s.t4} offen offset:{512*k} sc1' for k in range(2)], tag)

def stats_check(P, cold):
    P('L_stat_check:')
    P(f'''v_cmp_eq_u32 s[82:83], {s.n0}, v{vSt+2}
    v_cmp_eq_u32 s[84:85], {s.n1}, v{vSt+3}
    v_cmp_eq_u32 s[86:87], {s.n0}, v{vSt+6}
    v_cmp_eq_u32 vcc, {s.n1}, v{vSt+7}
    s_and_b64 s[82:83], s[82:83], s[84:85]
    s_and_b64 s[86:87], s[86:87], vcc
    s_and_b64 s[82:83], s[82:83], s[86:87]
    s_cmp_eq_u64 s[82:83], -1
    s_cbranch_scc0 L_stat_retry
    L_stat_ok:''')
    cold.add([forget()])
    cold(f'''L_stat_retry:
    s_sub_u32 {s.spin}, {s.spin}, 1
    s_cmp_le_i32 {s.spin}, 0
    s_cbranch_scc1 L_stat_ok''')
    cold.add(stats_load())
    cold('s_waitcnt vmcnt(0)\ns_branch L_stat_check')

def phase1(P, cold, cfg):
    P(f's_mov_b32 {s.spin}, 0x20000')
    if not cfg.get('pro'): stamp(P, 1)
    else: stamp(P, 6); stamp_end(P); P('s_endpgm')
    stamp(P, 'pro')
    P.waitvm('c0')
    P('s_barrier')
    stamp(P, 'c0')
    if not cfg.get('pro'): stamp(P, 2)
    x, w = rd1(0, 0)
    P.add(mk(x) + mk(w))
    dq = Pool(cfg.get('maxvm', 1), period=cfg.get('per1', 0), burst=cfg.get('burst1', 1))
    late = cfg.get('late', 1)
    if late: dq.put(dma1(2))
    dq.put(dma1(3))
    bg = Pool(); st_bg = Pool()
    for i in range(8):
        for st in range(4):
            if st == 3:
                need = (f'c{i+1}',) if i < 7 else ('d0', 'd1', 'd2', 'd3')
                n = max((j + 1 for j, x in enumerate(dq.q) if x.tag in need), default=0)
                if cfg.get('v') and dq.q: print('p1 queue', i, len(dq.q), 'forced', n)
                P.add(dq.q[:n]); del dq.q[:n]
                P.add(bg.rest())
                P.waitvm(f'c{i+1}' if i < 7 else ('d0', 'd1', 'd2', 'd3'))
                P.waitlg()
                if not cfg.get('nobar'): P('s_barrier')
                if cfg.get('nodma'): pass
                elif i < 4: dq.put(dma1(i + 4))
                elif i < 7 or not cfg.get('new', 1): dq.put(dma2(2*(i-4))); dq.put(dma2(2*(i-4) + 1))
            if i == 4 and st == 0 and cfg.get('mid'): stamp(P, 3)
            if st == 0: stamp(P, f'p1_{i}')
            first = (i == 0 and st == 0)
            mfs = []; fixed = {}
            nxt = (i, st + 1) if st < 3 else (i + 1, 0)
            if nxt[0] < 8:
                x, w = rd1(*nxt); rd = [x, w[0], w[1], w[2]]
                if cfg.get('nord'): rd = []
                if cfg.get('nox'): rd = rd[1:]
                if cfg.get('now'): rd = rd[:1]
            else:
                w = rd2(0, 0)
                ag = [f'ds_read_b64_tr_b16 {vr(vAg+2*u, 2)}, v{vAugR} offset:{u*512}' for u in range(3)]
                rd = [ag[:2], ag[2:], w[0], w[1]]
            for u in range(3):
                for t in range(2):
                    if rd: fixed[len(mfs)] = rd.pop(0)
                    mfs.append(mf32(acc1(u, t), vr(wf(st & 1, u), 4), ar(xf(i, st, t), 4), first))
                if st < 2 and not cfg.get('nocs'):
                    c = vr(vCs + 4*u, 4)
                    mfs.append(f'v_mfma_f32_16x16x32_bf16 {c}, {vr(wf(st & 1, u), 4)}, {vr(vSel, 4)}, {"0" if first else c}')
            if late and (i, st) == (cfg.get('sti', 1), 0): st_bg.put(row_stats())
            if st == 3 or (i, st) == (0, 0):
                T = Prog(); hook(T, cfg, 10 + i + (st == 3)); dq.put(T.L)
            if st == 1 and i >= 4:
                assert not any(x.tag and x.tag[0] == 'c' for x in dq.q) or i == 4
                T = Prog(); hook(T, cfg, 20 + i); dq.put(T.L)
            if (i, st) == (cfg.get('stl', 5), 0):
                assert not st_bg.q
                bg.put(stats_load())
            if i == 7 and st == 0:
                stats_check(P, cold)
                hm = vT + 7
                bg.put([f'v_cmp_gt_u32 vcc, 32, v0'] +
                       [f'v_mul_f32 v{vScq+t}, {s.fac}, v{vSt+4*t+1}' for t in range(2)] +
                       [f'v_cndmask_b32 v{vXa+2*t+k}, 0, v{vSt+4*t}, vcc' for t in range(2) for k in range(2)])
            timed = {}
            if i == 7 and st == 1: timed = {5: [(bg, cs_split(0, 0))], 8: [(bg, cs_split(1, 0))]}
            if i == 7 and st == 2: timed = {2: [(bg, cs_split(2, 0))]}
            weave(P, mfs, fixed, (dq, bg, st_bg), slack=4, timed=timed)
    mfs = [f'v_mfma_f32_32x32x8_bf16 {vr(acc1(u, t), 16)}, {vr(vAg+2*u, 2)}, {vr(vXa+2*t, 2)}, {vr(acc1(u, t), 16)}'
           for u in range(3) for t in range(2)]
    weave(P, mfs, {}, (dq, bg), slack=4)
    P.add(dq.rest()); P.add(bg.rest())

def phase2(P, isb, cfg, ext=None):
    bg = Pool()
    new = cfg.get('new', 1)
    if not isb:
        bg.put(epi_qkv(0, vL16, lambda t: vScq + t))
        eh = epi_h(lambda t: acc1(1, t), lambda t: acc1(2, t), lambda t: S[f'ho{t}'], 'st1h' if new else 'st1')
        if new: ext.eh = eh
        else: bg.put(eh)
    else:
        for u in range(3):
            bg.put(f's_cmp_ge_u32 {s.t5}, {16-u}')
            bg.put(f's_cselect_b64 vcc, -1, 0')
            bg.put(f'v_cndmask_b32 v{vXd+u}, v{vL16}, v{vQo}, vcc')
        for u in range(3):
            bg.put(epi_qkv(u, vXd + u, lambda t: vSt + 4*t + 1))
    lo = Pool()
    for i in range(8):
        for st in range(4):
            if st == 3 and i in ((3, 5, 7) if new else (3, 7)):
                P.add(lo.rest())
                if i == 3: P.waitvm(('d4', 'd5') if new else ('d4', 'd5', 'd6', 'd7'))
                if i == 5: ext.need(P, ('d6', 'd7')); P.waitvm(('d6', 'd7'))
                P.waitlg()
                P('s_barrier')
            if st == 0: stamp(P, f'p2_{i}')
            if ext: ext.at(P, i, st, bg)
            first = (i == 0 and st == 0)
            mfs = []; fixed = {}
            nxt = (i, st + 1) if st < 3 else (i + 1, 0)
            if nxt[0] < 8:
                rd = rd2(*nxt)
            else:
                rd = [[f'ds_read_b64_tr_b16 {vr(vAg+2*u, 2)}, v{vAugR} offset:{2048 + u*512}' for u in range(2)]]
            for u in range(2):
                for t in range(2):
                    if rd: fixed[len(mfs)] = rd.pop(0)
                    mfs.append(mf32(acc2(u, t), vr(wf(st & 1, u), 4), ar(xf(i, st, t), 4), first))
                if st < 2 and not cfg.get('nocs'):
                    c = vr(vCs + 4*u, 4)
                    mfs.append(f'v_mfma_f32_16x16x32_bf16 {c}, {vr(wf(st & 1, u), 4)}, {vr(vSel, 4)}, {"0" if first else c}')
            timed = {}
            if i == 7 and st == 1: timed = {5: [(lo, cs_split(0, 2048))]}
            if i == 7 and st == 2: timed = {2: [(lo, cs_split(1, 2048))]}
            slack = cfg.get('slb', 4) if isb and bg.q else 4
            weave(P, mfs, fixed, (lo,) + (ext.pools(bg) if ext else (bg,)), slack=slack, timed=timed)
    assert not bg.q
    mfs = [f'v_mfma_f32_32x32x8_bf16 {vr(acc2(u, t), 16)}, {vr(vAg+2*u, 2)}, {vr(vXa+2*t, 2)}, {vr(acc2(u, t), 16)}'
           for t in range(2) for u in range(2)]
    weave(P, mfs, {}, ext.pools(bg) if ext else ())
    if ext: ext.done(P)

def epilogue2(P):
    P.add(epi_h(lambda t: acc2(0, t), lambda t: acc2(1, t), lambda t: S[f'ho{2+t}'], 'st2'))

def g1_body(P, cold, cfg, mkext=None):
    prologue(P, cfg)
    phase1(P, cold, cfg)
    box0, boxa = {}, {}
    stamp(P, 'p1')
    if not cfg.get('pro'): stamp(P, 4 if cfg.get('mid') else 3)
    P(f's_cmp_eq_u32 {s.isb}, 1')
    P.add([save(box0)])
    P('s_cbranch_scc1 L_p2b')
    phase2(P, False, cfg, mkext and mkext('a'))
    P.add([save(boxa)])
    P('s_branch L_p2done')
    P.add([restore(box0)])
    P('L_p2b:')
    phase2(P, True, cfg, mkext and mkext('b'))
    P.add([join(boxa)])
    P('L_p2done:')
    if not cfg.get('pro'): stamp(P, 5 if cfg.get('mid') else 4)
    stamp(P, 'p2')
    if mkext: return
    epilogue2(P)
    if cfg.get('mid'): stamp(P, 6)
```

```python
import sys, os
sys.path.insert(0, os.path.dirname(os.path.abspath(__file__)))
from common import *
import g1, attn
from g1 import vL16, vT
NAME = 'recurrent_scan__sliding_block__glu_gated_bilinear__prompt'

LDS_V = 65536; LDS_K = 81920; LDS_FB = 98304; LDS_EX = 65536
sFl, sWk = 's44', 's45'; sPm = 's[46:47]'
sQo = 's51'; sKo = ('s52',); sVo = 's53'; sOo = 's56'; sNb = 's57'
sHe = ('s58', 's54'); sT = 's62'; sXo = 's63'; sSt = 's64'; sHl = ('s65', 's66'); sOi = 's78'; sFA = 's67'
sU = ('s82', 's83', 's84', 's85', 's86', 's87')
sN = 's[60:61]'
vWdD = 13; vRA = 18; vFl = 17; vPq, vPh, vPo = 22, 23, 24; vLn = 25
vFd = 188; vPd = 190
A = attn.R
A.D0, A.D1, A.A0, A.A1 = 32, 48, 64, 80
A.N = 64; A.S = 96; A.O = 128; A.P = 160; A.PA = 168; A.VA = 160; A.J = 176; A.M = 178; A.PM = 180
A.LDS_V = LDS_V
vKa = 170
A.sNb = sNb; A.sKo = sKo; A.sQo = sQo; A.sVo = sVo; A.sOo = sOo
aW = 128
def hreg(u):
    if u < 2: return ('a', 224 + 16*u)
    if u < 6: return ('v', 192 + 16*(u - 2))
    return ('a', 16*(u - 6))
def rg(kind, b, n): return vr(b, n) if kind == 'v' else ar(b, n)
def slot(u):
    if u < 8: return (0, (u & 3) * 4096)
    if u < 12: return (1, (u - 8) * 4096)
    return (0, (u - 12) * 4096)
vF = 32; vWF = 96; vE = 112; vXF = 128; vX = 144; vRs = 152; vAd = 154; vSx = 160; aO = 128

def wread(u, ks, kind, base):
    reg, off = slot(u)
    return [[f'ds_read_b64_tr_b16 {rg(kind, base + 4*c + 2*j, 2)}, v{vRA + 2*reg + c} offset:{off + 2048*ks + 1024*j}' for j in range(2)] for c in range(2)]
def stage(u):
    return [waitvm(f'w{u}')] + mk([wread(u, ks, 'a', aW + 16*u + 8*ks) for ks in range(2)], f'r{u}')
def hload(u):
    kind, b = hreg(u)
    so = sHe if u < 6 else sHl
    r = mk([f'buffer_load_dwordx4 {rg(kind, b + 8*ks + 4*t, 4)}, v{vL16}, {sWS}, {so[t]} offen offset:{2048*(u & 1) + 1024*ks} sc1'
            for ks in range(2) for t in range(2)], f'h{u}')
    if u & 1: r += mk([f's_add_u32 {so[t]}, {so[t]}, 4096' for t in range(2)])
    return r
def publish(base, tag):
    return mk(f's_add_u32 {sFl}, {sFl}, 0x20000') + [waitvm(tag)] + mk(f'buffer_store_dwordx2 {vr(vFd, 2)}, v{vFl}, {sWS}, {sFl} offen sc1')
def poll(reg, base):
    return mk(f'buffer_load_dwordx2 {vr(vPd, 2)}, v{reg}, {sWS}, 0 offen sc1')
def check(cold, name, reg, base):
    cold.add([forget()])
    cold(f'''L_{name}_retry:
    s_sub_u32 {s.spin}, {s.spin}, 1
    s_cmp_le_i32 {s.spin}, 0
    s_cbranch_scc1 L_{name}_ok''')
    cold.add(poll(reg, base))
    cold(f's_waitcnt vmcnt(0)\ns_branch L_{name}_chk')
    r = mk(f'''L_{name}_chk:
    v_cmp_ne_u64 {sPm}, {sN}, {vr(vPd, 2)}
    s_cmp_lg_u64 {sPm}, 0
    s_cbranch_scc1 L_{name}_retry
    L_{name}_ok:''' + (f'\nv_writelane_b32 v25, {s.spin}, {"qeho".index(name[0])}' if STAMPS[0] == True else ''))
    for x in r[:-1]: x.meta['glue'] = True
    return r

def warm():
    return mk(f'''s_lshr_b32 {sU[0]}, s2, 3
    s_lshl2_add_u32 {sU[0]}, {sU[0]}, {s.w}
    s_mul_i32 {sU[1]}, {sU[0]}, 14336
    s_add_u32 {sU[2]}, {sU[1]}, 8192
    s_lshl_b32 {sU[0]}, {sU[0]}, 12
    v_lshlrev_b32 v{vLn}, 7, v0
    v_lshlrev_b32 v35, 6, v0
    buffer_load_dword v2, v{vLn}, {sWD}, {sU[1]} offen
    buffer_load_dword v3, v{vLn}, {sWD}, {sU[2]} offen
    buffer_load_dword v4, v35, {sWO}, {sU[0]} offen''')

def warm3():
    return mk(f'''s_lshr_b32 {sT}, s2, 3
    s_lshl2_add_u32 {sT}, {sT}, {s.w}
    v_mov_b32 v35, 0x40000000
    v_mad_u32_u24 v2, {sT}, 14, v0
    v_cmp_gt_u32 vcc, 14, v0
    v_lshlrev_b32 v2, 10, v2
    v_lshl_add_u32 v3, {sT}, 2, v0
    v_cndmask_b32 v2, v35, v2, vcc
    v_cmp_gt_u32 vcc, 4, v0
    v_lshlrev_b32 v3, 10, v3
    buffer_load_dword v2, v2, {sWD}, 0 offen offset:384
    v_cndmask_b32 v3, v35, v3, vcc
    buffer_load_dword v3, v3, {sWO}, 0 offen offset:384''')

def share(kind):
    g = f's_lshr_b32 {sT}, s2, 3\ns_lshl2_add_u32 {sT}, {sT}, {s.w}\n'
    c = f's_bfe_u32 {sT}, s2, 0x30003\n'
    if kind == 0:
        r = g + f'''s_mul_i32 {sT}, {sT}, 6144
        v_mul_u32_u24 v35, 96, v0
        buffer_load_dword v35, v35, {sWD}, {sT} offen'''
    elif kind == 1:
        r = g + f'''s_lshl_b32 {sT}, {sT}, 13
        s_add_u32 {sT}, {sT}, {768*1024}
        v_lshlrev_b32 v10, 7, v0
        buffer_load_dword v10, v10, {sWD}, {sT} offen'''
    elif kind == 2:
        r = g + f'''s_lshl_b32 {sT}, {sT}, 12
        v_lshlrev_b32 v11, 6, v0
        buffer_load_dword v11, v11, {sWO}, {sT} offen'''
    elif kind in (3, 4):
        n, so = ((48, sHe), (64, sHl))[kind - 3]
        r = c + f'''s_mul_i32 {sT}, {sT}, {32*n}
        v_and_b32 v12, 31, v0
        v_mad_u32_u24 v12, v12, {n}, {sT}
        v_lshrrev_b32 v10, 5, v0
        v_mul_u32_u24 v10, {112*1024}, v10
        s_min_u32 {sT}, {so[0]}, {so[1]}
        v_add_u32 v12, v12, v10
        buffer_load_dword v12, v12, {sWS}, {sT} offen sc1'''
    elif kind == 5:
        r = c + f'''s_lshl_b32 {sT}, {sT}, 11
        s_add_u32 {sT}, {sT}, {sOi}
        v_lshlrev_b32 v11, 5, v0
        buffer_load_dword v11, v11, {sWS}, {sT} offen sc1'''
    r = mk(r)
    for x in r[:-2]: x.meta['glue'] = True
    return r

def dose(j, wo=True):
    if j == 0:
        r = f'''s_lshr_b32 s57, s2, 3
        s_lshl2_add_u32 s57, s57, {s.w}
        s_mul_i32 s58, s57, 1792
        s_lshl_b32 s57, s57, 9
        v_mad_u32_u24 v18, v0, 28, s58
        v_lshl_add_u32 v19, v0, 3, s57
        s_and_b32 s56, s2, 7
        '''
    else:
        r = 's_add_u32 s56, s56, 1\ns_and_b32 s56, s56, 7\n'
    r = mk(r + f's_mul_i32 s57, s56, 229376\ns_lshl_b32 s58, s56, 16\nbuffer_load_dword v35, v18, {sWD}, s57 offen')
    if wo: r += mk(f'buffer_load_dword v35, v19, {sWO}, s58 offen')
    for x in r:
        if x.cls == 'vmem': x.dst = []
    return r

vPf = 140
def hook(P, pos, cfg):
    if cfg.get('pf') and pos == 0:
        t = vPf
        P(f'''s_getpc_b64 s[84:85]
        L_pc:
        s_lshr_b32 s82, s2, 3
        v_lshrrev_b32 v{t}, 6, v0
        v_and_b32 v{t+1}, 3, v0
        v_lshl_add_u32 v{t}, v{t}, 2, v{t+1}
        v_lshl_add_u32 v{t}, s82, 4, v{t}
        v_lshlrev_b32 v{t}, 7, v{t}
        v_min_u32 v{t}, L_last-L_pc-4, v{t}
        v_mov_b32 v{t+1}, s85
        v_add_co_u32 v{t}, vcc, s84, v{t}
        v_addc_co_u32 v{t+1}, vcc, 0, v{t+1}, vcc
        global_load_dword v{t}, v[{t}:{t+1}], off''')
    if pos in cfg.get('doses', []):
        for _ in range(cfg['doses'].count(pos)):
            P.add(dose(cfg.setdefault('_nd', 0))); cfg['_nd'] += 1
    todo = [(srd, n) for key, srd, n in (('mx', sX, 16), ('mq', sQ, 12), ('mg', sG, 14), ('mg', g1.sU, 14), ('md', sWD, 14), ('md', sWO, 4))
            if cfg.get(key) == pos and pos]
    if not todo: return
    t = vPf + 2
    P(f's_lshl2_add_u32 s82, s2, {s.w}\nv_lshlrev_b32 v{t}, 7, v0\nv_mov_b32 v{t+1}, 0x40000000')
    ns = sorted(set(n for _, n in todo))
    for k, n in enumerate(ns):
        P(f'v_cmp_gt_u32 s[84:85], {n}, v0\ns_mul_i32 s{(83, 86, 87, 45)[k]}, s82, {128*n}\nv_cndmask_b32 v{t+2+k}, v{t+1}, v{t}, s[84:85]')
    for j, (srd, n) in enumerate(todo):
        k = ns.index(n)
        d = t + 6 + cfg.setdefault('_npf', 0); cfg['_npf'] += 1
        P(f'buffer_load_dword v{d}, v{t+2+k}, {srd}, s{(83, 86, 87, 45)[k]} offen')

def setup_d(cx=0):
    hi, lo, a, b, c, d = sU
    t = vT
    r = f'''s_and_b32 {hi}, s2, 7
    s_lshr_b32 {lo}, s2, 6
    s_lshl2_add_u32 {hi}, {hi}, {lo}
    s_bfe_u32 {lo}, s2, 0x30003
    v_cmp_eq_u32 {sPm}, 0, v0
    v_mov_b32 v{vFl}, 0x40000000
    s_lshl2_add_u32 {sFl}, s2, {s.w}
    s_lshl_b32 {sFl}, {sFl}, 7
    v_cndmask_b32 v{vFl}, v{vFl}, 0, {sPm}'''
    r2 = f'''s_lshl_b32 {sFA}, {s.w}, 14
    s_mul_i32 {sWk}, {s.w}, {12*16384}
    s_xor_b32 {a}, {lo}, {cx}
    s_lshl_b32 {a}, {a}, 7
    v_lshrrev_b32 v{vWdD+1}, 3, v0
    v_and_b32 v{vWdD+2}, 7, v0
    v_bfe_u32 v{vWdD+3}, v0, 4, 1
    v_lshlrev_b32 v{vWdD+3}, 2, v{vWdD+3}
    v_xor_b32 v{vWdD+2}, v{vWdD+2}, v{vWdD+3}
    v_lshlrev_b32 v{vWdD+2}, 4, v{vWdD+2}
    v_lshl_add_u32 v{vWdD+2}, v{vWdD+1}, 10, v{vWdD+2}
    v_add_u32 v{vWdD}, {a}, v{vWdD+2}
    v_add_u32 v{vWdD+1}, 7168, v{vWdD}
    v_add_u32 v{vWdD+2}, {2*7168}, v{vWdD}
    v_add_u32 v{vWdD+3}, {3*7168}, v{vWdD}'''
    r3 = f'''v_bfe_u32 v{vRA+1}, v0, 4, 1
    v_bfe_u32 v{vRA+2}, v0, 1, 1
    v_lshl_add_u32 v{vRA+2}, v{vRA+1}, 1, v{vRA+2}
    v_bfe_u32 v{vRA+1}, v0, 3, 1
    v_xor_b32 v{vRA+1}, {s.ch}, v{vRA+1}
    v_lshl_add_u32 v{vRA+2}, v{vRA+1}, 2, v{vRA+2}
    v_and_b32 v{vRA+1}, 1, v0
    v_lshlrev_b32 v{vRA+1}, 3, v{vRA+1}
    v_lshl_add_u32 v{vRA+2}, v{vRA+2}, 4, v{vRA+1}
    v_bfe_u32 v{vRA+1}, v0, 2, 2
    v_lshl_add_u32 v{vRA+2}, v{vRA+1}, 7, v{vRA+2}
    v_lshrrev_b32 v{vRA+1}, 5, v0
    v_lshl_add_u32 v{vRA+2}, v{vRA+1}, 9, v{vRA+2}
    v_add_u32 v{vRA}, {sFA}, v{vRA+2}
    v_xor_b32 v{vRA+1}, 64, v{vRA}
    v_add_u32 v{vRA+2}, {LDS_FB}, v{vRA}
    v_add_u32 v{vRA+3}, {LDS_FB}, v{vRA+1}
    s_lshl_b32 {a}, {s.w}, 1
    s_sub_u32 {sNb}, 8, {a}
    s_lshl3_add_u32 {a}, {lo}, {a}
    s_lshl_b32 {sOo}, {a}, 5
    s_add_u32 {sOo}, {sOo}, {hi}
    s_lshl_b32 {sOo}, {sOo}, 10
    s_add_u32 {sOo}, {sOo}, {WS_O}
    s_lshl_b32 {sVo}, {hi}, 6
    s_add_u32 {sQo}, {sVo}, {a}
    s_lshl_b32 {sQo}, {sQo}, 10
    s_add_u32 {sQo}, {sQo}, {WS_QKV}
    s_lshl1_add_u32 {a}, {lo}, {s.w}
    s_sub_u32 {a}, {a}, 2
    s_max_i32 {a}, {a}, 0
    s_lshl2_add_u32 {sVo}, {a}, {sVo}
    s_lshl_b32 {sVo}, {sVo}, 10
    s_add_u32 {sKo[0]}, {sVo}, {WS_QKV + 32*65536}
    s_add_u32 {sVo}, {sVo}, {WS_QKV + 64*65536}
    s_lshl1_add_u32 {a}, {hi}, {s.th}
    s_xor_b32 {b}, {a}, 1
    s_mul_i32 {sHe[0]}, {a}, {112*1024}
    s_mul_i32 {sHe[1]}, {b}, {112*1024}
    s_mul_i32 {b}, {s.w}, {12*1024}
    s_add_u32 {b}, {b}, {WS_H}
    s_add_u32 {sHe[0]}, {sHe[0]}, {b}
    s_add_u32 {sHe[1]}, {sHe[1]}, {b}
    s_lshl_b32 {b}, {s.w}, 12
    s_add_u32 {b}, {b}, {48*1024}
    s_add_u32 {sHl[0]}, {sHe[0]}, {b}
    s_add_u32 {sHl[1]}, {sHe[1]}, {b}
    s_lshl1_add_u32 {sOi}, {a}, {s.ch}
    s_lshl_b32 {sOi}, {sOi}, 14
    s_add_u32 {sOi}, {sOi}, {WS_O}
    s_lshl_b32 {sSt}, {a}, 9
    s_add_u32 {sSt}, {sSt}, {WS_STATS}
    s_lshl_b32 {sXo}, {a}, 15
    s_xor_b32 {a}, {lo}, {cx}
    s_lshl1_add_u32 {a}, {a}, {s.ch}
    s_lshl_b32 {a}, {a}, 6
    s_add_u32 {sXo}, {sXo}, {a}'''
    return mk(r, 'sfl'), mk(r2, 'sw'), mk(r3, 'srest')

def setup_polls(merge):
    hi, lo, a, b, c, d = sU
    x, y = vPd, vPd + 1
    r = f'''s_lshr_b32 {a}, {hi}, 2
    s_mul_i32 {b}, {a}, 43
    s_lshr_b32 {b}, {b}, 7
    s_mul_i32 {c}, {b}, 190
    s_lshl_b32 {d}, {a}, 6
    s_sub_u32 {c}, {d}, {c}
    v_mov_b32 v{vPq}, {c}
    s_add_u32 {b}, {a}, 8
    s_mul_i32 {b}, {b}, 43
    s_lshr_b32 {b}, {b}, 7
    s_mul_i32 {c}, {b}, 190
    s_add_u32 {d}, {d}, 512
    s_sub_u32 {c}, {d}, {c}
    s_lshl1_add_u32 {b}, {b}, 184
    s_cmp_lt_u32 {a}, 4
    s_cselect_b32 {c}, {c}, {b}
    v_mov_b32 v{x}, {c}
    s_add_u32 {b}, {a}, 16
    s_mul_i32 {b}, {b}, 43
    s_lshr_b32 {b}, {b}, 7
    s_lshl1_add_u32 {b}, {b}, 184
    v_mov_b32 v{y}, {b}
    v_bfe_u32 v{vPo}, v0, 3, 2
    v_cmp_eq_u32 {sPm}, 1, v{vPo}
    s_lshl_b32 {a}, {lo}, 1
    s_sub_u32 {a}, {a}, 2
    v_cndmask_b32 v{vPq}, v{vPq}, v{x}, {sPm}
    v_cmp_eq_u32 {sPm}, 2, v{vPo}
    v_bfe_u32 v{x}, v0, 1, 2
    v_add_u32 v{vPh}, {a}, v{x}
    v_cndmask_b32 v{vPq}, v{vPq}, v{y}, {sPm}
    v_max_i32 v{vPh}, 0, v{vPh}
    v_lshrrev_b32 v{y}, 3, v{vPh}
    v_add_u32 v{vPq}, v{vPq}, v{y}
    v_and_b32 v{vPh}, 7, v{vPh}
    v_lshl_add_u32 v{vPq}, v{vPh}, 3, v{vPq}
    v_and_b32 v{y}, 1, v0
    v_lshl_add_u32 v{vPq}, v{vPq}, 2, v{y}
    s_and_b32 {a}, {hi}, 2
    v_add_u32 v{vPq}, {a}, v{vPq}
    s_lshr_b32 {a}, {hi}, 4
    s_bfe_u32 {b}, {hi}, 0x30001
    s_lshl3_add_u32 {a}, {b}, {a}
    s_lshl1_add_u32 {a}, {s.w}, {a}
    s_and_b32 {b}, {hi}, 1
    s_lshl2_add_u32 {a}, {a}, {b}
    v_lshlrev_b32 v{x}, 8, v{x}
    v_lshl_add_u32 v{x}, v{y}, 1, v{x}
    v_add_u32 v{vPh}, {a}, v{x}
    v_cmp_eq_u32 {sPm}, {3 if merge else 4}, v{vPo}
    v_bfe_u32 v{x}, v0, 2, 2
    v_and_b32 v{y}, 3, v0
    v_cndmask_b32 v{vPq}, v{vPq}, v{vPh}, {sPm}
    s_mov_b32 {c}, {WS_FLAGQ}
    s_mov_b32 {d}, {WS_FLAGH if merge else WS_FLAGE}
    v_lshl_add_u32 v{vPq}, v{vPq}, 7, {c}
    v_lshl_add_u32 v{vPh}, v{vPh}, 7, {d}
    v_lshl_add_u32 v{x}, v{y}, 6, v{x}
    s_lshr_b32 {a}, {hi}, 2
    s_lshl_b32 {a}, {a}, 1
    s_add_u32 {a}, {a}, {s.ch}
    s_lshl_b32 {a}, {a}, 4
    s_and_b32 {b}, {hi}, 3
    s_add_u32 {a}, {a}, {b}
    s_add_u32 {a}, {a}, {WS_FLAGO // 128}
    v_lshl_add_u32 v{x}, v{x}, 2, {a}
    v_lshlrev_b32 v{vPo}, 7, v{x}'''
    return mk(r, 'spoll')

def setup_att():
    a = sU[2]
    x, y, z = A.PM, A.PM + 1, A.PM + 2
    r = f'''v_lshrrev_b32 v{x}, 5, v0
    v_and_b32 v{y}, 15, v0
    v_lshlrev_b32 v{y}, 3, v{y}
    v_lshl_add_u32 v{y}, v{x}, 7, v{y}
    s_lshl_b32 {a}, {s.w}, 11
    s_add_u32 {a}, {a}, {LDS_V}
    v_add_u32 v{z}, {a}, v{y}
    v_add_u32 v{vKa}, {a}, v{vL16}
    v_add_u32 v{vKa}, {LDS_K - LDS_V}, v{vKa}
    s_add_u32 {a}, {sFA}, {LDS_FB + 12288}
    v_xor_b32 v{y}, 128, v{y}
    v_add_u32 v{y}, {a}, v{y}
    v_add_u32 v{A.PM+3}, {a}, v{vL16}
    v_and_b32 v{A.J}, 16, v0
    v_cmp_eq_u32 s[86:87], 0, v{A.J}
    v_mov_b32 v{A.J+1}, 1024
    v_and_b32 v{A.J}, 31, v0
    v_cndmask_b32 v{A.VA}, v{y}, v{z}, s[86:87]
    v_cndmask_b32 v{z}, 0, v{A.J+1}, s[86:87]
    v_lshlrev_b32 v{x}, 2, v{x}
    v_sub_u32 v{A.J}, v{A.J}, v{x}
    v_mov_b32 v{A.J+1}, 0xffff
    v_mov_b32 v{A.M}, {attn.NINF}
    v_mov_b32 v{A.M+1}, {attn.NINF}'''.split('\n')
    r += [f'v_add_u32 v{A.VA+b}, v{A.VA+b-1}, v{z}' for b in range(1, 10)]
    r += [f'v_mov_b32 v{A.PM+4+k}, 0x3f803f80' for k in range(4)]
    return mk(r)

def kqv():
    r = mk([f'buffer_load_dwordx4 {ar(A.aQ + 4*t, 4)}, v{vL16}, {sWS}, {sQo} offen offset:{1024*t} sc1' for t in range(2)])
    for tag, lds, so in (('K', LDS_K, sKo[0]), ('V', LDS_V, sVo)):
        r += mk(f's_add_u32 m0, {s.mx}, {lds}')
        r += mk([f'buffer_load_dwordx4 v{vL16}, {sWS}, {so} offen offset:{1024*j} sc1 lds' for j in range(4)], tag)
    return r
kr = lambda b: f'ds_read_b128 {ar(A.aK + 4*b, 4)}, v{vKa} offset:{1024*b}'
A.kpre = mk([kr(b) for b in (8, 0, 9, 1)] + [f'ds_write_b128 v{A.PM+3}, {vr(A.PM+4, 4)}'] + [kr(b) for b in range(2, 8)])

class Guarded(Pool):
    other = None
    def take(self, *a):
        r = Pool.take(self, *a)
        if self.other is not None:
            busy = set(x for o in self.other for i in o.q for x in i.src + i.dst)
            for i in r: assert not busy & set(i.dst), i.text
        return r

def need(P, pool, tags, v=None):
    q = pool.q
    n = max((j + 1 for j, x in enumerate(q) if x.tag in tags and x.cls != 'pseudo'), default=0)
    if n and v: print('forced', v, tags, n)
    P.add([x for x in q[:n] if x.op != '@delay']); del q[:n]

class WSeq:
    def __init__(self, at=0, started=False): self.at = at; self.started = started
    def __call__(self, u):
        r = []
        if self.at < 6 <= u:
            r += mk(f's_lshl_b32 {sT}, {s.w}, 16\ns_add_u32 {sWk}, {sWk}, {sT}'); r[0].meta['glue'] = True
            d = (u - self.at) * 32768 + 36 * 16384
        else:
            assert (self.at < 6) == (u < 6)
            d = (u - self.at) * 32768
        if d: r += mk(f's_add_u32 {sWk}, {sWk}, {d}' if d > 0 else f's_sub_u32 {sWk}, {sWk}, {-d}')
        self.at = u
        if u in FREE: r += [waitlg(f'r{FREE[u]}')]
        reg, off = slot(u)
        r += mk(f's_add_u32 m0, {sFA}, {reg*LDS_FB + off}')
        r += mk([f'buffer_load_dwordx4 v{vWdD+j}, {sWD}, {sWk} offen offset:{1024*j} lds' for j in range(4)], f'w{u}')
        return r
FREE = {4: 0, 5: 1, 6: 2, 7: 3, 12: 4, 13: 5}

def plan(txt):
    r = {}
    for part in txt.split('/'):
        if not part: continue
        k, _, items = part.partition(':')
        r[k] = items.split(',')
    return r
def expand(items, W):
    r = []
    for x in items:
        n = int(x[1:])
        if x[0] == 'w': r += W(n)
        elif x[0] == 's': r += stage(n)
        elif x[0] == 'h': r += hload(n)
        elif x[0] == 'd': r += [delay(n)]
        elif x[0] == 'p': r += share(n)
        elif x[0] == 'e': r += dose(n)
        else: raise ValueError(x)
    return r
PLAN = '15:w0,w1,w2,w3/20:s0,s1,d96,w4,w5/24:s2,s3/q:w6,w7/a:w8,w9,h0,h1,s4,s5,w10,d96,h2,h3,w12,w13,h4,h5/b:w11'

class P2Ext:
    def __init__(self, sfx, cold, cfg):
        self.sfx, self.cold, self.cfg = sfx, cold, cfg
        self.dq = Pool(1, period=cfg.get('per2', 64), burst=cfg.get('burst2', 2), maxds=2)
        self.su = Guarded()
        self.fl = Pool()
        self.eh = None
        self.W = cfg['_W'] = WSeq()
        self.plan = plan(cfg.get('plan', PLAN))
    def pools(self, bg): return (self.fl, self.dq, bg, self.su)
    def flush(self, P, pool, name):
        r = pool.rest()
        if r and self.cfg.get('v'): print('flush', self.sfx, name, len(r))
        P.add(r)
    def need(self, P, tags, pool=None): need(P, pool or self.dq, tags, self.cfg.get('v') and self.sfx)
    def at(self, P, i, st, bg):
        cfg, dq, su = self.cfg, self.dq, self.su
        merge = cfg.get('merge', 1)
        k = 4*i + st
        if k == 0 and merge and self.eh:
            for x in self.eh: x.tag = x.tag and 'st1'
            bg.put(self.eh); self.eh = None
        if k == cfg.get('kw3', 12) and not cfg.get('nowarm'):
            assert k >= 1 and not any('vcc' in x.src + x.dst for x in bg.q)
            self.fl.put(warm3())
        if k == cfg.get('ksu', 3):
            su.other = (bg, dq)
            fl_, w_, rest = setup_d(cfg.get('cx', 0))
            su.put(fl_); su.put(w_); su.put(setup_polls(merge)); self.rest = rest
        if k == cfg.get('kd6', 0): dq.put(g1.dma2(6)); dq.put(g1.dma2(7))
        if k == cfg.get('pubq' + self.sfx, 17):
            self.flush(P, bg, 'bg'); self.need(P, ('sfl',), su)
            self.fl.put(f'v_mov_b32 v{vFd}, {s.n0}\nv_mov_b32 v{vFd+1}, {s.n1}')
            T = Prog(); stamp(T, 'pub0'); self.fl.put(T.L)
            self.fl.put(publish(WS_FLAGQ, 'st1'))
            T = Prog(); stamp(T, 'pub1'); self.fl.put(T.L)
        if k == cfg.get('keh', 12) and self.eh: bg.put(self.eh)
        if k == 15:
            self.need(P, ('sw',), su); self.need(P, ('d6', 'd7')); su.put(self.rest)
        if k == cfg.get('pollq', 23):
            self.need(P, ('spoll',), su)
            self.fl.put(poll(vPq, WS_FLAGQ))
            T = Prog(); stamp(T, 'polq'); self.fl.put(T.L)
        if k == cfg.get('ksa', 20):
            self.flush(P, su, 'su'); su.put(setup_att())
        if str(k) in self.plan: dq.put(expand(self.plan[str(k)], self.W))
        if k == cfg.get('chkq', 27):
            assert k >= 23
            self.flush(P, self.fl, 'fl')
            T = Prog(); stamp(T, 'chk0'); dq.put(T.L)
            dq.put(check(self.cold, 'q' + self.sfx, vPq, WS_FLAGQ))
            T = Prog(); stamp(T, 'chkq'); dq.put(T.L)
            dq.burst = cfg.get('burstk', 6)
            dq.put(kqv())
            dq.put(expand(self.plan.get('q', []), self.W))
        if k == cfg.get('pube', 29):
            self.flush(P, bg, 'bg2')
            if merge: su.put(f's_add_u32 {sFl}, {sFl}, 0x20000')
            else: self.fl.put(publish(WS_FLAGE, 'st1h'))
        if k == 31:
            self.flush(P, su, 'su3')
            P(f's_bfe_u32 s84, s2, 0x30003\ns_cmp_eq_u32 s84, 0\ns_cselect_b64 vcc, -1, 0')
    def done(self, P):
        self.flush(P, self.fl, 'fl'); self.flush(P, self.dq, 'dq-end')

class AttBg:
    def __init__(self, cold, cfg):
        self.cold, self.cfg = cold, cfg
        self.q = Pool(cfg.get('vm3', 1), period=cfg.get('per3', 64), burst=cfg.get('burst3', 2), maxds=3)
        self.fl = Pool()
        self.plan = plan(cfg.get('plan', PLAN))
    def gap(self, P, where):
        q, cfg = self.q, self.cfg
        merge = cfg.get('merge', 1)
        if where == ('p1', 0):
            if not merge: self.fl.put(poll(vPh, WS_FLAGE))
            q.put(expand(self.plan.get('a', []), cfg['_W']))
        if where == ('p2', cfg.get('chke', 0)):
            if not merge:
                self.fl.put(check(self.cold, 'e', vPh, WS_FLAGE))
                self.fl.put(f'v_add_u32 v{vPh}, {WS_FLAGH - WS_FLAGE}, v{vPh}')
            q.put(expand(self.plan.get('b', []), cfg['_W']))
        if where == ('p1', cfg.get('pubh', 12)): self.fl.put(publish(WS_FLAGH, 'st2'))
        if where == ('p2', cfg.get('pollh', 40)): self.fl.put(poll(vPh, WS_FLAGH))
        P.add(self.fl.take(99, True, P.now()))
        P.add(q.take(20, True, P.now()))

def mf(d, a, b, first):
    return f'v_mfma_f32_32x32x16_bf16 {vr(d, 16)}, {a}, {b}, {"0" if first else vr(d, 16)}'

def dstage(P, cold, cfg, left):
    t = vT
    dq = Pool(1, period=cfg.get('per4', 64), burst=cfg.get('burst4', 6))
    dq.put(left)
    fl = Pool(); su = Pool()
    P.add(check(cold, 'h', vPh, WS_FLAGH))
    stamp(P, 'chkh')
    if cfg.get('ph', 1): P.add(share(4))
    for u in range(6, 10): dq.put(hload(u))
    wo = []
    for q in range(4):
        off = (8192 + 4096*q) if q < 2 else (LDS_FB + 4096*(q - 2))
        g = mk(f's_add_u32 m0, {sFA}, {off}\ns_lshl_b32 {sT}, {s.w}, 17\ns_add_u32 {sT}, {sT}, {q*32768}')
        g += mk([f'buffer_load_dwordx4 v{vWdD+j}, {sWO}, {sT} offen offset:{1024*j} lds' for j in range(4)], 'wo')
        wo.append(g)
    xo, oo, rw, rr, wa = vAd, vAd + 1, vAd + 2, t, t + 4
    su.put(f'''v_and_b32 v{vRs}, 31, v0
    v_lshrrev_b32 v{vRs+1}, 5, v0
    v_lshlrev_b32 v{oo}, 10, v{vRs}
    v_lshl_add_u32 v{xo}, v{vRs+1}, 3, v{oo}
    v_lshl_add_u32 v{oo}, v{vRs+1}, 4, v{oo}
    v_lshlrev_b32 v{vRs}, 4, v{vRs}
    v_add_u32 v{rw}, {sFA}, v{vL16}
    v_add_u32 v{rw+1}, {LDS_FB}, v{rw}
    v_xor_b32 v{rr}, {16384}, v{rw}
    v_add_u32 v{rr}, {LDS_FB}, v{rr}
    v_xor_b32 v{rr+1}, {32768}, v{rw}
    v_add_u32 v{rr+1}, {LDS_FB}, v{rr+1}
    v_xor_b32 v{rr+2}, {49152}, v{rw}
    v_subrev_u32 v{wa}, {sFA}, v{vRA}
    v_lshl_add_u32 v{wa}, v{vRs+1}, 9, v{wa}
    s_lshl_b32 {sU[0]}, {s.ch}, 15
    v_add_u32 v{wa}, {sU[0]}, v{wa}
    v_xor_b32 v{wa+1}, 64, v{wa}
    v_add_u32 v{wa+2}, {LDS_FB}, v{wa}
    v_add_u32 v{wa+3}, {LDS_FB}, v{wa+1}''')
    xl = mk(f'buffer_load_dword v{vRs}, v{vRs}, {sWS}, {sSt} offen offset:4 sc1')
    xl += mk([f'buffer_load_dwordx2 {vr(vX + 2*g, 2)}, v{xo}, {sX}, {sXo} offen offset:{16*g}' for g in range(4)])
    olds = []
    for q in range(4):
        olds += mk([f'buffer_load_dwordx4 {ar(aO + 16*q + 4*j, 4)}, v{vL16}, {sWS}, {sOi} offen offset:{1024*j} sc1' for j in range(4)], 'ol')
        if q < 3: olds += mk(f's_add_u32 {sOi}, {sOi}, 4096')
    for u in range(14):
        if u == 2:
            P.add(su.rest())
            for v in range(10, 14): dq.put(hload(v))
            dq.put(xl)
        if u == cfg.get('pubo', 5): fl.put(publish(WS_FLAGO, 'sto'))
        if u == 8: dq.put(wo[0]); dq.put(wo[1])
        if u == 10: dq.put(wo[2]); dq.put(wo[3])
        if u == cfg.get('pollo', 12): P.add(dq.rest()); fl.put(poll(vPo, WS_FLAGO))
        if u == 6: stamp(P, 'd1m')
        hk, hb = hreg(u)
        need(P, dq, (f'h{u}', f'r{u}'), 'd')
        for ks in range(2):
            mfs, fixed = [], {}
            nu, nk = (u, 1) if ks == 0 else (u + 1, 0)
            rd = []
            if 6 <= nu < 14:
                if nk == 0: need(P, dq, (f'w{nu}',), 'd'); P.waitvm(f'w{nu}')
                rd = wread(nu, nk, 'v', vWF + 8*nk)
            for c in range(2):
                for tt in range(2):
                    if tt == 0 and rd: fixed[len(mfs)] = rd.pop(0)
                    a = ar(aW + 16*u + 8*ks + 4*c, 4) if u < 6 else vr(vWF + 8*ks + 4*c, 4)
                    mfs.append(mf(vF + 16*(2*c + tt), a, rg(hk, hb + 8*ks + 4*tt, 4), u == 0 and ks == 0))
            weave(P, mfs, fixed, (fl, dq, su), slack=0)
    P.add(fl.rest()); P.add(dq.rest())
    stamp(P, 'd1')
    P(f's_or_b32 {sT}, s2, {s.w}\ns_cmp_eq_u32 {sT}, 0\ns_cbranch_scc1 L_bump\nL_bump_back:')
    cold.add([forget()])
    cold(f'''L_bump:
    v_lshlrev_b32 v{vE}, 9, v0
    L_bump_again:''')
    for k in range(4):
        cold(f's_mov_b32 {sT}, {WS_FLAGQ + k*32768}\nbuffer_load_dwordx2 {vr(vE + 2 + 2*k, 2)}, v{vE}, {sWS}, {sT} offen sc1')
    cold(f'''v_cmp_ne_u64 s[82:83], {sN}, {vr(vE+2, 2)}
    v_cmp_ne_u64 s[84:85], {sN}, {vr(vE+4, 2)}
    v_cmp_ne_u64 s[86:87], {sN}, {vr(vE+6, 2)}
    v_cmp_ne_u64 {sPm}, {sN}, {vr(vE+8, 2)}
    s_or_b64 s[82:83], s[82:83], s[84:85]
    s_or_b64 s[86:87], s[86:87], {sPm}
    s_or_b64 s[82:83], s[82:83], s[86:87]
    s_cbranch_scc0 L_bump_go
    s_sub_u32 {s.spin}, {s.spin}, 1
    s_cmp_gt_i32 {s.spin}, 0
    s_cbranch_scc1 L_bump_again
    L_bump_go:
    buffer_store_dword v{vFd}, v{vFl}, {sWS}, 0 offen sc1
    s_waitcnt vmcnt(0)
    s_branch L_bump_back''')
    wr = [(rw + 1, 8192), (rw + 1, 12288), (rw, 0)]
    for j in (1, 2, 3):
        for q in range(4): P(f'ds_write_b128 v{wr[j-1][0]}, {vr(vF + 16*j + 4*q, 4)} offset:{wr[j-1][1] + 1024*q}')
    P.add(check(cold, 'o', vPo, WS_FLAGO))
    stamp(P, 'chko')
    P.waitvm('wo')
    if cfg.get('po', 1): P.add(share(5))
    P.add(olds)
    P.waitlg()
    P('s_barrier')
    for j in (1, 2, 3):
        for q in range(4): P(f'ds_read_b128 {vr(vF + 16*j + 4*q, 4)}, v{rr + j - 1} offset:{wr[j-1][1] + 1024*q}')
    def wor(k):
        src, kk = k >> 3, k & 7
        reg, off = (wa, 8192 + 2048*kk) if kk < 4 else (wa + 2, 2048*(kk - 4))
        return [[f'ds_read_b64_tr_b16 {vr(vWF + 8*(k & 1) + 4*c + 2*j, 2)}, v{reg + c} offset:{off + 16384*src + 512*j}' for j in range(2)] for c in range(2)]
    P.add(wor(0))
    bg = Pool()
    G = vF
    bg.put(f'v_mul_f32 v{vRs}, v{vRs}, v{vRs}\nv_mul_f32 v{vRs+1}, {f32(-LOG2E)}, v{vRs}')
    for g in range(8):
        bg.put([f'v_lshlrev_b32 v{vXF+2*g}, 16, v{vX+g}', f'v_and_b32 v{vXF+2*g+1}, 0xffff0000, v{vX+g}'])
    for k in range(1, 4):
        bg.put([f'v_add_f32 v{G+r}, v{G+r}, v{vF+16*k+r}' for r in range(16)])
    P.add(bg.q[:cfg.get('early', 50)]); del bg.q[:cfg.get('early', 50)]
    for r0 in range(0, 16, 4):
        rs = range(r0, r0 + 4)
        bg.put([f'v_mul_f32 v{vE+r}, v{vRs+1}, v{G+r}' for r in rs])
        bg.put([f'v_exp_f32 v{vE+r}, v{vE+r}' for r in rs])
        bg.put([f'v_mul_f32 v{G+r}, v{vRs}, v{G+r}' for r in rs])
        bg.put([f'v_add_f32 v{vE+r}, 1.0, v{vE+r}' for r in rs])
        bg.put([f'v_rcp_f32 v{vE+r}, v{vE+r}' for r in rs])
    bg.put([f'v_mul_f32 v{G+r}, v{G+r}, v{vE+r}' for r in range(16)])
    bg.put(f'''s_add_u32 {sT}, {s.mx}, {LDS_EX}
    v_add_u32 v{rw}, {sT}, v{vL16}
    v_xor_b32 v{rw+1}, 8192, v{rw}''')
    stamp(P, 'red')
    for k in range(16):
        rd = wor(k + 1) if k < 15 else []
        mfs, fixed = [], {}
        for c in range(2):
            if rd: fixed[len(mfs)] = rd.pop(0)
            mfs.append(mf(vSx + 16*c, vr(vWF + 8*(k & 1) + 4*c, 4), ar(aO + 4*k, 4), k == 0))
        weave(P, mfs, fixed, (bg,), slack=0)
    P.add(bg.rest())
    stamp(P, 'd2')
    if cfg.get('extra'):
        P(f's_mov_b32 {sT}, {cfg["extra"]}\nL_extra:')
        for k in range(16): P(f'v_mfma_f32_32x32x16_bf16 v[192:207], v[96:99], a[128:131], v[192:207]')
        P(f's_sub_u32 {sT}, {sT}, 1\ns_cmp_lg_u32 {sT}, 0\ns_cbranch_scc1 L_extra')
    for q in range(4): P(f'ds_write_b128 v{rw}, {vr(vSx + 16 + 4*q, 4)} offset:{q*1024}')
    for r in range(16): P(f'v_fmac_f32 v{vXF+r}, v{vSx+r}, v{G+r}')
    P.waitlg()
    P('s_barrier')
    for q in range(4): P(f'ds_read_b128 {vr(vSx + 16 + 4*q, 4)}, v{rw+1} offset:{q*1024}')
    for g in range(2):
        for r in range(8*g, 8*g + 8): P(f'v_fmac_f32 v{vXF+r}, v{vSx+16+r}, v{G+r}')
        for k in range(4*g, 4*g + 4): P(f'v_cvt_pk_bf16_f32 v{vX+k}, v{vXF+2*k}, v{vXF+2*k+1}')
        for k in range(2): P(f'v_permlane32_swap_b32 v{vX+4*g+k}, v{vX+4*g+2+k}')
        P(f'buffer_store_dwordx4 {vr(vX + 4*g, 4)}, v{oo}, {sOUT}, {sXo} offen offset:{32*g}')
    stamp(P, 'out')

def build(cfg):
    P, cold = Prog(), Prog()
    g1.entry(P, 'L_end')
    for srd, off in ((sWO, 16), (sWD, 48), (sOUT, 56)): srd_load(P, srd, off)
    srd_const(P, sWO, 512*512*2); srd_const(P, sWD, 1792*512*2); srd_const(P, sOUT, 2048*512*2)
    cfg['_hook'] = lambda P, pos: hook(P, pos, cfg)
    g1.g1_body(P, cold, cfg, lambda sfx: P2Ext(sfx, cold, cfg))
    g1.epilogue2(P)
    stamp(P, 'e2')
    bg = AttBg(cold, cfg)
    attn.pass1(P, cold, [], bg)
    stamp(P, 'a1')
    attn.pass2(P, cold, bg)
    if cfg.get('v'): print('att rest', len(bg.fl.q), len(bg.q.q))
    P.add(bg.fl.rest())
    stamp(P, 'a2')
    dstage(P, cold, cfg, bg.q.rest())
    stamp_end(P)
    P('L_end:\ns_endpgm')
    P.add(cold.L)
    P('L_last:')
    abl = cfg.get('abl', '').split(',')
    def drop(x):
        t = x.tag if isinstance(x.tag, str) else ''
        if x.cls == 'vmem':
            if 'hl' in abl and t[:1] == 'h' and int(t[1:]) >= 6: return True
            if 'he' in abl and t[:1] == 'h' and int(t[1:]) < 6: return True
            if 'wo' in abl and t == 'wo': return True
            if 'wd' in abl and t[:1] == 'w' and t != 'wo': return True
            if 'o' in abl and t == 'ol': return True
            if 'st1' in abl and t == 'st1': return True
            if 'st2' in abl and t == 'st2': return True
            if 'kv' in abl and t in ('K', 'V'): return True
        if x.cls == 'ds' and 'stage' in abl and t[:1] == 'r': return True
        return False
    P.L = [x for x in P.L if not drop(x)]
    L = finish(P.L)
    return L

if __name__ == '__main__':
    cfg = {}
    for a in sys.argv[2:]:
        k, _, v = a.partition('=')
        if k == 'st':
            STAMPS[0] = True; SEL.extend(v.split(','))
        elif k == 'dbg':
            STAMPS[0] = 'dbg'; SEL.extend(v.split(','))
        elif k in ('plan', 'abl'): cfg[k] = v
        elif k == 'doses': cfg[k] = [int(x) for x in v.split(',')]
        else: cfg[k] = int(v) if v else 1
    if cfg.get('vc'): COST['vmem'] = cfg['vc']
    if cfg.get('dc'): COST['ds'] = cfg['dc']
    L = build(cfg)
    print('instructions', sum(1 for x in L if x.states()), 'estimate', estimate(L), 'nops', sum(1 for x in L if x.cls == 'nop'))
    src = '; @launch grid=(256,1,1) block=(256,1,1) lds=163840\n.amdgcn_target "amdgcn-amd-amdhsa--gfx950"\n' + kernel_text(NAME + '_kernel', L)
    open(sys.argv[1], 'w').write(src)
```

```python
from common import *

class AR:
    L16 = 1; T = 2; J = 10; PM = 12; VA = 20; M = 30
    S = 32
    D0, A0, D1, A1 = 80, 96, 112, 128
    N = 144; O = 176; P = 208; PA = 216
    aQ = 0; aK = 8; aV = 48
    LDS_V = 0; LDS_ONE = 16384
    kpre = None; kmap = None; vmap = None
    sHead = 's62'; sQb = 's63'; sNb = 's64'; sKo = ('s65', 's66', 's67'); sQo = 's68'; sVo = 's69'; sOo = 's70'
    msk = ('s[82:83]', 's[84:85]', 's[86:87]')
R = AR
NINF = '0xff800000'
ITEMS = [(0, 1)] + [(t, b) for b in range(2, 8) for t in range(2)] + [(1, 8)]

def kreg(b): return R.kmap[b] if R.kmap else R.aK + 4*b
def vreg(b): return R.vmap[b] if R.vmap else R.aV + 8*b
def qk(d, b, t, c):
    return f'v_mfma_f32_32x32x16_bf16 {vr(d, 16)}, {ar(kreg(b), 4)}, {ar(R.aQ + 4*t, 4)}, {c}'
def pv(t, b, half, p, first=False):
    o = vr(R.O + 16*t, 16)
    return f'v_mfma_f32_32x32x16_bf16 {o}, {ar(vreg(b) + 4*half, 4)}, {vr(p + 4*half, 4)}, {"0" if first else o}'

def ids(P):
    P(f'''s_and_b32 {R.sHead}, s2, 31
    s_lshr_b32 {R.sQb}, s2, 5
    s_lshl_b32 {s.spin}, {s.w}, 1
    s_sub_u32 {R.sNb}, 8, {s.spin}
    s_lshl3_add_u32 {s.spin}, {R.sQb}, {s.spin}
    s_lshl_b32 {R.sOo}, {s.spin}, 5
    s_add_u32 {R.sOo}, {R.sOo}, {R.sHead}
    s_lshl_b32 {R.sOo}, {R.sOo}, 10
    s_add_u32 {R.sOo}, {R.sOo}, {WS_O}
    s_lshl_b32 {R.sVo}, {R.sHead}, 6
    s_add_u32 {R.sQo}, {R.sVo}, {s.spin}
    s_lshl_b32 {R.sQo}, {R.sQo}, 10
    s_add_u32 {R.sQo}, {R.sQo}, {WS_QKV}
    s_add_u32 {R.sKo[0]}, {R.sQo}, {32*65536 - 8*1024}
    s_add_u32 {R.sKo[1]}, {R.sKo[0]}, 4096
    s_add_u32 {R.sKo[2]}, {R.sKo[0]}, 8192
    s_lshl_b32 {s.spin}, {R.sQb}, 1
    s_add_u32 {s.spin}, {s.spin}, {s.w}
    s_sub_u32 {s.spin}, {s.spin}, 2
    s_max_i32 {s.spin}, {s.spin}, 0
    s_lshl2_add_u32 {R.sVo}, {s.spin}, {R.sVo}
    s_lshl_b32 {R.sVo}, {R.sVo}, 10
    s_add_u32 {R.sVo}, {R.sVo}, {WS_QKV + 64*65536}''')

def loads(sc=' sc1'):
    r = []
    for t in range(2):
        r += mk(f'buffer_load_dwordx4 {ar(R.aQ + 4*t, 4)}, v{R.L16}, {sWS}, {R.sQo} offen offset:{1024*t}{sc}')
    for b in (8, 0, 9, 1, 2, 3, 4, 5, 6, 7):
        r += mk(f'buffer_load_dwordx4 {ar(R.aK + 4*b, 4)}, v{R.L16}, {sWS}, {R.sKo[b >> 2]} offen offset:{1024*(b & 3)}{sc}')
    r += mk(f's_lshl_b32 m0, {s.w}, 12' if R.LDS_V == 0 else f's_add_u32 m0, {s.mx}, {R.LDS_V}')
    r += mk('s_nop 0')
    for j in range(4):
        r += mk(f'buffer_load_dwordx4 v{R.L16}, {sWS}, {R.sVo} offen offset:{1024*j}{sc} lds', 'V')
    return r

def setup():
    t = R.T
    r = [f'v_mov_b32 v{t+k}, 0x3f803f80' for k in range(4)]
    r += [f'v_add_u32 v{t+4}, {R.LDS_ONE}, v{R.L16}', f'ds_write_b128 v{t+4}, {vr(t, 4)}']
    r += f'''v_lshrrev_b32 v{t+5}, 5, v0
    v_and_b32 v{t+6}, 15, v0
    v_lshlrev_b32 v{t+6}, 3, v{t+6}
    v_lshl_add_u32 v{t+6}, v{t+5}, 7, v{t+6}
    s_lshl_b32 {s.spin}, {s.w}, 11
    s_add_u32 {s.spin}, {s.spin}, {R.LDS_V}
    v_add_u32 v{t+7}, {s.spin}, v{t+6}
    v_xor_b32 v{t+6}, {R.LDS_ONE + 128}, v{t+6}
    v_and_b32 v{R.J}, 16, v0
    v_cmp_eq_u32 {R.msk[0]}, 0, v{R.J}
    v_mov_b32 v{R.J+1}, 1024
    v_and_b32 v{R.J}, 31, v0
    v_cndmask_b32 v{R.VA}, v{t+6}, v{t+7}, {R.msk[0]}
    v_cndmask_b32 v{t+7}, 0, v{R.J+1}, {R.msk[0]}
    v_lshlrev_b32 v{t+5}, 2, v{t+5}
    v_sub_u32 v{R.J}, v{R.J}, v{t+5}
    v_mov_b32 v{R.J+1}, 0xffff
    v_mov_b32 v{R.M}, {NINF}
    v_mov_b32 v{R.M+1}, {NINF}'''.split('\n')
    r += [f'v_add_u32 v{R.VA+b}, v{R.VA+b-1}, v{t+7}' for b in range(1, 10)]
    r += [f's_cmp_eq_u32 {R.sQb}, 0', 's_cselect_b64 vcc, -1, 0']
    return mk(r)

def vreads():
    r = []
    for b in (1, 2, 3, 4, 5, 6, 7, 8, 0, 9):
        for k in range(4):
            r.append(f'ds_read_b64_tr_b16 {ar(vreg(b) + 2*k, 2)}, v{R.VA+b} offset:{256*k}')
    return r

def stub(P, cold, name, nb, body):
    P(f's_cbranch_vccnz L_{name}\nL_{name}_back:')
    cold(f'L_{name}:')
    if nb is not None:
        cold(f's_cmp_eq_u32 {R.sNb}, {nb}\ns_cbranch_scc0 L_{name}_back')
    cold.add(body)
    cold(f's_branch L_{name}_back')

def spread(head, mf, every):
    out = []; mf = list(mf)
    for i, x in enumerate(head):
        if i % every == 0 and mf: out.append(mf.pop(0))
        out.append(x)
    return out + mf

class NoBg:
    def gap(self, P, where): pass
def pass1(P, cold, pre, bg=NoBg()):
    sb = lambda k: R.S + 16 * (k % 3)
    if R.kpre:
        P.waitvm(('V', 'K')); P.waitlg(); P('s_barrier')
        stamp(P, 'atb')
        P.add(R.kpre)
        bg.gap(P, ('p0', 0)); bg.gap(P, ('p0', 1))
    P.add(spread(pre, [qk(R.D0, 8, 0, '0'), qk(R.A0, 0, 0, '0'), qk(R.D1, 9, 1, '0'), qk(R.A1, 1, 1, '0')], 6))
    stub(P, cold, 'at_anti', None, [f'v_mov_b32 v{a+r}, {NINF}' for a in (R.A0, R.A1) for r in range(16)])
    mg = []
    c = lambda r: 8 * (r >> 2) + (r & 3)
    cmpi = lambda r: f'v_cmp_le_i32 {R.msk[r % 3]}, {c(r)}, v{R.J}'
    mg += [cmpi(0), cmpi(1)]
    for r in range(16):
        if r + 2 < 16: pass
        m = R.msk[r % 3]
        mg.append(f'v_cndmask_b32 v{R.D0+r}, v{R.A0+r}, v{R.D0+r}, {m}')
        mg.append(f'v_cndmask_b32 v{R.D1+r}, v{R.A1+r}, v{R.D1+r}, {m}')
        if r & 1 == 0: mg.append(f'v_cndmask_b32 v{R.PM + r//2}, 0, v{R.J+1}, {m}')
        else: mg.append(f'v_cndmask_b32 v{R.PM + r//2}, v{R.PM + r//2}, -1, {m}')
        if r + 2 < 16: mg.append(cmpi(r + 2))
    for j, x in enumerate(spread(mg, [qk(sb(k), ITEMS[k][1], ITEMS[k][0], '0') for k in range(2)], 30)):
        P(x)
        if j % 16 == 0: bg.gap(P, ('pm', j))
    if not R.kpre:
        P.waitvm('V'); P.waitlg(); P('s_barrier')
        stamp(P, 'atb')
    vq = vreads()
    for k, (t, b) in enumerate(ITEMS):
        if k + 2 < len(ITEMS): P(qk(sb(k + 2), ITEMS[k+2][1], ITEMS[k+2][0], '0'))
        for _ in range(3 if k + 2 < len(ITEMS) else 2):
            if vq: P(vq.pop(0))
        bg.gap(P, ('p1', k))
        if b % 2 == 0 and (t == 0 or b == 8):
            stub(P, cold, f'at_m{b}', b, [f'v_mov_b32 v{R.M}, {NINF}', f'v_mov_b32 v{R.M+1}, {NINF}'])
        for j in range(8):
            P(f'v_max3_f32 v{R.M+t}, v{R.M+t}, v{sb(k)+2*j}, v{sb(k)+2*j+1}')
    assert not vq
    bg.gap(P, ('pm', 100))
    for j in range(8):
        for t, d in enumerate((R.D0, R.D1)):
            P(f'v_max3_f32 v{R.M+t}, v{R.M+t}, v{d+2*j}, v{d+2*j+1}')
    bg.gap(P, ('pm', 101))
    P(f'''v_permlane32_swap_b32 v{R.M}, v{R.M+1}
    v_min_f32 v{R.N+16}, -v{R.M}, -v{R.M+1}
    v_min_f32 v{R.N}, -v{R.M}, -v{R.M+1}
    v_permlane32_swap_b32 v{R.N}, v{R.N+16}''')

def pass2(P0, cold, bg=NoBg()):
    class W:
        n = 0
        def __call__(self, x): self.add([x])
        def add(self, xs):
            for x in mk(xs):
                P0.add([x])
                if x.cls == 'mfma':
                    bg.gap(P0, ('p2', self.n)); self.n += 1
    P = W()
    sb = lambda k: R.S + 16 * (k & 1)
    n = lambda t: vr(R.N + 16*t, 16)
    for r in range(1, 16): P(f'v_mov_b32 v{R.N+r}, v{R.N}')
    P(qk(sb(0), ITEMS[0][1], 0, n(0)))
    for r in range(1, 16): P(f'v_mov_b32 v{R.N+16+r}, v{R.N+16}')
    sub = [f'v_add_f32 v{d+r}, v{d+r}, v{R.N+16*t}' for t, d in enumerate((R.D0, R.D1)) for r in range(16)]
    P.add(sub)
    ex = lambda x: f'v_exp_f32 v{x}, v{x}'
    cv = lambda p, x: f'v_cvt_pk_bf16_f32 v{p}, v{x}, v{x+1}'
    pend = []
    seen = set()
    for k, (t, b) in enumerate(ITEMS):
        x = sb(k)
        if k + 1 < len(ITEMS): P(qk(sb(k + 1), ITEMS[k+1][1], ITEMS[k+1][0], n(ITEMS[k+1][0])))
        P.add([ex(x + r) for r in range(3)]); P.add(pend); pend = []
        P.add([ex(x + r) for r in range(3, 8)])
        P.add([cv(R.P + j, x + 2*j) for j in range(4)])
        P.add([ex(x + 8), ex(x + 9)])
        if b % 2 == 0 and (t == 0 or b == 8):
            stub(P, cold, f'at_o{b}', b, [f'v_mov_b32 v{R.O+r}, 0' for r in range(32)])
        P(pv(t, b, 0, R.P, t not in seen)); seen.add(t)
        P.add([ex(x + r) for r in range(10, 16)])
        P.add([cv(R.P + j, x + 2*j) for j in range(4, 8)])
        pend = [pv(t, b, 1, R.P)]
    for t, x in enumerate((R.D0, R.D1)):
        def half(h):
            js = range(4*h, 4*h + 4)
            return ([cv(R.PA + j, x + 2*j) for j in js] + [f'v_and_b32 v{R.P+j}, v{R.PM+j}, v{R.PA+j}' for j in js] +
                    [f'v_xor_b32 v{R.PA+j}, v{R.P+j}, v{R.PA+j}' for j in js])
        P.add([ex(x + r) for r in range(2)]); P.add(pend[:1])
        P.add([ex(x + r) for r in range(2, 5)]); P.add(pend[1:])
        P.add([ex(x + r) for r in range(5, 8)])
        P.add(half(0))
        P.add([ex(x + 8), ex(x + 9)])
        P(pv(t, t + 8, 0, R.P))
        P.add([ex(x + r) for r in range(10, 13)])
        P(pv(t, t, 0, R.PA))
        P.add([ex(x + r) for r in range(13, 16)])
        P.add(half(1))
        pend = [pv(t, t + 8, 1, R.P), pv(t, t, 1, R.PA)]
    def fin(t, sc=' sc1'):
        o = R.O + 16*t
        r = [f'v_rcp_f32 v{o+8}, v{o+8}', 's_nop 0'] + [f'v_mul_f32 v{o+k}, v{o+8}, v{o+k}' for k in range(8)]
        r += [f'v_cvt_pk_bf16_f32 v{o+k}, v{o+2*k}, v{o+2*k+1}' for k in range(4)]
        return mk(r) + mk(f'buffer_store_dwordx4 {vr(o, 4)}, v{R.L16}, {sWS}, {R.sOo} offen{sc}', 'sto')
    f0 = fin(0)
    P.add(f0[:2]); P(pend[0]); P.add(f0[2:8]); P(pend[1]); P.add(f0[8:])
    P(f's_add_u32 {R.sOo}, {R.sOo}, 32768')
    P.add(fin(1))

ITEMS2 = [(1, 8)] + [(t, b) for b in range(7, 1, -1) for t in (1, 0)] + [(0, 1)]
def pass2b(P0, cold, bg, extra):
    class W:
        n = 0
        def __call__(self, x): self.add([x])
        def add(self, xs):
            for x in mk(xs):
                P0.add([x])
                if x.cls == 'mfma':
                    bg.gap(P0, ('p2', self.n)); self.n += 1
    P = W()
    sb = lambda k: R.S + 16 * (k & 1)
    n = lambda t: vr(R.N + 16*t, 16)
    ex = lambda x: f'v_exp_f32 v{x}, v{x}'
    cv = lambda p, x: f'v_cvt_pk_bf16_f32 v{p}, v{x}, v{x+1}'
    def X():
        P.add(extra(P0))
    def fin(t, so, sc=' sc1'):
        o = R.O + 16*t
        r = [f'v_rcp_f32 v{o+8}, v{o+8}', 's_nop 0'] + [f'v_mul_f32 v{o+k}, v{o+8}, v{o+k}' for k in range(8)]
        r += [f'v_cvt_pk_bf16_f32 v{o+k}, v{o+2*k}, v{o+2*k+1}' for k in range(4)]
        return mk(r) + mk(f'buffer_store_dwordx4 {vr(o, 4)}, v{R.L16}, {sWS}, {so} offen{sc}', 'sto')
    bc = [f'v_mov_b32 v{R.N+16*t+r}, v{R.N+16*t}' for t in (1, 0) for r in range(1, 16)]
    pend = []
    for t, x in enumerate((R.D0, R.D1)):
        def half(h):
            js = range(4*h, 4*h + 4)
            return ([cv(R.PA + j, x + 2*j) for j in js] + [f'v_and_b32 v{R.P+j}, v{R.PM+j}, v{R.PA+j}' for j in js] +
                    [f'v_xor_b32 v{R.PA+j}, v{R.P+j}, v{R.PA+j}' for j in js])
        sub = [f'v_add_f32 v{x+r}, v{x+r}, v{R.N+16*t}' for r in range(16)]
        P.add(sub[:8]); P.add(pend[:1]); P.add(sub[8:]); P.add(pend[1:])
        if t == 0: bg.gap(P0, ('dg', 2))
        P.add(bc[:15]); del bc[:15]
        if t == 1: P(qk(sb(0), ITEMS2[0][1], ITEMS2[0][0], n(ITEMS2[0][0])))
        bg.gap(P0, ('dg', t))
        P.add([ex(x + r) for r in range(8)])
        bg.gap(P0, ('dg', 3 + t))
        P.add(half(0))
        P.add([ex(x + 8), ex(x + 9)])
        P(pv(t, t + 8, 0, R.P, True))
        P.add([ex(x + r) for r in range(10, 13)])
        P(pv(t, t, 0, R.PA))
        P.add([ex(x + r) for r in range(13, 16)])
        P.add(half(1))
        pend = [pv(t, t + 8, 1, R.P), pv(t, t, 1, R.PA)]
    for k, (t, b) in enumerate(ITEMS2):
        x = sb(k)
        bg.gap(P0, ('it', k))
        if k + 1 < len(ITEMS2):
            t1, b1 = ITEMS2[k+1]
            if b1 % 2 == 1 and (t1 == 1 or b1 == 1):
                stub(P, cold, f'at_n{b1}', b1 + 1, [f'v_mov_b32 v{R.N+r}, {NINF}' for r in range(32)])
            P(qk(sb(k + 1), b1, t1, n(t1)))
        else: X()
        P.add([ex(x + r) for r in range(3)]); P.add(pend[:1])
        P.add([ex(x + r) for r in range(3, 7)])
        if len(pend) > 1: P.add(pend[1:])
        else: X()
        P.add([ex(x + 7)] + [cv(R.P + j, x + 2*j) for j in range(4)] + [ex(x + 8), ex(x + 9)])
        P(pv(t, b, 0, R.P))
        P.add([ex(x + r) for r in range(10, 13)])
        X()
        P.add([ex(x + r) for r in range(13, 16)])
        X()
        P.add([cv(R.P + j, x + 2*j) for j in range(4, 8)])
        pend = [pv(t, b, 1, R.P)]
        if k == len(ITEMS2) - 2:
            f = fin(1, R.sOo)
            f[1] = I(f's_add_u32 {R.sOo}, {R.sOo}, 32768')
            P.add(f[:6]); X(); P.add(f[6:])
    P.add(pend)
    X(); X()
    f = fin(0, R.sOo)
    f[1] = I(f's_sub_u32 {R.sOo}, {R.sOo}, 32768')
    P.add(f)

def standalone(P, cold, cfg):
    from g1 import wave_ids
    srd_load(P, sWS, 72)
    stamp_begin(P)
    wave_ids(P)
    srd_const(P, sWS, WS_SIZE)
    ids(P)
    P.waitlg()
    stamp_keep(P)
    P.add(loads())
    su = setup()
    P.add(su[:-14])
    stamp(P, 1)
    pass1(P, cold, su[-14:])
    stamp(P, 2)
    pass2(P, cold)
    stamp(P, 3)
    P(f'''s_or_b32 {s.spin}, s2, {s.w}
    s_cmp_eq_u32 {s.spin}, 0
    s_cbranch_scc0 L_nobump
    v_mov_b32 v2, 0
    buffer_load_dword v3, v2, {sWS}, 0 offen sc1
    v_add_u32 v3, 1, v3
    buffer_store_dword v3, v2, {sWS}, 0 offen sc1
    L_nobump:''')
```

```python
from common import *

vT = 2
vL16 = 1
vXd = 10; vWd = 14
vXr = 22
vA, vB, vC = 26, 28, 30
vAugW, vAugR = 32, 33
vQo = 34
vSel = 36; vCs = 40; vSt = 52; vXa = 60; vAg = 64; vScq = 70; vWf = 72
vAcc2 = 96; vAcc1 = 160
vXr2 = 156
SLOT = 40960
LDS_AUG = 114688
def acc1(u, t): return vAcc1 + 32 * u + 16 * t
def acc2(u, t): return vAcc2 + 32 * u + 16 * t
def wf(par, u): return vWf + 12 * par + 4 * u
def xf(i, st, t): return 32 * i + 8 * st + 4 * t
BASE = {vA: 0, vB: 49152, vC: 98304}
W1 = [(vA, 0), (vA, SLOT), (vB, 2*SLOT - 49152), (vC, 3*SLOT - 98304)]
W2 = [(r, a - BASE[r], a) for r, a in ((vA, 0), (vA, 16384), (vA, 49152), (vB, 65536), (vB, 81920), (vC, 98304), (vC, 131072), (vC, 147456))]

def entry(P, endlabel):
    P(f's_cmp_ge_u32 s2, 256\ns_cbranch_scc1 {endlabel}')

def wave_ids(P):
    P(f'v_lshrrev_b32 v{vT}, 6, v0')
    P(f'v_and_b32 v0, 63, v0')
    P(f'v_readfirstlane_b32 {s.w}, v{vT}')
    P(f'v_lshlrev_b32 v{vL16}, 4, v0')

def nonce(P, vE):
    P(f'v_readfirstlane_b32 {s.n0}, v{vE}')
    P(f's_add_u32 {s.n0}, {s.n0}, 1')
    P(f's_mul_i32 {s.n1}, {s.n0}, 0x9e3779b1')
    P(f's_xor_b32 {s.n1}, {s.n1}, 0x7f4a7c15')

def kc_next(first=False):
    r = []
    if not first:
        r += [f's_add_u32 {s.kc}, {s.kc}, 1', f's_and_b32 {s.kc}, {s.kc}, 7']
    return r

def dma1(i):
    sl = i & 3
    tag = f'c{i}'
    pre = kc_next(i == 0) + [f's_lshl_b32 {s.kx}, {s.kc}, 7', f's_mul_i32 {s.k0}, {s.kc}, {64*3072}', f's_mul_i32 {s.k1}, {s.kc}, {s.str64}']
    seq = mk(pre)
    seq += mk(f's_add_u32 m0, {s.mx}, {sl*SLOT + 24576}')
    for j in range(4):
        seq += mk(f'buffer_load_dwordx4 v{vXd+j}, {sX}, {s.kx} offen offset:{1024*j} lds', tag)
    for u, (srd, so) in enumerate(((sQ, s.k0), (sU1, s.k1), (sU2, s.k1))):
        seq += mk(f's_add_u32 m0, {s.mw}, {sl*SLOT + u*8192}')
        for j in range(2):
            seq += mk(f'buffer_load_dwordx4 v{vWd+2*u+j}, {srd}, {so} offen offset:{1024*j} lds', tag)
    return seq

def dma2(i):
    tag = f'd{i}'
    seq = mk(kc_next() + [f's_mul_i32 {s.k2}, {s.kc}, {64*3584}'])
    for u, srd in enumerate((sG, sU)):
        seq += mk(f's_add_u32 m0, {s.mw}, {W2[i][2] + u*8192}')
        for j in range(2):
            seq += mk(f'buffer_load_dwordx4 v{vWd+6+j}, {srd}, {s.k2} offen offset:{1024*j} lds', tag)
    return seq

def rd1(i, st):
    sl = i & 3
    x = [f'ds_read_b128 {ar(xf(i, st, t), 4)}, v{(vXr if sl < 2 else vXr2)+st} offset:{(sl & 1)*SLOT + t*4096}' for t in range(2)]
    base = W1[sl][0] + (st >> 1)
    w = [[f'ds_read_b64_tr_b16 {vr(wf(st & 1, u) + 2*j, 2)}, v{base} offset:{W1[sl][1] + u*8192 + (st & 1)*2048 + j*512}'
          for j in range(2)] for u in range(3)]
    return x, w

def rd2(i, st):
    reg, imm, _ = W2[i]
    return [[f'ds_read_b64_tr_b16 {vr(wf(st & 1, u) + 2*j, 2)}, v{reg + (st >> 1)} offset:{imm + u*8192 + (st & 1)*2048 + j*512}'
             for j in range(2)] for u in range(2)]

def mf32(d, a, b, first):
    return f'v_mfma_f32_32x32x16_bf16 {vr(d, 16)}, {a}, {b}, {"0" if first else vr(d, 16)}'

def cs_split(u, off):
    c = vCs + 4 * u
    h, f, l = vT, vT + 2, vT + 6
    r = [f'v_cvt_pk_bf16_f32 v{h}, v{c}, v{c+1}', f'v_cvt_pk_bf16_f32 v{h+1}, v{c+2}, v{c+3}',
         f'v_lshlrev_b32 v{f}, 16, v{h}', f'v_and_b32 v{f+1}, 0xffff0000, v{h}',
         f'v_lshlrev_b32 v{f+2}, 16, v{h+1}', f'v_and_b32 v{f+3}, 0xffff0000, v{h+1}']
    r += [f'v_sub_f32 v{f+k}, v{c+k}, v{f+k}' for k in range(4)]
    r += [f'v_cvt_pk_bf16_f32 v{l}, v{f}, v{f+1}', f'v_cvt_pk_bf16_f32 v{l+1}, v{f+2}, v{f+3}',
          f'ds_write_b64 v{vAugW}, {vr(h, 2)} offset:{off + u*512}', f'ds_write_b64 v{vAugW}, {vr(l, 2)} offset:{off + u*512 + 64}']
    return r

def pack_store(d, voff, so_a, so_b, imm_a, imm_b, tag):
    r = []
    for half, (so, imm) in enumerate(((so_a, imm_a), (so_b, imm_b))):
        b = d + 8 * half
        r += mk([f'v_cvt_pk_bf16_f32 v{b+k}, v{b+2*k}, v{b+2*k+1}' for k in range(4)])
        r += mk(f'buffer_store_dwordx4 {vr(b, 4)}, v{voff}, {sWS}, {so} offen offset:{imm} sc1', tag)
    return r

def epi_qkv(u, voff, scale):
    r = []
    for t in range(2):
        d = acc1(u, t)
        r += mk([f'v_mul_f32 v{d+k}, v{scale(t)}, v{d+k}' for k in range(16)])
        r += pack_store(d, voff, S[f'qo{2*u}'], S[f'qo{2*u+1}'], 1024 * t, 1024 * t, 'st1')
    return r

def epi_h(g, uu, so, tag):
    r = []
    for t in range(2):
        r += mk([f'v_mul_f32 v{g(t)+k}, v{g(t)+k}, v{uu(t)+k}' for k in range(16)])
        r += pack_store(g(t), vL16, so(t), so(t), 0, 1024, tag)
    return r

def hook(P, cfg, pos):
    if cfg.get('_hook'): cfg['_hook'](P, pos)

def prologue(P, cfg):
    for srd, off in ((sX, 0), (sQ, 8), (sG, 32), (sU, 40), (sWS, 72)):
        srd_load(P, srd, off)
    stamp_begin(P)
    hook(P, cfg, 0)
    wave_ids(P)
    P(f'''s_and_b32 {s.t0}, s2, 7
    s_lshr_b32 {s.t1}, s2, 3
    s_and_b32 {s.rb}, {s.t0}, 1
    s_lshl_b32 {s.rb}, {s.rb}, 3
    s_and_b32 {s.t2}, {s.t1}, 7
    s_add_u32 {s.rb}, {s.rb}, {s.t2}
    s_lshr_b32 {s.t0}, {s.t0}, 1
    s_lshr_b32 {s.t1}, {s.t1}, 3
    s_lshl2_add_u32 {s.cg}, {s.t0}, {s.t1}
    s_and_b32 {s.th}, {s.w}, 1
    s_lshr_b32 {s.ch}, {s.w}, 1
    s_lshl_b32 {s.mx}, {s.w}, 12
    s_lshl_b32 {s.mw}, {s.w}, 11''')
    srd_const(P, sX, 2048*512*2); srd_const(P, sWS, WS_SIZE); srd_const(P, sQ, 512*1536*2)
    srd_const(P, sG, 512*1792*2); srd_const(P, sU, 512*1792*2)
    P('s_mov_b32 s15, 0x20000\ns_mov_b32 s19, 0x20000')
    P(f'''s_lshl_b32 {s.t2}, {s.rb}, 4
    s_add_u32 {s.t2}, {s.t2}, {s.cg}
    s_lshl2_add_u32 {s.t2}, {s.t2}, {s.w}
    s_lshl_b32 {s.t3}, {s.t2}, 11
    s_lshl_b32 {s.t2}, {s.t2}, 5
    s_add_u32 {sStat}, {s.t2}, {WS_STATS}''')
    P(f'''s_mul_i32 {s.t4}, {s.t0}, 3
    s_add_u32 {s.t5}, {s.t4}, {s.t1}
    s_add_u32 {s.t4}, {s.t4}, 12
    s_cmp_eq_u32 {s.t1}, 3
    s_cselect_b32 {s.isb}, 1, 0
    s_cselect_b32 {s.qo0}, {s.t4}, {s.t5}
    s_mov_b32 {s.str64}, {64*3072}
    s_cselect_b32 {s.str64}, {s.str64}, {64*3584}
    s_lshl_b32 s14, {s.str64}, 3
    s_mov_b32 s18, s14
    s_lshl_b32 {s.qo1}, {s.qo0}, 7
    s_add_u32 {s.qo2}, {s.qo1}, 128
    s_add_u32 {s.qo3}, {s.qo1}, 256
    s_cmp_eq_u32 {s.isb}, 1
    s_cselect_b32 {s.qo2}, {s.qo2}, {s.qo1}
    s_cselect_b32 {s.qo3}, {s.qo3}, {s.qo1}''')
    P(f's_mov_b32 {s.ho0}, {s.t5}')
    if cfg.get('rot') == 1:
        P(f's_lshr_b32 {s.kc}, {s.rb}, 1')
    elif cfg.get('rot') == 2:
        P(f's_lshl1_add_u32 {s.kc}, {s.cg}, {s.rb}\ns_and_b32 {s.kc}, {s.kc}, 7')
    elif cfg.get('rot') == 3:
        P(f's_and_b32 {s.kc}, {s.rb}, 7')
    elif cfg.get('rot') == 4:
        P(f's_and_b32 {s.kc}, {s.rb}, 3')
    else:
        P(f's_mov_b32 {s.kc}, 0')
    t = vT
    P(f'''v_lshrrev_b32 v{t}, 3, v0
    v_and_b32 v{t+1}, 7, v0
    v_lshrrev_b32 v{t+2}, 4, v0
    v_xor_b32 v{t+3}, v{t+1}, v{t+2}
    v_lshlrev_b32 v{t+3}, 4, v{t+3}
    v_lshl_add_u32 v{t+3}, v{t}, 10, v{t+3}
    s_lshl_b32 {s.t0}, {s.rb}, 17
    s_lshl_b32 {s.t1}, {s.w}, 15
    s_add_u32 {s.t0}, {s.t0}, {s.t1}
    v_add_u32 v{vXd}, {s.t0}, v{t+3}
    v_xor_b32 v{vXd+1}, 64, v{vXd}
    v_add_u32 v{vXd+2}, {2*7168}, v{vXd}
    v_add_u32 v{vXd+3}, {3*7168}, v{vXd+1}
    v_add_u32 v{vXd+1}, 7168, v{vXd+1}
    v_and_b32 v{t+2}, 1, v{t+2}
    v_lshlrev_b32 v{t+2}, 2, v{t+2}
    v_xor_b32 v{t+1}, v{t+1}, v{t+2}
    v_lshlrev_b32 v{t+1}, 4, v{t+1}
    s_lshl_b32 {s.t0}, {s.w}, 4
    v_add_u32 v{t}, {s.t0}, v{t}
    s_lshr_b32 {s.t1}, {s.str64}, 6
    v_mul_u32_u24 v{t+2}, 3072, v{t}
    v_mul_u32_u24 v{t+3}, {s.t1}, v{t}
    v_add3_u32 v{vWd}, v{t+2}, v{t+1}, {s.qo1}
    v_add3_u32 v{vWd+2}, v{t+3}, v{t+1}, {s.qo2}
    v_add3_u32 v{vWd+4}, v{t+3}, v{t+1}, {s.qo3}
    s_lshr_b32 {s.t1}, {s.str64}, 3
    s_sub_u32 {s.t1}, {s.t1}, 1024
    v_add_u32 v{vWd+1}, {8*3072-1024}, v{vWd}
    v_add_u32 v{vWd+3}, {s.t1}, v{vWd+2}
    v_add_u32 v{vWd+5}, {s.t1}, v{vWd+4}
    v_mov_b32 v{vAcc2+41}, 0''')
    P.waitlg()
    stamp_keep(P)
    stamp(P, 'kw')
    if cfg.get('pro'): stamp(P, 1)
    P(f'''s_cmp_eq_u32 {s.isb}, 1
    s_cselect_b32 s12, s8, s20
    s_cselect_b32 s13, s9, s21
    s_cselect_b32 s16, s8, s24
    s_cselect_b32 s17, s9, s25''')
    R = vAcc2
    rows = mk(f'buffer_load_dword v{R+40}, v{R+41}, {sWS}, 0 offen sc1', 'ep') + \
        mk([f'buffer_load_dwordx4 {vr(R+4*k, 4)}, v{vL16}, {sX}, {s.t3} offen offset:{1024*k}' for k in range(2)], 'row')
    late = cfg.get('late', 1)
    if not late: P.add(rows)
    hook(P, cfg, 1)
    P.add(dma1(0))
    stamp(P, 'i0')
    P(f'''s_add_u32 {s.t0}, {s.cg}, 12
    s_lshl_b32 {s.t0}, {s.t0}, 7
    v_mul_u32_u24 v{t+3}, 3584, v{t}
    v_add3_u32 v{vWd+6}, v{t+3}, v{t+1}, {s.t0}
    v_add_u32 v{vWd+7}, {8*3584-1024}, v{vWd+6}''')
    if not late: P.add(dma1(1))
    P(f'''v_and_b32 v{t}, 31, v0
    s_lshl_b32 {s.t0}, {s.th}, 6
    v_add_u32 v{t}, {s.t0}, v{t}
    v_lshrrev_b32 v{t+1}, 5, v0
    v_bfe_u32 v{t+2}, v0, 1, 3
    v_xor_b32 v{t+2}, v{t+2}, v{t+1}
    s_lshl_b32 {s.t0}, {s.th}, 2
    v_xor_b32 v{t+2}, {s.t0}, v{t+2}
    v_lshlrev_b32 v{t+2}, 4, v{t+2}
    v_lshl_add_u32 v{vXr}, v{t}, 7, v{t+2}
    v_add_u32 v{vXr}, 24576, v{vXr}
    v_xor_b32 v{vXr+1}, 32, v{vXr}
    v_xor_b32 v{vXr+2}, 64, v{vXr}
    v_xor_b32 v{vXr+3}, 0x60, v{vXr}''')
    for k in range(4): P(f'v_add_u32 v{vXr2+k}, {2*SLOT}, v{vXr+k}')
    P(f'''v_bfe_u32 v{t}, v0, 2, 2
    v_lshl_add_u32 v{t}, v{t+1}, 3, v{t}
    v_bfe_u32 v{t+2}, v0, 4, 1
    v_bfe_u32 v{t+3}, v0, 1, 1
    v_lshl_add_u32 v{t+3}, v{t+2}, 1, v{t+3}
    v_bfe_u32 v{t+4}, v0, 3, 1
    v_xor_b32 v{t+4}, {s.ch}, v{t+4}
    v_lshl_add_u32 v{t+3}, v{t+4}, 2, v{t+3}
    v_and_b32 v{t+4}, 1, v0
    v_lshlrev_b32 v{t+4}, 3, v{t+4}
    v_lshl_add_u32 v{t+3}, v{t+3}, 4, v{t+4}
    v_lshl_add_u32 v{t+3}, v{t}, 7, v{t+3}
    s_lshl_b32 {s.t0}, {s.th}, 12
    s_sub_u32 {s.t1}, 4096, {s.t0}
    v_add_u32 v{vA}, {s.t0}, v{t+3}
    v_add_u32 v{vA+1}, {s.t1}, v{t+3}
    v_add_u32 v{vB}, {BASE[vB]}, v{vA}
    v_add_u32 v{vB+1}, {BASE[vB]}, v{vA+1}
    v_add_u32 v{vC}, {BASE[vC]}, v{vA}
    v_add_u32 v{vC+1}, {BASE[vC]}, v{vA+1}''')
    P(f'''s_lshl_b32 {s.t0}, {s.ch}, 8
    s_add_u32 {s.t0}, {s.t0}, {LDS_AUG}
    s_lshl_b32 {s.t1}, {s.th}, 7
    s_add_u32 {s.t1}, {s.t1}, {s.t0}
    v_lshrrev_b32 v{t}, 4, v0
    v_lshlrev_b32 v{t}, 3, v{t}
    v_lshl_add_u32 v{t}, v{t+4}, 2, v{t}
    v_add_u32 v{t}, {s.t1}, v{t}
    v_lshlrev_b32 v{t+5}, 3, v0
    v_add_u32 v{t+5}, {LDS_AUG+4096}, v{t+5}
    v_and_b32 v{t+6}, 14, v0
    v_cmp_eq_u32 vcc, 0, v{t+6}
    v_bfe_u32 v{t+6}, v0, 2, 2
    v_and_b32 v{t+7}, 3, v0
    v_cndmask_b32 v{vAugW}, v{t+5}, v{t}, vcc
    v_lshlrev_b32 v{t+7}, 3, v{t+7}
    v_lshl_add_u32 v{t+7}, v{t+2}, 5, v{t+7}
    v_lshl_add_u32 v{t+7}, v{t+6}, 6, v{t+7}
    v_add_u32 v{vAugR}, {s.t0}, v{t+7}
    s_mov_b32 s82, 0x00020001
    s_mov_b32 s83, 0x00020001
    v_mov_b32 v{t}, 0x3f803f80
    v_cndmask_b32 v{vSel}, 0, v{t}, s[82:83]
    v_cndmask_b32 v{vSel+1}, 0, v{t}, s[82:83]
    v_cndmask_b32 v{vSel+2}, 0, v{t}, s[82:83]
    v_cndmask_b32 v{vSel+3}, 0, v{t}, s[82:83]''')
    P(f'''v_and_b32 v{t}, 31, v0
    v_lshlrev_b32 v{t}, 5, v{t}
    v_lshl_add_u32 v{vQo}, v{t+1}, 4, v{t}''')
    if not late:
        P.add(row_stats())
        P.add(dma1(2))
    P(f'''s_lshl_b32 {s.t0}, {s.rb}, 1
    s_add_u32 {s.t0}, {s.t0}, {s.th}
    s_lshl_b32 {s.t1}, {s.t0}, 11
    s_lshl_b32 {s.t2}, {s.qo0}, 1
    s_add_u32 {s.t2}, {s.t2}, {s.ch}
    s_lshl_b32 {s.t2}, {s.t2}, 17
    s_add_u32 {s.t1}, {s.t1}, {s.t2}
    s_cmp_lt_u32 {s.qo0}, 8
    s_cselect_b32 {s.fac}, {f32(0.25*LOG2E)}, 1.0
    s_mov_b32 {s.t5}, {s.qo0}
    s_add_u32 {s.qo0}, {s.t1}, {WS_QKV}
    s_add_u32 {s.qo1}, {s.qo0}, 0x10000
    s_add_u32 {s.qo2}, {s.qo0}, 0x40000
    s_add_u32 {s.qo3}, {s.qo0}, 0x50000
    s_add_u32 {s.qo4}, {s.qo0}, 0x80000
    s_add_u32 {s.qo5}, {s.qo0}, 0x90000
    s_mul_i32 {s.t1}, {s.t0}, {2*112*1024}
    s_lshl_b32 {s.t2}, {s.ch}, 11
    s_add_u32 {s.t1}, {s.t1}, {s.t2}
    s_add_u32 {s.t1}, {s.t1}, {WS_H}
    s_lshl_b32 {s.ho0}, {s.ho0}, 12
    s_add_u32 {s.ho0}, {s.ho0}, {s.t1}
    s_add_u32 {s.ho1}, {s.ho0}, {112*1024}
    s_add_u32 {s.t2}, {s.cg}, 12
    s_lshl_b32 {s.t2}, {s.t2}, 12
    s_add_u32 {s.ho2}, {s.t2}, {s.t1}
    s_add_u32 {s.ho3}, {s.ho2}, {112*1024}
    s_lshl_b32 {s.t0}, {s.t0}, 10
    s_add_u32 {s.t4}, {s.t0}, {WS_STATS}''')
    if late:
        hook(P, cfg, 2)
        P.add(dma1(1))
        P.add(rows)
        hook(P, cfg, 3)

sStat = 's44'
def row_stats():
    P = Prog()
    R = vAcc2
    nonce(P, R + 40)
    E = R + 8
    for r in range(2):
        for k in range(4):
            P(f'v_lshlrev_b32 v{E+8*r+2*k}, 16, v{R+4*r+k}')
            P(f'v_and_b32 v{E+8*r+2*k+1}, 0xffff0000, v{R+4*r+k}')
    A = R + 24
    def reduce2():
        for m in ('quad_perm:[1,0,3,2] row_mask:0xf', 'quad_perm:[2,3,0,1] row_mask:0xf', 'row_half_mirror row_mask:0xf',
                  'row_mirror row_mask:0xf', 'row_bcast:15 row_mask:0xa', 'row_bcast:31 row_mask:0xc'):
            for r in range(2):
                P(f'v_add_f32_dpp v{A+r}, v{A+r}, v{A+r} {m} bank_mask:0xf')
    for r in range(2):
        P(f'v_add_f32 v{A+r}, v{E+8*r}, v{E+8*r+1}')
    for k in range(2, 8):
        for r in range(2):
            P(f'v_add_f32 v{A+r}, v{A+r}, v{E+8*r+k}')
    reduce2()
    for r in range(2):
        P(f'v_mul_f32 v{A+2+r}, {f32(1/512)}, v{A+r}')
    P(f'v_readlane_b32 {s.t0}, v{A+2}, 63\nv_readlane_b32 {s.t1}, v{A+3}, 63')
    G = R + 32
    for r in range(2):
        P(f'v_cvt_pk_bf16_f32 v{G+4*r}, -v{A+2+r}, -v{A+2+r}')
    P(f'v_cmp_ne_u32 vcc, 63, v0\nv_mov_b32 v{R+41}, 0x40000000')
    for k in range(8):
        for r in range(2):
            P(f'v_subrev_f32 v{E+8*r+k}, {(s.t0, s.t1)[r]}, v{E+8*r+k}')
    P(f'v_cndmask_b32 v{R+41}, 0, v{R+41}, vcc')
    for k in range(8):
        for r in range(2):
            P(f'v_mul_f32 v{A+r}, v{E+8*r}, v{E+8*r}' if k == 0 else f'v_fmac_f32 v{A+r}, v{E+8*r+k}, v{E+8*r+k}')
    reduce2()
    for r in range(2):
        P(f'v_mul_f32 v{A+r}, {f32(1/512)}, v{A+r}')
    for r in range(2):
        P(f'v_add_f32 v{A+r}, {f32(1e-5)}, v{A+r}')
    for r in range(2):
        P(f'v_rsq_f32 v{G+4*r+1}, v{A+r}')
    for r in range(2):
        P(f'v_mov_b32 v{G+4*r+2}, {s.n0}\nv_mov_b32 v{G+4*r+3}, {s.n1}')
    for r in range(2):
        P(f'buffer_store_dwordx4 {vr(G+4*r, 4)}, v{R+41}, {sWS}, {sStat} offen offset:{16*r} sc1', 'stat')
    return P.L

def stats_load(tag='g'):
    t = vT + 7
    return mk([f'v_and_b32 v{t}, 0x1f0, v{vL16}']) + \
        mk([f'buffer_load_dwordx4 {vr(vSt+4*k, 4)}, v{t}, {sWS}, {s.t4} offen offset:{512*k} sc1' for k in range(2)], tag)

def stats_check(P, cold):
    P('L_stat_check:')
    P(f'''v_cmp_eq_u32 s[82:83], {s.n0}, v{vSt+2}
    v_cmp_eq_u32 s[84:85], {s.n1}, v{vSt+3}
    v_cmp_eq_u32 s[86:87], {s.n0}, v{vSt+6}
    v_cmp_eq_u32 vcc, {s.n1}, v{vSt+7}
    s_and_b64 s[82:83], s[82:83], s[84:85]
    s_and_b64 s[86:87], s[86:87], vcc
    s_and_b64 s[82:83], s[82:83], s[86:87]
    s_cmp_eq_u64 s[82:83], -1
    s_cbranch_scc0 L_stat_retry
    L_stat_ok:''')
    cold.add([forget()])
    cold(f'''L_stat_retry:
    s_sub_u32 {s.spin}, {s.spin}, 1
    s_cmp_le_i32 {s.spin}, 0
    s_cbranch_scc1 L_stat_ok''')
    cold.add(stats_load())
    cold('s_waitcnt vmcnt(0)\ns_branch L_stat_check')

def phase1(P, cold, cfg):
    P(f's_mov_b32 {s.spin}, 0x20000')
    if not cfg.get('pro'): stamp(P, 1)
    else: stamp(P, 6); stamp_end(P); P('s_endpgm')
    stamp(P, 'pro')
    P.waitvm('c0')
    P('s_barrier')
    stamp(P, 'c0')
    if not cfg.get('pro'): stamp(P, 2)
    x, w = rd1(0, 0)
    P.add(mk(x) + mk(w))
    dq = Pool(cfg.get('maxvm', 1), period=cfg.get('per1', 0), burst=cfg.get('burst1', 1))
    late = cfg.get('late', 1)
    if late: dq.put(dma1(2))
    dq.put(dma1(3))
    bg = Pool(); st_bg = Pool()
    for i in range(8):
        for st in range(4):
            if st == 3:
                need = (f'c{i+1}',) if i < 7 else ('d0', 'd1', 'd2', 'd3')
                n = max((j + 1 for j, x in enumerate(dq.q) if x.tag in need), default=0)
                if cfg.get('v') and dq.q: print('p1 queue', i, len(dq.q), 'forced', n)
                P.add(dq.q[:n]); del dq.q[:n]
                P.add(bg.rest())
                P.waitvm(f'c{i+1}' if i < 7 else ('d0', 'd1', 'd2', 'd3'))
                P.waitlg()
                if not cfg.get('nobar'): P('s_barrier')
                if cfg.get('nodma'): pass
                elif i < 4: dq.put(dma1(i + 4))
                elif i < 7 or not cfg.get('new', 1): dq.put(dma2(2*(i-4))); dq.put(dma2(2*(i-4) + 1))
            if i == 4 and st == 0 and cfg.get('mid'): stamp(P, 3)
            if st == 0: stamp(P, f'p1_{i}')
            first = (i == 0 and st == 0)
            mfs = []; fixed = {}
            nxt = (i, st + 1) if st < 3 else (i + 1, 0)
            if nxt[0] < 8:
                x, w = rd1(*nxt); rd = [x, w[0], w[1], w[2]]
                if cfg.get('nord'): rd = []
                if cfg.get('nox'): rd = rd[1:]
                if cfg.get('now'): rd = rd[:1]
            else:
                w = rd2(0, 0)
                ag = [f'ds_read_b64_tr_b16 {vr(vAg+2*u, 2)}, v{vAugR} offset:{u*512}' for u in range(3)]
                rd = [ag[:2], ag[2:], w[0], w[1]]
            for u in range(3):
                for t in range(2):
                    if rd: fixed[len(mfs)] = rd.pop(0)
                    mfs.append(mf32(acc1(u, t), vr(wf(st & 1, u), 4), ar(xf(i, st, t), 4), first))
                if st < 2 and not cfg.get('nocs'):
                    c = vr(vCs + 4*u, 4)
                    mfs.append(f'v_mfma_f32_16x16x32_bf16 {c}, {vr(wf(st & 1, u), 4)}, {vr(vSel, 4)}, {"0" if first else c}')
            if late and (i, st) == (cfg.get('sti', 1), 0): st_bg.put(row_stats())
            if (i, st) == (6, 0) and cfg.get('_pre'):
                assert not any(x.tag and x.tag[0] == 'c' for x in dq.q)
                st_bg.put(cfg['_pre']())
            if (i, st) == (7, 0) and cfg.get('_pre7'):
                assert not st_bg.q
                dq.put(cfg['_pre7']())
            if st == 3 or (i, st) == (0, 0):
                T = Prog(); hook(T, cfg, 10 + i + (st == 3)); dq.put(T.L)
            if st == 1 and i >= 4:
                assert not any(x.tag and x.tag[0] == 'c' for x in dq.q) or i == 4
                T = Prog(); hook(T, cfg, 20 + i); dq.put(T.L)
            if (i, st) == (cfg.get('stl', 5), 0):
                assert not st_bg.q
                bg.put(stats_load())
            if i == 7 and st == 0:
                stats_check(P, cold)
                hm = vT + 7
                bg.put([f'v_cmp_gt_u32 vcc, 32, v0'] +
                       [f'v_mul_f32 v{vScq+t}, {s.fac}, v{vSt+4*t+1}' for t in range(2)] +
                       [f'v_cndmask_b32 v{vXa+2*t+k}, 0, v{vSt+4*t}, vcc' for t in range(2) for k in range(2)])
            timed = {}
            if i == 7 and st == 1: timed = {5: [(bg, cs_split(0, 0))], 8: [(bg, cs_split(1, 0))]}
            if i == 7 and st == 2: timed = {2: [(bg, cs_split(2, 0))]}
            weave(P, mfs, fixed, (dq, bg, st_bg), slack=4, timed=timed)
    mfs = [f'v_mfma_f32_32x32x8_bf16 {vr(acc1(u, t), 16)}, {vr(vAg+2*u, 2)}, {vr(vXa+2*t, 2)}, {vr(acc1(u, t), 16)}'
           for u in range(3) for t in range(2)]
    weave(P, mfs, {}, (dq, bg), slack=4)
    P.add(dq.rest()); P.add(bg.rest())
    assert not st_bg.q

def phase2(P, isb, cfg, ext=None):
    bg = Pool()
    new = cfg.get('new', 1)
    if not isb:
        bg.put(epi_qkv(0, vL16, lambda t: vScq + t))
        eh = epi_h(lambda t: acc1(1, t), lambda t: acc1(2, t), lambda t: S[f'ho{t}'], 'st1h' if new else 'st1')
        if new: ext.eh = eh
        else: bg.put(eh)
    else:
        for u in range(3):
            bg.put(f's_cmp_ge_u32 {s.t5}, {16-u}')
            bg.put(f's_cselect_b64 vcc, -1, 0')
            bg.put(f'v_cndmask_b32 v{vXd+u}, v{vL16}, v{vQo}, vcc')
        for u in range(3):
            bg.put(epi_qkv(u, vXd + u, lambda t: vSt + 4*t + 1))
    lo = Pool()
    for i in range(8):
        for st in range(4):
            if st == 3 and i in (3, 5, 7) + tuple(cfg.get('bars', ())):
                P.add(lo.rest())
                if i == 3: P.waitvm(('d4', 'd5') if new else ('d4', 'd5', 'd6', 'd7'))
                if i == 5: ext.need(P, ('d6', 'd7')); P.waitvm(('d6', 'd7'))
                P.waitlg()
                P('s_barrier')
            if st == 0: stamp(P, f'p2_{i}')
            if ext: ext.at(P, i, st, bg)
            first = (i == 0 and st == 0)
            mfs = []; fixed = {}
            nxt = (i, st + 1) if st < 3 else (i + 1, 0)
            if nxt[0] < 8:
                rd = rd2(*nxt)
            else:
                rd = [[f'ds_read_b64_tr_b16 {vr(vAg+2*u, 2)}, v{vAugR} offset:{2048 + u*512}' for u in range(2)]]
            for u in range(2):
                for t in range(2):
                    if rd: fixed[len(mfs)] = rd.pop(0)
                    mfs.append(mf32(acc2(u, t), vr(wf(st & 1, u), 4), ar(xf(i, st, t), 4), first))
                if st < 2 and not cfg.get('nocs'):
                    c = vr(vCs + 4*u, 4)
                    mfs.append(f'v_mfma_f32_16x16x32_bf16 {c}, {vr(wf(st & 1, u), 4)}, {vr(vSel, 4)}, {"0" if first else c}')
            timed = {}
            if i == 7 and st == 1: timed = {5: [(lo, cs_split(0, 2048))]}
            if i == 7 and st == 2: timed = {2: [(lo, cs_split(1, 2048))]}
            slack = cfg.get('slb', 4) if isb and bg.q else 4
            weave(P, mfs, fixed, (lo,) + (ext.pools(bg) if ext else (bg,)), slack=slack, timed=timed)
    assert not bg.q
    mfs = [f'v_mfma_f32_32x32x8_bf16 {vr(acc2(u, t), 16)}, {vr(vAg+2*u, 2)}, {vr(vXa+2*t, 2)}, {vr(acc2(u, t), 16)}'
           for t in range(2) for u in range(2)]
    weave(P, mfs, {}, ext.pools(bg) if ext else ())
    if ext: ext.done(P)

def epilogue2(P):
    P.add(epi_h(lambda t: acc2(0, t), lambda t: acc2(1, t), lambda t: S[f'ho{2+t}'], 'st2'))

def g1_body(P, cold, cfg, mkext=None):
    prologue(P, cfg)
    phase1(P, cold, cfg)
    box0, boxa = {}, {}
    stamp(P, 'p1')
    if not cfg.get('pro'): stamp(P, 4 if cfg.get('mid') else 3)
    P(f's_cmp_eq_u32 {s.isb}, 1')
    P.add([save(box0)])
    P('s_cbranch_scc1 L_p2b')
    phase2(P, False, cfg, mkext and mkext('a'))
    P.add([save(boxa)])
    P('s_branch L_p2done')
    P.add([restore(box0)])
    P('L_p2b:')
    phase2(P, True, cfg, mkext and mkext('b'))
    P.add([join(boxa)])
    P('L_p2done:')
    if not cfg.get('pro'): stamp(P, 5 if cfg.get('mid') else 4)
    stamp(P, 'p2')
    if mkext: return
    epilogue2(P)
    if cfg.get('mid'): stamp(P, 6)
```

```python
import sys, os, re
sys.path.insert(0, os.path.dirname(os.path.abspath(__file__)))
from common import *
import g1, attn
from g1 import vL16, vT
NAME = 'recurrent_scan__sliding_block__glu_gated_bilinear__prompt'

LDS_V = 65536; LDS_K = 81920; LDS_FB = 98304; LDS_EX = 65536
sFl, sWk = 's44', 's45'; sPm = 's[46:47]'
sQo = 's51'; sKo = ('s52',); sVo = 's53'; sOo = 's56'; sNb = 's57'
sHe = ('s58', 's54'); sT = 's62'; sXo = 's63'; sSt = 's64'; sHl = ('s65', 's66'); sOi = 's78'; sFA = s.mx
sU = ('s82', 's83', 's84', 's85', 's86', 's87')
sN = 's[60:61]'
vWdD = 13; vRA = 18; vFl = 17; vPq, vPh, vPo = 22, 23, 24; vLn = 25
vFd = 188; vPd = 190; vBa = 26; vBd = 28
A = attn.R
A.D0, A.D1, A.A0, A.A1 = 32, 48, 64, 80
A.N = 64; A.S = 96; A.O = 128; A.P = 160; A.PA = 168; A.VA = 160; A.J = 176; A.M = 178; A.PM = 180
A.LDS_V = LDS_V
vKa = 170
A.sNb = sNb; A.sKo = sKo; A.sQo = sQo; A.sVo = sVo; A.sOo = sOo
aW = 0
A.aQ = 128
A.kmap = {b: (232 if b == 0 else 236 if b == 9 else 132 + 4*b) for b in range(10)}
A.vmap = {b: (240 if b == 0 else 248 if b == 9 else 160 + 8*b) for b in range(10)}
def hreg(u):
    if u < 2: return ('a', 96 + 16*u)
    if u < 6: return ('v', 192 + 16*(u - 2))
    e = (u - 6) >> 1
    return hreg(e) if u & 1 else ('a', aW + 16*e)
FT = (('v', 32), ('v', 48), ('v', 168), ('a', 240))
def rg(kind, b, n): return vr(b, n) if kind == 'v' else ar(b, n)
def slot(u):
    if u < 8: return (0, SA[u & 3])
    if u < 12: return (1, SB[u - 8])
    return (0, SA[u - 12])
SA = (32768, 0, 16384, 49152)
SB = (0, 32768, 49152, 16384)
vF = 32; vWF = 96; vE = 112; vXF = 128; vX = 2; vRs = 10; vOo = 11; vXo = 12; vAd = 144; vSx = 160; aO = 128

def wread(u, ks, kind, base):
    reg, off = slot(u)
    return [[f'ds_read_b64_tr_b16 {rg(kind, base + 4*c + 2*j, 2)}, v{vRA + 2*reg + c} offset:{off + 2048*ks + 1024*j}' for j in range(2)] for c in range(2)]
def stage(u):
    return [waitvm(f'w{u}')] + mk([wread(u, ks, 'a', aW + 16*u + 8*ks) for ks in range(2)], f'r{u}')
def hload(u):
    kind, b = hreg(u)
    so = sHe if u < 6 else sHl
    r = mk([f'buffer_load_dwordx4 {rg(kind, b + 8*ks + 4*t, 4)}, v{vL16}, {sWS}, {so[t]} offen offset:{2048*(u & 1) + 1024*ks} sc1'
            for ks in range(2) for t in range(2)], f'h{u}')
    if u & 1: r += mk([f's_add_u32 {so[t]}, {so[t]}, 4096' for t in range(2)])
    return r
def publish(base, tag):
    return mk(f's_add_u32 {sFl}, {sFl}, 0x20000') + [waitvm(tag)] + mk(f'buffer_store_dwordx2 {vr(vFd, 2)}, v{vFl}, {sWS}, {sFl} offen sc1')
def poll(reg, base):
    return mk(f'buffer_load_dwordx2 {vr(vPd, 2)}, v{reg}, {sWS}, 0 offen sc1')
def check(cold, name, reg, base):
    cold.add([forget()])
    cold(f'''L_{name}_retry:
    s_sub_u32 {s.spin}, {s.spin}, 1
    s_cmp_le_i32 {s.spin}, 0
    s_cbranch_scc1 L_{name}_ok''')
    cold.add(poll(reg, base))
    cold(f's_waitcnt vmcnt(0)\ns_branch L_{name}_chk')
    r = mk(f'''L_{name}_chk:
    v_cmp_ne_u64 {sPm}, {sN}, {vr(vPd, 2)}
    s_cmp_lg_u64 {sPm}, 0
    s_cbranch_scc1 L_{name}_retry
    L_{name}_ok:''' + (f'\nv_writelane_b32 v25, {s.spin}, {"qeho".index(name[0])}' if STAMPS[0] == True else ''))
    for x in r[:-1]: x.meta['glue'] = True
    return r

def warm():
    return mk(f'''s_lshr_b32 {sU[0]}, s2, 3
    s_lshl2_add_u32 {sU[0]}, {sU[0]}, {s.w}
    s_mul_i32 {sU[1]}, {sU[0]}, 14336
    s_add_u32 {sU[2]}, {sU[1]}, 8192
    s_lshl_b32 {sU[0]}, {sU[0]}, 12
    v_lshlrev_b32 v{vLn}, 7, v0
    v_lshlrev_b32 v35, 6, v0
    buffer_load_dword v2, v{vLn}, {sWD}, {sU[1]} offen
    buffer_load_dword v3, v{vLn}, {sWD}, {sU[2]} offen
    buffer_load_dword v4, v35, {sWO}, {sU[0]} offen''')

def warm3():
    return mk(f'''s_lshr_b32 {sT}, s2, 3
    s_lshl2_add_u32 {sT}, {sT}, {s.w}
    v_mov_b32 v35, 0x40000000
    v_mad_u32_u24 v2, {sT}, 14, v0
    v_cmp_gt_u32 vcc, 14, v0
    v_lshlrev_b32 v2, 10, v2
    v_lshl_add_u32 v3, {sT}, 2, v0
    v_cndmask_b32 v2, v35, v2, vcc
    v_cmp_gt_u32 vcc, 4, v0
    v_lshlrev_b32 v3, 10, v3
    buffer_load_dword v2, v2, {sWD}, 0 offen offset:384
    v_cndmask_b32 v3, v35, v3, vcc
    buffer_load_dword v3, v3, {sWO}, 0 offen offset:384''')

def share(kind):
    g = f's_lshr_b32 {sT}, s2, 3\ns_lshl2_add_u32 {sT}, {sT}, {s.w}\n'
    c = f's_bfe_u32 {sT}, s2, 0x30003\n'
    if kind == 0:
        r = g + f'''s_mul_i32 {sT}, {sT}, 6144
        v_mul_u32_u24 v35, 96, v0
        buffer_load_dword v35, v35, {sWD}, {sT} offen'''
    elif kind == 1:
        r = g + f'''s_lshl_b32 {sT}, {sT}, 13
        s_add_u32 {sT}, {sT}, {768*1024}
        v_lshlrev_b32 v10, 7, v0
        buffer_load_dword v10, v10, {sWD}, {sT} offen'''
    elif kind == 2:
        r = g + f'''s_lshl_b32 {sT}, {sT}, 12
        v_lshlrev_b32 v11, 6, v0
        buffer_load_dword v11, v11, {sWO}, {sT} offen'''
    elif kind in (3, 4):
        n, so = ((48, sHe), (64, sHl))[kind - 3]
        r = c + f'''s_mul_i32 {sT}, {sT}, {32*n}
        v_and_b32 v12, 31, v0
        v_mad_u32_u24 v12, v12, {n}, {sT}
        v_lshrrev_b32 v10, 5, v0
        v_mul_u32_u24 v10, {112*1024}, v10
        s_min_u32 {sT}, {so[0]}, {so[1]}
        v_add_u32 v12, v12, v10
        buffer_load_dword v12, v12, {sWS}, {sT} offen sc1'''
    elif kind == 5:
        r = c + f'''s_lshl_b32 {sT}, {sT}, 11
        s_add_u32 {sT}, {sT}, {sOi}
        v_lshlrev_b32 v11, 5, v0
        buffer_load_dword v11, v11, {sWS}, {sT} offen sc1'''
    r = mk(r)
    for x in r[:-2]: x.meta['glue'] = True
    return r

def dose(j, wo=True):
    if j == 0:
        r = f'''s_lshr_b32 s57, s2, 3
        s_lshl2_add_u32 s57, s57, {s.w}
        s_mul_i32 s58, s57, 1792
        s_lshl_b32 s57, s57, 9
        v_mad_u32_u24 v18, v0, 28, s58
        v_lshl_add_u32 v19, v0, 3, s57
        s_and_b32 s56, s2, 7
        '''
    else:
        r = 's_add_u32 s56, s56, 1\ns_and_b32 s56, s56, 7\n'
    r = mk(r + f's_mul_i32 s57, s56, 229376\ns_lshl_b32 s58, s56, 16\nbuffer_load_dword v35, v18, {sWD}, s57 offen')
    if wo: r += mk(f'buffer_load_dword v35, v19, {sWO}, s58 offen')
    for x in r:
        if x.cls == 'vmem': x.dst = []
    return r

vPf = 140
def hook(P, pos, cfg):
    if cfg.get('pf') and pos == 0:
        t = vPf
        P(f'''s_getpc_b64 s[84:85]
        L_pc:
        s_lshr_b32 s82, s2, 3
        v_lshrrev_b32 v{t}, 6, v0
        v_and_b32 v{t+1}, 3, v0
        v_lshl_add_u32 v{t}, v{t}, 2, v{t+1}
        v_lshl_add_u32 v{t}, s82, 4, v{t}
        v_lshlrev_b32 v{t}, 7, v{t}
        v_min_u32 v{t}, L_last-L_pc-4, v{t}
        v_mov_b32 v{t+1}, s85
        v_add_co_u32 v{t}, vcc, s84, v{t}
        v_addc_co_u32 v{t+1}, vcc, 0, v{t+1}, vcc
        global_load_dword v{t}, v[{t}:{t+1}], off''')
    if pos in cfg.get('doses', []):
        for _ in range(cfg['doses'].count(pos)):
            P.add(dose(cfg.setdefault('_nd', 0))); cfg['_nd'] += 1
    todo = [(srd, n) for key, srd, n in (('mx', sX, 16), ('mq', sQ, 12), ('mg', sG, 14), ('mg', g1.sU, 14), ('md', sWD, 14), ('md', sWO, 4))
            if cfg.get(key) == pos and pos]
    if not todo: return
    t = vPf + 2
    P(f's_lshl2_add_u32 s82, s2, {s.w}\nv_lshlrev_b32 v{t}, 7, v0\nv_mov_b32 v{t+1}, 0x40000000')
    ns = sorted(set(n for _, n in todo))
    for k, n in enumerate(ns):
        P(f'v_cmp_gt_u32 s[84:85], {n}, v0\ns_mul_i32 s{(83, 86, 87, 45)[k]}, s82, {128*n}\nv_cndmask_b32 v{t+2+k}, v{t+1}, v{t}, s[84:85]')
    for j, (srd, n) in enumerate(todo):
        k = ns.index(n)
        d = t + 6 + cfg.setdefault('_npf', 0); cfg['_npf'] += 1
        P(f'buffer_load_dword v{d}, v{t+2+k}, {srd}, s{(83, 86, 87, 45)[k]} offen')

def setup_d(cx=0):
    hi, lo, a, b, c, d = sU
    t = vT
    r = f'''s_and_b32 {hi}, s2, 7
    s_lshr_b32 {lo}, s2, 6
    s_lshl2_add_u32 {hi}, {hi}, {lo}
    s_bfe_u32 {lo}, s2, 0x30003
    v_cmp_eq_u32 {sPm}, 0, v0
    v_mov_b32 v{vFl}, 0x40000000
    s_lshl2_add_u32 {sFl}, s2, {s.w}
    s_lshl_b32 {sFl}, {sFl}, 7
    v_cndmask_b32 v{vFl}, v{vFl}, 0, {sPm}'''
    r2 = f'''s_mul_i32 {sWk}, {s.w}, {12*16384}
    s_bfe_u32 {sT}, s2, 0x30003
    s_lshl_b32 {sT}, {sT}, 7
    v_lshrrev_b32 v{vWdD+1}, 3, v0
    v_and_b32 v{vWdD+2}, 7, v0
    v_bfe_u32 v{vWdD+3}, v0, 4, 1
    v_lshlrev_b32 v{vWdD+3}, 2, v{vWdD+3}
    v_xor_b32 v{vWdD+2}, v{vWdD+2}, v{vWdD+3}
    v_lshlrev_b32 v{vWdD+2}, 4, v{vWdD+2}
    v_lshl_add_u32 v{vWdD+2}, v{vWdD+1}, 10, v{vWdD+2}
    v_add_u32 v{vWdD}, {sT}, v{vWdD+2}
    v_add_u32 v{vWdD+1}, 7168, v{vWdD}
    v_add_u32 v{vWdD+2}, {2*7168}, v{vWdD}
    v_add_u32 v{vWdD+3}, {3*7168}, v{vWdD}'''
    ra = f'''v_bfe_u32 v{vRA+1}, v0, 4, 1
    v_bfe_u32 v{vRA}, v0, 1, 1
    v_lshl_add_u32 v{vRA}, v{vRA+1}, 1, v{vRA}
    v_bfe_u32 v{vRA+1}, v0, 3, 1
    v_xor_b32 v{vRA+1}, {s.ch}, v{vRA+1}
    v_lshl_add_u32 v{vRA}, v{vRA+1}, 2, v{vRA}
    v_and_b32 v{vRA+1}, 1, v0
    v_lshlrev_b32 v{vRA+1}, 3, v{vRA+1}
    v_lshl_add_u32 v{vRA}, v{vRA}, 4, v{vRA+1}
    v_bfe_u32 v{vRA+1}, v0, 2, 2
    v_lshl_add_u32 v{vRA}, v{vRA+1}, 7, v{vRA}
    v_lshrrev_b32 v{vRA+1}, 5, v0
    v_lshl_add_u32 v{vRA}, v{vRA+1}, 9, v{vRA}
    v_add_u32 v{vRA}, {sFA}, v{vRA}
    v_xor_b32 v{vRA+1}, 64, v{vRA}'''
    r3 = f'''v_add_u32 v{vRA+2}, {LDS_FB}, v{vRA}
    v_add_u32 v{vRA+3}, {LDS_FB}, v{vRA+1}
    s_lshl_b32 {a}, {s.w}, 1
    s_sub_u32 {sNb}, 8, {a}
    s_lshl3_add_u32 {a}, {lo}, {a}
    s_lshl_b32 {sOo}, {a}, 5
    s_add_u32 {sOo}, {sOo}, {hi}
    s_lshl_b32 {sOo}, {sOo}, 10
    s_add_u32 {sOo}, {sOo}, {WS_O}
    s_lshl_b32 {sVo}, {hi}, 6
    s_add_u32 {sQo}, {sVo}, {a}
    s_lshl_b32 {sQo}, {sQo}, 10
    s_add_u32 {sQo}, {sQo}, {WS_QKV}
    s_lshl1_add_u32 {a}, {lo}, {s.w}
    s_sub_u32 {a}, {a}, 2
    s_max_i32 {a}, {a}, 0
    s_lshl2_add_u32 {sVo}, {a}, {sVo}
    s_lshl_b32 {sVo}, {sVo}, 10
    s_add_u32 {sKo[0]}, {sVo}, {WS_QKV + 32*65536}
    s_add_u32 {sVo}, {sVo}, {WS_QKV + 64*65536}
    s_lshl1_add_u32 {a}, {hi}, {s.th}
    s_xor_b32 {b}, {a}, 1
    s_mul_i32 {sHe[0]}, {a}, {112*1024}
    s_mul_i32 {sHe[1]}, {b}, {112*1024}
    s_mul_i32 {b}, {s.w}, {12*1024}
    s_add_u32 {b}, {b}, {WS_H}
    s_add_u32 {sHe[0]}, {sHe[0]}, {b}
    s_add_u32 {sHe[1]}, {sHe[1]}, {b}
    s_lshl_b32 {b}, {s.w}, 12
    s_add_u32 {b}, {b}, {48*1024}
    s_add_u32 {sHl[0]}, {sHe[0]}, {b}
    s_add_u32 {sHl[1]}, {sHe[1]}, {b}
    s_lshl1_add_u32 {sOi}, {a}, {s.ch}
    s_lshl_b32 {sOi}, {sOi}, 14
    s_add_u32 {sOi}, {sOi}, {WS_O}
    s_lshl_b32 {sSt}, {a}, 9
    s_add_u32 {sSt}, {sSt}, {WS_STATS}
    s_lshl_b32 {sXo}, {a}, 15
    s_xor_b32 {a}, {lo}, {cx}
    s_lshl1_add_u32 {a}, {a}, {s.ch}
    s_lshl_b32 {a}, {a}, 6
    s_add_u32 {sXo}, {sXo}, {a}'''
    return mk(r, 'sfl'), mk(r2, 'sw') + mk(ra, 'sra'), mk(r3, 'srest')

def setup_polls(merge):
    hi, lo, a, b, c, d = sU
    x, y = vPd, vPd + 1
    r = f'''s_lshr_b32 {a}, {hi}, 2
    s_mul_i32 {b}, {a}, 43
    s_lshr_b32 {b}, {b}, 7
    s_mul_i32 {c}, {b}, 190
    s_lshl_b32 {d}, {a}, 6
    s_sub_u32 {c}, {d}, {c}
    v_mov_b32 v{vPq}, {c}
    s_add_u32 {b}, {a}, 8
    s_mul_i32 {b}, {b}, 43
    s_lshr_b32 {b}, {b}, 7
    s_mul_i32 {c}, {b}, 190
    s_add_u32 {d}, {d}, 512
    s_sub_u32 {c}, {d}, {c}
    s_lshl1_add_u32 {b}, {b}, 184
    s_cmp_lt_u32 {a}, 4
    s_cselect_b32 {c}, {c}, {b}
    v_mov_b32 v{x}, {c}
    s_add_u32 {b}, {a}, 16
    s_mul_i32 {b}, {b}, 43
    s_lshr_b32 {b}, {b}, 7
    s_lshl1_add_u32 {b}, {b}, 184
    v_mov_b32 v{y}, {b}
    v_bfe_u32 v{vPo}, v0, 3, 2
    v_cmp_eq_u32 {sPm}, 1, v{vPo}
    s_lshl_b32 {a}, {lo}, 1
    s_sub_u32 {a}, {a}, 2
    v_cndmask_b32 v{vPq}, v{vPq}, v{x}, {sPm}
    v_cmp_eq_u32 {sPm}, 2, v{vPo}
    v_bfe_u32 v{x}, v0, 1, 2
    v_add_u32 v{vPh}, {a}, v{x}
    v_cndmask_b32 v{vPq}, v{vPq}, v{y}, {sPm}
    v_max_i32 v{vPh}, 0, v{vPh}
    v_lshrrev_b32 v{y}, 3, v{vPh}
    v_add_u32 v{vPq}, v{vPq}, v{y}
    v_and_b32 v{vPh}, 7, v{vPh}
    v_lshl_add_u32 v{vPq}, v{vPh}, 3, v{vPq}
    v_and_b32 v{y}, 1, v0
    v_lshl_add_u32 v{vPq}, v{vPq}, 2, v{y}
    s_and_b32 {a}, {hi}, 2
    v_add_u32 v{vPq}, {a}, v{vPq}
    s_lshr_b32 {a}, {hi}, 4
    s_bfe_u32 {b}, {hi}, 0x30001
    s_lshl3_add_u32 {a}, {b}, {a}
    s_lshl1_add_u32 {a}, {s.w}, {a}
    s_and_b32 {b}, {hi}, 1
    s_lshl2_add_u32 {a}, {a}, {b}
    v_lshlrev_b32 v{x}, 8, v{x}
    v_lshl_add_u32 v{x}, v{y}, 1, v{x}
    v_add_u32 v{vPh}, {a}, v{x}
    v_cmp_eq_u32 {sPm}, {3 if merge else 4}, v{vPo}
    v_bfe_u32 v{x}, v0, 2, 2
    v_and_b32 v{y}, 3, v0
    v_cndmask_b32 v{vPq}, v{vPq}, v{vPh}, {sPm}
    s_mov_b32 {c}, {WS_FLAGQ}
    s_mov_b32 {d}, {WS_FLAGH if merge else WS_FLAGE}
    v_lshl_add_u32 v{vPq}, v{vPq}, 7, {c}
    v_lshl_add_u32 v{vPh}, v{vPh}, 7, {d}
    v_lshl_add_u32 v{x}, v{y}, 6, v{x}
    s_lshr_b32 {a}, {hi}, 2
    s_lshl_b32 {a}, {a}, 1
    s_add_u32 {a}, {a}, {s.ch}
    s_lshl_b32 {a}, {a}, 4
    s_and_b32 {b}, {hi}, 3
    s_add_u32 {a}, {a}, {b}
    s_add_u32 {a}, {a}, {WS_FLAGO // 128}
    v_lshl_add_u32 v{x}, v{x}, 2, {a}
    v_lshlrev_b32 v{vPo}, 7, v{x}'''
    return mk(r, 'spoll')

def setup_att():
    a = sU[2]
    x, y, z = A.PM, A.PM + 1, A.PM + 2
    r = f'''v_lshrrev_b32 v{x}, 5, v0
    v_and_b32 v{y}, 15, v0
    v_lshlrev_b32 v{y}, 3, v{y}
    v_lshl_add_u32 v{y}, v{x}, 7, v{y}
    s_lshl_b32 {a}, {s.w}, 11
    s_add_u32 {a}, {a}, {LDS_V}
    v_add_u32 v{z}, {a}, v{y}
    v_add_u32 v{vKa}, {a}, v{vL16}
    v_add_u32 v{vKa}, {LDS_K - LDS_V}, v{vKa}
    s_add_u32 {a}, {sFA}, {LDS_FB + SB[3]}
    v_xor_b32 v{y}, 128, v{y}
    v_add_u32 v{y}, {a}, v{y}
    v_add_u32 v{A.PM+3}, {a}, v{vL16}
    v_and_b32 v{A.J}, 16, v0
    v_cmp_eq_u32 s[86:87], 0, v{A.J}
    v_mov_b32 v{A.J+1}, 1024
    v_and_b32 v{A.J}, 31, v0
    v_cndmask_b32 v{A.VA}, v{y}, v{z}, s[86:87]
    v_cndmask_b32 v{z}, 0, v{A.J+1}, s[86:87]
    v_lshlrev_b32 v{x}, 2, v{x}
    v_sub_u32 v{A.J}, v{A.J}, v{x}
    v_mov_b32 v{A.J+1}, 0xffff
    v_mov_b32 v{A.M}, {attn.NINF}
    v_mov_b32 v{A.M+1}, {attn.NINF}'''.split('\n')
    r += [f'v_add_u32 v{A.VA+b}, v{A.VA+b-1}, v{z}' for b in range(1, 10)]
    r += [f'v_mov_b32 v{A.PM+4+k}, 0x3f803f80' for k in range(4)]
    r += f'''v_and_b32 v{vRs}, 31, v0
    v_lshrrev_b32 v{vXo}, 5, v0
    v_lshlrev_b32 v{vOo}, 10, v{vRs}
    v_lshlrev_b32 v{vRs}, 4, v{vRs}
    v_lshl_add_u32 v{vOo}, v{vXo}, 3, v{vOo}
    v_lshlrev_b32 v{vXo}, 3, v{vXo}
    v_add_u32 v{vOo}, v{vOo}, v{vXo}
    v_sub_u32 v{vXo}, v{vOo}, v{vXo}'''.split('\n')
    return mk(r)
def xload():
    r = mk(f'buffer_load_dword v{vRs}, v{vRs}, {sWS}, {sSt} offen offset:4 sc1', 'xl')
    return r + mk([f'buffer_load_dwordx2 {vr(vX + 2*g, 2)}, v{vXo}, {sX}, {sXo} offen offset:{16*g}' for g in range(4)], 'xl')
def woload(q):
    g = (f's_lshl1_add_u32 m0, {s.mx}, {LDS_V + 4096*q}' if q < 2 else f's_add_u32 m0, {sFA}, {SA[q]}')
    g = mk(f'{g}\ns_lshl_b32 {sT}, {s.w}, 17\ns_add_u32 {sT}, {sT}, {q*32768}')
    return g + mk([f'buffer_load_dwordx4 v{vWdD+j}, {sWO}, {sT} offen offset:{1024*j} lds' for j in range(4)], 'wo')

def kqv():
    r = mk([f'buffer_load_dwordx4 {ar(A.aQ + 4*t, 4)}, v{vL16}, {sWS}, {sQo} offen offset:{1024*t} sc1' for t in range(2)])
    for tag, lds, so in (('K', LDS_K, sKo[0]), ('V', LDS_V, sVo)):
        r += mk(f's_add_u32 m0, {s.mx}, {lds}')
        r += mk([f'buffer_load_dwordx4 v{vL16}, {sWS}, {so} offen offset:{1024*j} sc1 lds' for j in range(4)], tag)
    return r
kr = lambda b: f'ds_read_b128 {ar(attn.kreg(b), 4)}, v{vKa} offset:{1024*b}'
A.kpre = mk([kr(b) for b in (8, 0, 9, 1)] + [f'ds_write_b128 v{A.PM+3}, {vr(A.PM+4, 4)}'] + [kr(b) for b in range(2, 8)])

class Guarded(Pool):
    other = None
    def take(self, *a):
        r = Pool.take(self, *a)
        if self.other is not None:
            busy = set(x for o in self.other for i in o.q for x in i.src + i.dst)
            for i in r: assert not busy & set(i.dst), i.text
        return r

def need(P, pool, tags, v=None):
    q = pool.q
    n = max((j + 1 for j, x in enumerate(q) if x.tag in tags and x.cls != 'pseudo'), default=0)
    if n and v: print('forced', v, tags, n)
    P.add([x for x in q[:n] if x.op != '@delay']); del q[:n]

class WSeq:
    def __init__(self, at=0, started=False): self.at = at; self.started = started
    def __call__(self, u):
        r = []
        if self.at < 6 <= u:
            r += mk(f's_lshl_b32 {sT}, {s.w}, 16\ns_add_u32 {sWk}, {sWk}, {sT}'); r[0].meta['glue'] = True
            d = (u - self.at) * 32768 + 36 * 16384
        else:
            assert (self.at < 6) == (u < 6)
            d = (u - self.at) * 32768
        if d: r += mk(f's_add_u32 {sWk}, {sWk}, {d}' if d > 0 else f's_sub_u32 {sWk}, {sWk}, {-d}')
        self.at = u
        if u in FREE: r += [waitlg(f'r{FREE[u]}')]
        reg, off = slot(u)
        r += mk(f's_add_u32 m0, {sFA}, {reg*LDS_FB + off}')
        r += mk([f'buffer_load_dwordx4 v{vWdD+j}, {sWD}, {sWk} offen offset:{1024*j} lds' for j in range(4)], f'w{u}')
        return r
FREE = {4: 0, 5: 1, 6: 2, 7: 3, 12: 4, 13: 5}

def plan(txt):
    r = {}
    for part in txt.split('/'):
        if not part: continue
        k, _, items = part.partition(':')
        r[k] = items.split(',')
    return r
def expand(items, W):
    r = []
    for x in items:
        if '&' in x:
            a, b = (expand([y], W) for y in x.split('&'))
            per = -(-sum(1 for y in b if y.states()) // sum(1 for y in a if y.cls == 'vmem'))
            for y in a:
                r.append(y)
                k = per if y.cls == 'vmem' else 0
                while b and k > 0:
                    k -= b[0].states(); r.append(b.pop(0))
            r += b
            continue
        n = int(x[1:])
        if x[0] == 'w': r += W(n)
        elif x[0] == 's': r += stage(n)
        elif x[0] == 'h': r += hload(n)
        elif x[0] == 'd': r += [delay(n)]
        elif x[0] == 'p': r += share(n)
        elif x[0] == 'e': r += dose(n)
        elif x[0] == 'o': r += woload(n)
        elif x[0] == 'x': r += xload()
        else: raise ValueError(x)
    return r
PLAN = '15:w0,w1,w2,w3/20:s0,s1,d96,w4,w5/24:s2,s3/q:w6,w7/a:w8,w9,h0,h1,s4,s5,w10,d96,h2,h3,w12,w13,h4,h5/b:w11,x0/c:o0,o1/d16:o2,o3'

class P2Ext:
    def __init__(self, sfx, cold, cfg):
        self.sfx, self.cold, self.cfg = sfx, cold, cfg
        self.dq = Pool(1, period=cfg.get('per2', 64), burst=cfg.get('burst2', 2), maxds=2)
        self.su = Guarded()
        self.fl = Pool()
        self.eh = None
        self.W = cfg['_W'] = WSeq()
        if 'p' in plan(cfg.get('plan', PLAN)): expand(plan(cfg['plan'])['p'], self.W)
        self.plan = plan(cfg.get('plan', PLAN))
    def pools(self, bg): return (self.fl, self.dq, bg, self.su)
    def flush(self, P, pool, name):
        r = pool.rest()
        if r and self.cfg.get('v'): print('flush', self.sfx, name, len(r))
        P.add(r)
    def need(self, P, tags, pool=None): need(P, pool or self.dq, tags, self.cfg.get('v') and self.sfx)
    def at(self, P, i, st, bg):
        cfg, dq, su = self.cfg, self.dq, self.su
        merge = cfg.get('merge', 1)
        k = 4*i + st
        if cfg.get('v') and k and not bg.q and not getattr(self, 'said', 0): print('results out by', self.sfx, k); self.said = 1
        if k == 0 and merge and self.eh:
            for x in self.eh: x.tag = x.tag and 'st1'
            bg.put(self.eh); self.eh = None
        if k == cfg.get('kw3', 12) and not cfg.get('nowarm'):
            assert k >= 1 and not any('vcc' in x.src + x.dst for x in bg.q)
            self.fl.put(warm3())
        if k == cfg.get('ksu', 3):
            su.other = (bg, dq)
            fl_, w_, rest = setup_d(cfg.get('cx', 0))
            su.put(fl_); su.put(setup_polls(merge)); self.rest = rest
        if k == cfg.get('kd6', 0): dq.put(g1.dma2(6)); dq.put(g1.dma2(7))
        if k == cfg.get('pubq' + self.sfx, 17):
            self.flush(P, bg, 'bg'); self.need(P, ('sfl',), su)
            self.fl.put(f'v_mov_b32 v{vFd}, {s.n0}\nv_mov_b32 v{vFd+1}, {s.n1}')
            T = Prog(); stamp(T, 'pub0'); self.fl.put(T.L)
            self.fl.put(publish(WS_FLAGQ, 'st1'))
            T = Prog(); stamp(T, 'pub1'); self.fl.put(T.L)
        if k == cfg.get('keh', 12) and self.eh: bg.put(self.eh)
        if k == 15:
            self.need(P, ('d6', 'd7')); su.put(self.rest)
        if k == cfg.get('pollq', 23):
            self.need(P, ('spoll',), su)
            self.fl.put(poll(vPq, WS_FLAGQ))
            T = Prog(); stamp(T, 'polq'); self.fl.put(T.L)
        if k == cfg.get('ksa', 20):
            self.flush(P, su, 'su'); su.put(setup_att())
        for key in (str(k), self.sfx + str(k)):
            if key not in self.plan: continue
            it = self.plan[key]
            if any('w' in x for x in it): self.need(P, ('sw',), su)
            if any('s' in x for x in it): self.need(P, ('sra',), su)
            for x in it:
                for y in x.split('&'):
                    n = int(y[1:])
                    if y[0] == 's': assert k >= 4 + 4*(n >> 1)
                    if y[0] == 'w': assert k >= {0: 0, 1: 7 if 1 in cfg.get('bars', ()) else 15, 2: 7 if 1 in cfg.get('bars', ()) else 15,
                                                 3: 11 if 2 in cfg.get('bars', ()) else 15, 8: 23, 9: 31, 10: 31, 11: 99}.get(n, 0)
                    if y[0] == 'h': assert k > cfg.get('chkq', 27)
            dq.put(expand(it, self.W))
        if k == cfg.get('chkq', 27):
            assert k >= 23
            self.flush(P, self.fl, 'fl')
            T = Prog(); stamp(T, 'chk0'); dq.put(T.L)
            dq.put(check(self.cold, 'q' + self.sfx, vPq, WS_FLAGQ))
            T = Prog(); stamp(T, 'chkq'); dq.put(T.L)
            dq.burst = cfg.get('burstk', 6)
            dq.put(kqv())
            dq.put(expand(self.plan.get('q', []), self.W))
        if k == cfg.get('pube', 29):
            self.flush(P, bg, 'bg2')
            if merge: su.put(f's_add_u32 {sFl}, {sFl}, 0x20000')
            else: self.fl.put(publish(WS_FLAGE, 'st1h'))
        if k == 31:
            self.flush(P, su, 'su3')
            P(f's_bfe_u32 s84, s2, 0x30003\ns_cmp_eq_u32 s84, 0\ns_cselect_b64 vcc, -1, 0')
    def done(self, P):
        self.flush(P, self.fl, 'fl'); self.flush(P, self.dq, 'dq-end')

class AttBg:
    def __init__(self, cold, cfg):
        self.cold, self.cfg = cold, cfg
        self.q = Pool(cfg.get('vm3', 1), period=cfg.get('per3', 64), burst=cfg.get('burst3', 2), maxds=3)
        self.fl = Pool()
        self.plan = plan(cfg.get('plan', PLAN))
        self.mf = [(u, ks, c, tt) for u in range(6) for ks in range(2) for c in range(2) for tt in range(2)][:cfg.get('nx', 44)]
        self.done = 0; self.late = list(range(6, cfg.get('hatt', 12))); self.hok = False
    def extra(self, P):
        if not self.mf: return []
        u, ks, c, tt = self.mf.pop(0)
        if (ks, c, tt) == (0, 0, 0):
            need(P, self.q, (f'h{u}', f'r{u}'), self.cfg.get('v') and 'att')
            P.waitvm(f'h{u}')
        self.done = u + ((ks, c, tt) == (1, 1, 1))
        return [d1mf(u, ks, c, tt)]
    def gap(self, P, where):
        q, cfg = self.q, self.cfg
        if where == ('p0', 0): q.put(expand(self.plan.get('a', []), cfg['_W']))
        if where == ('dg', 0): q.put(expand(self.plan.get('b', []), cfg['_W']))
        if where == ('it', cfg.get('kbar', 0)):
            P.waitlg(); P('s_barrier')
            q.put(expand(self.plan.get('c', []), cfg['_W']))
        if where == ('p1', cfg.get('pubh', 12)): self.fl.put(publish(WS_FLAGH, 'st2'))
        if where == ('it', cfg.get('pollh', 2)):
            self.fl.put(poll(vPh, WS_FLAGH))
            T = Prog(); stamp(T, 'polh'); self.fl.put(T.L)
        if where == ('it', cfg.get('chkh', 6)):
            P.add(self.fl.rest())
            stamp(P, 'chh0')
            P.add(check(self.cold, 'h', vPh, WS_FLAGH))
            stamp(P, 'chkh')
            self.hok = True
        if where[0] == 'it': stamp(P, f'it{where[1]}')
        while self.hok and self.late and (self.late[0] - 6) >> 1 < self.done: q.put(hload(self.late.pop(0)))
        if where[0] == 'it': return
        P.add(self.fl.take(99, True, P.now()))
        P.add(q.take(20, True, P.now()))

def mf(d, a, b, first):
    return f'v_mfma_f32_32x32x16_bf16 {d}, {a}, {b}, {"0" if first else d}'
def d1mf(u, ks, c, tt):
    hk, hb = hreg(u)
    a = ar(aW + 16*u + 8*ks + 4*c, 4) if u < 6 else vr(vWF + 8*ks + 4*c, 4)
    return mf(rg(*FT[2*c + tt], 16), a, rg(hk, hb + 8*ks + 4*tt, 4), u == 0 and ks == 0)

def dstage(P, cold, cfg, att):
    dq = Pool(1, period=cfg.get('per4', 64), burst=cfg.get('burst4', 6))
    dq.put(att.q.rest())
    fl = Pool(); su = Pool()
    nx = cfg.get('nx', 44)
    assert not att.mf and att.hok and nx % 4 == 0 and nx >= 32
    for u in list(att.late) + list(range(cfg.get('hatt', 12), 14)): dq.put(hload(u))
    pl = plan(cfg.get('plan', PLAN))
    rw, rr, wa, x = vAd, vAd + 2, vAd + 6, vAd + 10
    su.put(f"""v_add_u32 v{rw}, {sFA}, v{vL16}
    v_add_u32 v{rw+1}, {LDS_FB}, v{rw}
    v_xor_b32 v{rr}, {4096}, v{rw}
    v_add_u32 v{rr}, {LDS_FB}, v{rr}
    v_xor_b32 v{rr+1}, {8192}, v{rw}
    v_xor_b32 v{rr+2}, {12288}, v{rw}
    v_add_u32 v{rr+2}, {LDS_FB}, v{rr+2}
    v_add_u32 v{rr+3}, {LDS_FB}, v{rr+1}
    v_subrev_u32 v{wa}, {sFA}, v{vRA}
    v_lshrrev_b32 v{x}, 5, v0
    v_lshl_add_u32 v{wa}, v{x}, 9, v{wa}
    s_lshl_b32 {sU[0]}, {s.ch}, 13
    v_add_u32 v{wa+2}, {sU[0]}, v{wa}
    s_lshl_b32 {sU[0]}, {s.ch}, 14
    s_add_u32 {sU[0]}, {sU[0]}, {LDS_V}
    v_add_u32 v{wa}, {sU[0]}, v{wa}
    v_xor_b32 v{wa+1}, 64, v{wa}
    v_xor_b32 v{wa+3}, 64, v{wa+2}""")
    su.put(f"""s_lshl_b32 {sU[0]}, {s.w}, 15
    s_add_u32 {sU[0]}, {sU[0]}, {WS_FLAGQ}
    s_cmp_eq_u32 s2, 0
    s_cselect_b32 {sU[0]}, {sU[0]}, 0x40000000
    v_lshl_add_u32 v{vBa}, v0, 9, {sU[0]}
    s_or_b32 {sU[0]}, s2, {s.w}
    s_cmp_eq_u32 {sU[0]}, 0
    s_cselect_b32 {sU[0]}, 0, 0x40000000
    v_or_b32 v{vBa+1}, {sU[0]}, v{vFl}
    buffer_load_dwordx2 {vr(vBd, 2)}, v{vBa}, {sWS}, 0 offen sc1""")
    rsrc = {1: rr, 2: rr + 3, 3: rr + 2}
    olds = []
    for q in range(4):
        for j in range(4): olds += mk(f'buffer_load_dwordx4 {ar(aO + 16*q + 4*j, 4)}, v{vL16}, {sWS}, {sOi} offen offset:{1024*j} sc1', f'o{4*q+j}')
        if q < 3: olds += mk(f's_add_u32 {sOi}, {sOi}, 4096')
    steps = [(u, ks) for u in range(14) for ks in range(2)][nx // 4:]
    for u, ks in steps:
        k = 2*u + ks
        if f'd{k}' in pl: dq.put(expand(pl[f'd{k}'], cfg['_W']))
        if k == cfg.get('pubo', 21):
            T = Prog(); stamp(T, 'pbo0'); fl.put(T.L)
            fl.put(publish(WS_FLAGO, 'sto'))
            T = Prog(); stamp(T, 'pbo1'); fl.put(T.L)
        if k == cfg.get('pollo', 25): fl.put(poll(vPo, WS_FLAGO))
        if k == 12: stamp(P, 'd1m')
        if ks == 0 or (u, ks) == steps[0]: need(P, dq, (f'h{u}', f'r{u}'), cfg.get('v') and 'd')
        mfs, fixed = [], {}
        nu, nk = (u, 1) if ks == 0 else (u + 1, 0)
        rd = []
        if 6 <= nu < 14:
            if nk == 0: need(P, dq, (f'w{nu}',), cfg.get('v') and 'd'); P.waitvm(f'w{nu}')
            rd = wread(nu, nk, 'v', vWF + 8*nk)
        for c in range(2):
            for tt in range(2):
                if tt == 0 and rd: fixed[len(mfs)] = rd.pop(0)
                mfs.append(d1mf(u, ks, c, tt))
        weave(P, mfs, fixed, (fl, dq, su), slack=0)
    if cfg.get('v'): print('d1 rest', len(fl.q), len(dq.q), len(su.q))
    P.add(fl.rest()); P.add(dq.rest()); P.add(su.rest())
    stamp(P, 'd1')
    P(f'v_cmp_ne_u64 s[84:85], {sN}, {vr(vBd, 2)}\ns_cmp_eq_u32 s2, 0\ns_cbranch_scc1 L_bump\nL_bump_back:')
    cold.add([forget()])
    cold(f"""L_bump:
    s_cmp_eq_u64 s[84:85], 0
    s_cbranch_scc1 L_bump_back
    s_sub_u32 {s.spin}, {s.spin}, 1
    s_cmp_le_i32 {s.spin}, 0
    s_cbranch_scc1 L_bump_back
    buffer_load_dwordx2 {vr(vBd, 2)}, v{vBa}, {sWS}, 0 offen sc1
    v_cmp_ne_u64 s[84:85], {sN}, {vr(vBd, 2)}
    s_branch L_bump""")
    wr = []
    for j in (1, 2, 3):
        kind, b = FT[j]
        wr += [f'ds_write_b128 v{rw+1}, {rg(kind, b + 4*q, 4)} offset:{SB[j-1] + 1024*q}' for q in range(4)]
    n0 = cfg.get('wr0', 12)
    P.add(wr[:n0])
    stamp(P, 'cho0')
    P.add(check(cold, 'o', vPo, WS_FLAGO))
    stamp(P, 'chko')
    oq = Pool(1, period=cfg.get('per5', 64), burst=cfg.get('burst5', 2))
    oq.put(olds)
    def paced(xs, c=None):
        for x_ in mk(xs):
            P.add(oq.take(8, True, P.now()))
            P.add([x_])
            if c: P._t += c
    G = vF; R2 = vAd + 10
    pre = mk(f'v_mul_f32 v{vRs}, v{vRs}, v{vRs}\nv_mul_f32 v{R2}, {f32(-LOG2E)}, v{vRs}')
    for g in range(8):
        pre += mk([f'v_lshlrev_b32 v{vXF+2*g}, 16, v{vX+g}', f'v_and_b32 v{vXF+2*g+1}, 0xffff0000, v{vX+g}'])
    P.now()
    b2 = cfg.get('b2', 1)
    paced(wr[n0:], cfg.get('wc', 48))
    if not b2:
        paced(pre); pre = []
        P.waitvm('wo')
    P.waitlg()
    P('s_barrier')
    stamp(P, 'rbar')
    P(f'buffer_store_dword v{vFd}, v{vBa+1}, {sWS}, 0 offen sc1')
    def wor(k):
        src, kk = k >> 3, k & 7
        reg, off = (wa, 8192*src + 2048*kk) if kk < 4 else (wa + 2, 4096*src + SA[kk >> 1] + 2048*(kk & 1))
        return [[f'ds_read_b64_tr_b16 {vr(vWF + 8*(k & 1) + 4*c + 2*j, 2)}, v{reg + c} offset:{off + 512*j}' for j in range(2)] for c in range(2)]
    paced([f'ds_read_b128 {vr(vF + 16*j + 4*q, 4)}, v{rsrc[j]} offset:{SB[j-1] + 1024*q}' for j in (1, 2, 3) for q in range(4)], 12)
    if not b2: P.add(wor(0))
    bg = Pool()
    for k in range(1, 4):
        bg.put([f'v_add_f32 v{G+r}, v{G+r}, v{vF+16*k+r}' for r in range(16)])
    bg.put(pre[:2])
    for r0 in range(0, 16, 4):
        rs = range(r0, r0 + 4)
        bg.put([f'v_mul_f32 v{vE+r}, v{R2}, v{G+r}' for r in rs])
        bg.put([f'v_exp_f32 v{vE+r}, v{vE+r}' for r in rs])
        bg.put([f'v_mul_f32 v{G+r}, v{vRs}, v{G+r}' for r in rs])
        bg.put([f'v_add_f32 v{vE+r}, 1.0, v{vE+r}' for r in rs])
        bg.put([f'v_rcp_f32 v{vE+r}, v{vE+r}' for r in rs])
    bg.put([f'v_mul_f32 v{G+r}, v{G+r}, v{vE+r}' for r in range(16)])
    bg.put(pre[2:])
    ne = cfg.get('early', 50)
    if b2:
        paced(bg.q[:ne - 12]); del bg.q[:ne - 12]
        P.waitvm('wo'); P('s_barrier'); P.add(wor(0)); ne = 12
    paced(bg.q[:ne]); del bg.q[:ne]
    stamp(P, 'red')
    for k in range(16):
        rd = wor(k + 1) if k < 15 else []
        need(P, oq, (f'o{k}',), cfg.get('v') and 'o')
        mfs, fixed = [], {}
        for c in range(2):
            if rd: fixed[len(mfs)] = rd.pop(0)
            mfs.append(mf(vr(vSx + 16*c, 16), vr(vWF + 8*(k & 1) + 4*c, 4), ar(aO + 4*k, 4), k == 0))
        weave(P, mfs, fixed, (oq, bg), slack=0)
    P.add(bg.rest())
    stamp(P, 'd2')
    for q in range(4): P(f'ds_write_b128 v{rw}, {vr(vSx + 16 + 4*q, 4)} offset:{SA[0] + q*1024}')
    for r in range(16): P(f'v_fmac_f32 v{vXF+r}, v{vSx+r}, v{G+r}')
    P.waitlg()
    P('s_barrier')
    for q in range(4): P(f'ds_read_b128 {vr(vSx + 16 + 4*q, 4)}, v{rr+1} offset:{SA[0] + q*1024}')
    for g in range(2):
        for r in range(8*g, 8*g + 8): P(f'v_fmac_f32 v{vXF+r}, v{vSx+16+r}, v{G+r}')
        for k in range(4*g, 4*g + 4): P(f'v_cvt_pk_bf16_f32 v{vX+k}, v{vXF+2*k}, v{vXF+2*k+1}')
        for k in range(2): P(f'v_permlane32_swap_b32 v{vX+4*g+k}, v{vX+4*g+2+k}')
        P(f'buffer_store_dwordx4 {vr(vX + 4*g, 4)}, v{vOo}, {sOUT}, {sXo} offen offset:{32*g}')
    stamp(P, 'out')

def build(cfg):
    P, cold = Prog(), Prog()
    g1.entry(P, 'L_end')
    for srd, off in ((sWO, 16), (sWD, 48), (sOUT, 56)): srd_load(P, srd, off)
    srd_const(P, sWO, 512*512*2); srd_const(P, sWD, 1792*512*2); srd_const(P, sOUT, 2048*512*2)
    cfg['_hook'] = lambda P, pos: hook(P, pos, cfg)
    cfg['_pre'] = lambda: setup_d()[1]
    cfg['_pre7'] = lambda: expand(plan(cfg.get('plan', PLAN)).get('p', []), WSeq())
    g1.g1_body(P, cold, cfg, lambda sfx: P2Ext(sfx, cold, cfg))
    g1.epilogue2(P)
    stamp(P, 'e2')
    bg = AttBg(cold, cfg)
    attn.pass1(P, cold, [], bg)
    stamp(P, 'a1')
    attn.pass2b(P, cold, bg, bg.extra)
    if cfg.get('v'): print('att rest', len(bg.fl.q), len(bg.q.q))
    P.add(bg.fl.rest())
    stamp(P, 'a2')
    dstage(P, cold, cfg, bg)
    stamp_end(P)
    P('L_end:\ns_endpgm')
    P.add(cold.L)
    P('L_last:')
    abl = cfg.get('abl', '').split(',')
    def drop(x):
        t = x.tag if isinstance(x.tag, str) else ''
        if x.cls == 'vmem':
            if 'hl' in abl and t[:1] == 'h' and int(t[1:]) >= 6: return True
            if 'he' in abl and t[:1] == 'h' and int(t[1:]) < 6: return True
            if 'wo' in abl and t == 'wo': return True
            if 'wd' in abl and t[:1] == 'w' and t != 'wo': return True
            if 'o' in abl and t[:1] == 'o': return True
            if 'st1' in abl and t == 'st1': return True
            if 'st2' in abl and t == 'st2': return True
            if 'kv' in abl and t in ('K', 'V'): return True
        if x.cls == 'ds' and 'stage' in abl and t[:1] == 'r': return True
        return False
    P.L = [x for x in P.L if not drop(x)]
    for j, x in enumerate(P.L):
        t = x.tag if isinstance(x.tag, str) else ''
        if x.cls != 'vmem': continue
        if 'whit' in abl and t[:1] == 'w': P.L[j] = I(re.sub(r', s\d+ offen', ', 0 offen', x.text).replace(' lds', ' sc1 lds'), x.tag)
        if 'hhit' in abl and t[:1] == 'h': P.L[j] = I(re.sub(r', s\d+ offen', f', {s.mx} offen', x.text), x.tag)
    L = finish(P.L)
    return L

if __name__ == '__main__':
    cfg = {}
    for a in sys.argv[2:]:
        k, _, v = a.partition('=')
        if k == 'st':
            STAMPS[0] = True; SEL.extend(v.split(','))
        elif k == 'dbg':
            STAMPS[0] = 'dbg'; SEL.extend(v.split(','))
        elif k in ('plan', 'abl'): cfg[k] = v
        elif k in ('doses', 'bars'): cfg[k] = [int(x) for x in v.split(',')]
        else: cfg[k] = int(v) if v else 1
    if cfg.get('vc'): COST['vmem'] = cfg['vc']
    if cfg.get('dc'): COST['ds'] = cfg['dc']
    L = build(cfg)
    print('instructions', sum(1 for x in L if x.states()), 'estimate', estimate(L), 'nops', sum(1 for x in L if x.cls == 'nop'))
    src = '; @launch grid=(256,1,1) block=(256,1,1) lds=163840\n.amdgcn_target "amdgcn-amd-amdhsa--gfx950"\n' + kernel_text(NAME + '_kernel', L)
    open(sys.argv[1], 'w').write(src)
```

```python
from common import *

vT = 2
vL16 = 1
vXd = 10; vWd = 14
vXr = 22
vA, vB, vC = 26, 28, 30
vAugW, vAugR = 32, 33
vQo = 34
vSel = 36; vCs = 40; vSt = 52; vXa = 60; vAg = 64; vScq = 70; vWf = 72
vAcc2 = 96; vAcc1 = 160
vXr2 = 156
SLOT = 40960
LDS_AUG = 114688
def acc1(u, t): return vAcc1 + 32 * u + 16 * t
def acc2(u, t): return vAcc2 + 32 * u + 16 * t
def wf(par, u): return vWf + 12 * par + 4 * u
def xf(i, st, t): return 32 * i + 8 * st + 4 * t
BASE = {vA: 0, vB: 49152, vC: 98304}
W1 = [(vA, 0), (vA, SLOT), (vB, 2*SLOT - 49152), (vC, 3*SLOT - 98304)]
W2 = [(r, a - BASE[r], a) for r, a in ((vA, 0), (vA, 16384), (vA, 49152), (vB, 65536), (vB, 81920), (vC, 98304), (vC, 131072), (vC, 147456))]

def entry(P, endlabel):
    P(f's_cmp_ge_u32 s2, 256\ns_cbranch_scc1 {endlabel}')

def early(P, endlabel, cfg):
    a = vLp
    nx = cfg.get('enx', 2)
    P(f'''s_cmpk_ge_u32 s2, 256
    s_cbranch_scc1 {endlabel}
    s_load_dwordx4 s[4:7], s[0:1], 0
    s_load_dwordx4 s[20:23], s[0:1], 32
    s_load_dwordx2 s[28:29], s[0:1], 72''')
    if STAMPS[0]: P('s_memrealtime s[100:101]')
    r = mk(f'''s_getpc_b64 s[84:85]
    L_pc:
    s_andn2_b32 s82, s2, 7
    v_lshrrev_b32 v{a}, 5, v0
    v_add_lshl_u32 v{a}, v{a}, s82, 7
    v_min_u32 v{a}, L_last-L_pc-4, v{a}
    global_load_dword v{a+6}, v{a}, s[84:85]
    v_lshrrev_b32 v{a+1}, 4, v0
    v_lshl_add_u32 v{a+1}, s82, 1, v{a+1}
    v_and_b32 v{a+2}, 15, v0
    s_bfe_u32 s83, s2, 0x20001
    s_mul_i32 s83, s83, 3
    v_add_lshl_u32 v{a+2}, v{a+2}, s83, 7
    s_movk_i32 s86, 3072
    v_mad_u32_u24 v{a+2}, v{a+1}, s86, v{a+2}
    v_lshl_add_u32 v{a+1}, v{a+1}, 9, v{a+2}
    s_and_b32 s87, s2, 1
    s_lshl_b32 s87, s87, 8
    s_add_u32 s87, s87, s82
    s_lshr_b32 s83, s87, 6
    v_lshrrev_b32 v{a+3}, 3, v0
    v_lshl_add_u32 v{a+3}, s87, 2, v{a+3}
    v_add_u32 v{a+4}, s83, v0
    v_and_b32 v{a+4}, 7, v{a+4}
    v_lshlrev_b32 v{a+4}, 7, v{a+4}
    v_lshl_add_u32 v{a+3}, v{a+3}, 10, v{a+4}
    s_mov_b32 exec_lo, {hex(((1 << nx) - 1) * 0x01010101)}
    s_mov_b32 exec_hi, exec_lo
    s_waitcnt lgkmcnt(0)
    global_load_dword v{a+6}, v{a+3}, s[4:5]
    s_mov_b32 exec_lo, 0x00070007
    s_mov_b32 exec_hi, exec_lo
    global_load_dword v{a+6}, v{a+2}, s[6:7]
    global_load_dword v{a+6}, v{a+2}, s[6:7] offset:1536
    global_load_dword v{a+6}, v{a+1}, s[20:21]
    global_load_dword v{a+6}, v{a+1}, s[22:23]
    s_mov_b64 exec, -1''')
    if cfg.get('enw', 2) == 2:
        tx = [x.text for x in r]
        k = tx.index(f'v_lshrrev_b32 v{a+1}, 4, v0')
        sx = tx.index('s_and_b32 s87, s2, 1')
        r = r[:k] + r[sx:sx+3] + mk(f'v_lshrrev_b32 v{a+1}, 5, v0\nv_add_u32 v{a+1}, s87, v{a+1}\nv_and_b32 v{a+2}, 31, v0') + r[k+3:sx] + r[sx+3:]
        r = [mk('s_mov_b32 exec_lo, 7')[0] if '0x00070007' in x.text else x for x in r]
    if cfg.get('rot') == 8:
        r = [mk(x.text.replace('s87', 's82'))[0] if x.text in (f'v_add_u32 v{a+1}, s87, v{a+1}', 's_lshr_b32 s83, s87, 6') else x for x in r]
    for x in r:
        if x.cls == 'vmem': x.dst = []
    if cfg.get('enw') == 0: r = [x for x in r if not (x.cls == 'vmem' and ('s[6:7]' in x.text or 's[2' in x.text))]
    if nx == 0: r = [x for x in r if not (x.cls == 'vmem' and 's[4:5]' in x.text)]
    P.add(r)
    if STAMPS[0]: P('s_memtime s[98:99]')
    P('s_mov_b64 s[8:9], s[6:7]\ns_mov_b64 s[24:25], s[22:23]')

def rest_x(cfg):
    a = vLp
    nx = cfg.get('enx', 2)
    m = (0xff & ~((1 << nx) - 1)) * 0x01010101
    r = mk(f'''s_mov_b32 exec_lo, {hex(m)}
    s_mov_b32 exec_hi, exec_lo
    buffer_load_dword v{a+6}, v{a+3}, {sX}, 0 offen
    s_mov_b64 exec, -1''')
    for x in r[:-1]: x.meta['glue'] = True
    r[2].dst = []
    return r

def wave_ids(P):
    P(f'v_lshrrev_b32 v{vT}, 6, v0')
    P(f'v_and_b32 v0, 63, v0')
    P(f'v_readfirstlane_b32 {s.w}, v{vT}')
    P(f'v_lshlrev_b32 v{vL16}, 4, v0')

def nonce(P, vE):
    P(f'v_readfirstlane_b32 {s.n0}, v{vE}')
    P(f's_add_u32 {s.n0}, {s.n0}, 1')
    P(f's_mul_i32 {s.n1}, {s.n0}, 0x9e3779b1')
    P(f's_xor_b32 {s.n1}, {s.n1}, 0x7f4a7c15')

def kc_next(first=False):
    r = []
    if not first:
        r += [f's_add_u32 {s.kc}, {s.kc}, 1', f's_and_b32 {s.kc}, {s.kc}, 7']
    return r

def dma1(i):
    sl = i & 3
    tag = f'c{i}'
    pre = kc_next(i == 0) + [f's_lshl_b32 {s.kx}, {s.kc}, 7', f's_mul_i32 {s.k0}, {s.kc}, {64*3072}', f's_mul_i32 {s.k1}, {s.kc}, {s.str64}']
    seq = mk(pre)
    seq += mk(f's_add_u32 m0, {s.mx}, {sl*SLOT + 24576}')
    for j in range(4):
        seq += mk(f'buffer_load_dwordx4 v{vXd+j}, {sX}, {s.kx} offen offset:{1024*j} lds', tag)
    for u, (srd, so) in enumerate(((sQ, s.k0), (sU1, s.k1), (sU2, s.k1))):
        seq += mk(f's_add_u32 m0, {s.mw}, {sl*SLOT + u*8192}')
        for j in range(2):
            seq += mk(f'buffer_load_dwordx4 v{vWd+2*u+j}, {srd}, {so} offen offset:{1024*j} lds', tag)
    return seq

def dma2(i):
    tag = f'd{i}'
    seq = mk(kc_next() + [f's_mul_i32 {s.k2}, {s.kc}, {64*3584}'])
    for u, srd in enumerate((sG, sU)):
        seq += mk(f's_add_u32 m0, {s.mw}, {W2[i][2] + u*8192}')
        for j in range(2):
            seq += mk(f'buffer_load_dwordx4 v{vWd+6+j}, {srd}, {s.k2} offen offset:{1024*j} lds', tag)
    return seq

vLp = 148
def look_setup(n, nd):
    a, b, c = vLp + 6, vLp + 7, vLp + 5
    r = f'''s_lshr_b32 s82, s2, 6
    s_lshl2_add_u32 s82, s82, {s.w}
    s_lshl_b32 s82, s82, 3
    s_lshl_b32 s83, {s.rb}, 7
    s_add_u32 s82, s82, s83
    v_and_b32 v{a}, 7, v0
    v_lshrrev_b32 v{b}, 3, v0
    v_add_u32 v{a}, s82, v{a}
    v_lshlrev_b32 v{a}, 10, v{a}
    v_lshl_add_u32 v{vLp}, v{b}, 7, v{a}
    v_cmp_gt_u32 vcc, {8*n}, v0
    v_mov_b32 v{c}, 0x40000000
    s_and_b32 s82, {s.rb}, 7
    v_cndmask_b32 v{vLp}, v{c}, v{vLp}, vcc
    s_lshl2_add_u32 s82, s82, {s.w}
    s_lshl_b32 s82, s82, 1
    v_and_b32 v{a}, 1, v0
    v_lshrrev_b32 v{b}, 1, v0
    v_lshl_add_u32 v{a}, v{b}, 6, v{a}
    v_add_u32 v{a}, s82, v{a}
    s_lshr_b32 s83, {s.str64}, 6
    v_mul_u32_u24 v{vLp+1}, 3072, v{a}
    v_mul_u32_u24 v{vLp+2}, s83, v{a}
    v_mul_u32_u24 v{vLp+4}, 3584, v{a}
    v_cmp_gt_u32 vcc, {2*n}, v0
    v_add_u32 v{vLp+1}, {s.qo1}, v{vLp+1}
    v_add_u32 v{vLp+3}, {s.qo3}, v{vLp+2}
    v_add_u32 v{vLp+2}, {s.qo2}, v{vLp+2}
    s_add_u32 s82, {s.cg}, 12
    s_lshl_b32 s82, s82, 7
    v_add_u32 v{vLp+4}, s82, v{vLp+4}
    v_cndmask_b32 v{vLp+1}, v{c}, v{vLp+1}, vcc
    v_cndmask_b32 v{vLp+2}, v{c}, v{vLp+2}, vcc
    v_cndmask_b32 v{vLp+3}, v{c}, v{vLp+3}, vcc
    v_cmp_gt_u32 vcc, {2*nd}, v0
    s_nop 0
    v_cndmask_b32 v{vLp+4}, v{c}, v{vLp+4}, vcc'''
    return mk(r)
def look(kind, j):
    d = vLp + 6
    if kind == 'x': r = f's_mov_b32 s87, {128*j}\nbuffer_load_dword v{d}, v{vLp}, {sX}, s87 offen'
    if kind == 'w': r = f'''s_mov_b32 s87, {j*64*3072}
        buffer_load_dword v{d}, v{vLp+1}, {sQ}, s87 offen
        s_mul_i32 s87, {s.str64}, {j}
        buffer_load_dword v{d}, v{vLp+2}, {sU1}, s87 offen
        buffer_load_dword v{d}, v{vLp+3}, {sU2}, s87 offen'''
    if kind == 'd': r = f'''s_mov_b32 s87, {j*64*3584}
        buffer_load_dword v{d}, v{vLp+4}, {sG}, s87 offen
        buffer_load_dword v{d}, v{vLp+4}, {sU}, s87 offen'''
    r = mk(r)
    for x in r:
        if x.cls == 'vmem': x.dst = []; x.meta['free'] = True
    return r
def look2_setup(cfg):
    a, b, c = vLp + 6, vLp + 7, vLp + 5
    nx, xo = cfg.get('lnx', 6), 8 - cfg.get('lnx', 6)
    nw = cfg.get('lnw', 3)
    r = f'''s_lshr_b32 s82, s2, 6
    s_lshl2_add_u32 s82, s82, {s.w}
    s_lshl_b32 s82, s82, 3
    s_lshl_b32 s83, {s.rb}, 7
    s_add_u32 s82, s82, s83
    v_and_b32 v{a}, 7, v0
    v_lshrrev_b32 v{b}, 3, v0
    v_add_u32 v{a}, s82, v{a}
    {f's_lshr_b32 s83, {s.rb}, 1' if cfg['rot'] == 1 else f's_bfe_u32 s83, {s.rb}, 0x20001'}
    s_add_u32 s83, s83, {xo}
    v_add_u32 v{b}, s83, v{b}
    v_and_b32 v{b}, 7, v{b}
    v_lshlrev_b32 v{a}, 10, v{a}
    v_lshl_add_u32 v{vLp}, v{b}, 7, v{a}
    v_cmp_gt_u32 vcc, {8*nx}, v0
    v_mov_b32 v{c}, 0x40000000
    s_and_b32 s82, {s.rb}, 7
    v_cndmask_b32 v{vLp}, v{c}, v{vLp}, vcc
    s_lshl2_add_u32 s82, s82, {s.w}
    s_lshr_b32 s83, {s.rb}, {3 if cfg['rot'] == 1 else 4}
    s_lshl_b32 s83, s83, 8
    s_add_u32 s83, s83, {(8 - nw)*64}
    v_mad_u32_u24 v{a}, s82, {2*nw}, v0
    v_add_u32 v{a}, s83, v{a}
    v_and_b32 v{a}, 511, v{a}
    s_lshr_b32 s83, {s.str64}, 6
    v_mul_u32_u24 v{vLp+1}, 3072, v{a}
    v_mul_u32_u24 v{vLp+2}, s83, v{a}
    v_lshl_add_u32 v{a}, s82, 4, v0
    v_mul_u32_u24 v{vLp+4}, 3584, v{a}
    v_cmp_gt_u32 vcc, {2*nw}, v0
    v_add_u32 v{vLp+1}, {s.qo1}, v{vLp+1}
    v_add_u32 v{vLp+3}, {s.qo3}, v{vLp+2}
    v_add_u32 v{vLp+2}, {s.qo2}, v{vLp+2}
    s_add_u32 s82, {s.cg}, 12
    s_lshl_b32 s82, s82, 7
    v_add_u32 v{vLp+4}, s82, v{vLp+4}
    v_cndmask_b32 v{vLp+1}, v{c}, v{vLp+1}, vcc
    v_cndmask_b32 v{vLp+2}, v{c}, v{vLp+2}, vcc
    v_cndmask_b32 v{vLp+3}, v{c}, v{vLp+3}, vcc
    v_cmp_gt_u32 vcc, 16, v0
    s_nop 0
    v_cndmask_b32 v{vLp+4}, v{c}, v{vLp+4}, vcc'''
    return mk(r)
def look2(kind):
    d = vLp + 6
    src = {'x': [(0, sX)], 'w': [(1, sQ), (2, sU1), (3, sU2)], 'd': [(4, sG), (4, sU)]}[kind]
    r = mk([f'buffer_load_dword v{d}, v{vLp+k}, {srd}, 0 offen' for k, srd in src])
    for x in r: x.dst = []; x.meta['free'] = True
    return r
def looks(cfg, after):
    r = []
    if cfg.get('erx') == after: r += rest_x(cfg)
    for it in cfg.get('lq', '').split(','):
        if it and it[1:] == str(after): r += look2(it[0])
    for it in cfg.get('lp', '').split(','):
        if it and it.split('@')[1] == str(after): r += look(it[0], int(it[1:].split('@')[0]))
    return r

def rd1(i, st):
    sl = i & 3
    x = [f'ds_read_b128 {ar(xf(i, st, t), 4)}, v{(vXr if sl < 2 else vXr2)+st} offset:{(sl & 1)*SLOT + t*4096}' for t in range(2)]
    base = W1[sl][0] + (st >> 1)
    w = [[f'ds_read_b64_tr_b16 {vr(wf(st & 1, u) + 2*j, 2)}, v{base} offset:{W1[sl][1] + u*8192 + (st & 1)*2048 + j*512}'
          for j in range(2)] for u in range(3)]
    return x, w

def rd2(i, st):
    reg, imm, _ = W2[i]
    return [[f'ds_read_b64_tr_b16 {vr(wf(st & 1, u) + 2*j, 2)}, v{reg + (st >> 1)} offset:{imm + u*8192 + (st & 1)*2048 + j*512}'
             for j in range(2)] for u in range(2)]

def mf32(d, a, b, first):
    return f'v_mfma_f32_32x32x16_bf16 {vr(d, 16)}, {a}, {b}, {"0" if first else vr(d, 16)}'

def cs_split(u, off):
    c = vCs + 4 * u
    h, f, l = vT, vT + 2, vT + 6
    r = [f'v_cvt_pk_bf16_f32 v{h}, v{c}, v{c+1}', f'v_cvt_pk_bf16_f32 v{h+1}, v{c+2}, v{c+3}',
         f'v_lshlrev_b32 v{f}, 16, v{h}', f'v_and_b32 v{f+1}, 0xffff0000, v{h}',
         f'v_lshlrev_b32 v{f+2}, 16, v{h+1}', f'v_and_b32 v{f+3}, 0xffff0000, v{h+1}']
    r += [f'v_sub_f32 v{f+k}, v{c+k}, v{f+k}' for k in range(4)]
    r += [f'v_cvt_pk_bf16_f32 v{l}, v{f}, v{f+1}', f'v_cvt_pk_bf16_f32 v{l+1}, v{f+2}, v{f+3}',
          f'ds_write_b64 v{vAugW}, {vr(h, 2)} offset:{off + u*512}', f'ds_write_b64 v{vAugW}, {vr(l, 2)} offset:{off + u*512 + 64}']
    return r

def pack_store(d, voff, so_a, so_b, imm_a, imm_b, tag):
    r = []
    for half, (so, imm) in enumerate(((so_a, imm_a), (so_b, imm_b))):
        b = d + 8 * half
        r += mk([f'v_cvt_pk_bf16_f32 v{b+k}, v{b+2*k}, v{b+2*k+1}' for k in range(4)])
        r += mk(f'buffer_store_dwordx4 {vr(b, 4)}, v{voff}, {sWS}, {so} offen offset:{imm} sc1', tag)
    return r

def epi_qkv(u, voff, scale):
    r = []
    for t in range(2):
        d = acc1(u, t)
        r += mk([f'v_mul_f32 v{d+k}, v{scale(t)}, v{d+k}' for k in range(16)])
        r += pack_store(d, voff, S[f'qo{2*u}'], S[f'qo{2*u+1}'], 1024 * t, 1024 * t, 'st1')
    return r

def epi_h(g, uu, so, tag):
    r = []
    for t in range(2):
        r += mk([f'v_mul_f32 v{g(t)+k}, v{g(t)+k}, v{uu(t)+k}' for k in range(16)])
        r += pack_store(g(t), vL16, so(t), so(t), 0, 1024, tag)
    return r

def hook(P, cfg, pos):
    if cfg.get('_hook'): cfg['_hook'](P, pos)

def prologue(P, cfg):
    if not cfg.get('ep'):
        for srd, off in ((sX, 0), (sQ, 8), (sG, 32), (sU, 40), (sWS, 72)):
            srd_load(P, srd, off)
        stamp_begin(P)
        hook(P, cfg, 0)
    wave_ids(P)
    P(f'''s_and_b32 {s.t0}, s2, 7
    s_lshr_b32 {s.t1}, s2, 3
    s_and_b32 {s.rb}, {s.t0}, 1
    s_lshl_b32 {s.rb}, {s.rb}, 3
    s_and_b32 {s.t2}, {s.t1}, 7
    s_add_u32 {s.rb}, {s.rb}, {s.t2}
    s_lshr_b32 {s.t0}, {s.t0}, 1
    s_lshr_b32 {s.t1}, {s.t1}, 3
    s_lshl2_add_u32 {s.cg}, {s.t0}, {s.t1}
    s_and_b32 {s.th}, {s.w}, 1
    s_lshr_b32 {s.ch}, {s.w}, 1
    s_lshl_b32 {s.mx}, {s.w}, 12
    s_lshl_b32 {s.mw}, {s.w}, 11''')
    srd_const(P, sX, 2048*512*2); srd_const(P, sWS, WS_SIZE); srd_const(P, sQ, 512*1536*2)
    srd_const(P, sG, 512*1792*2); srd_const(P, sU, 512*1792*2)
    P('s_mov_b32 s15, 0x20000\ns_mov_b32 s19, 0x20000')
    P(f'''s_lshl_b32 {s.t2}, {s.rb}, 4
    s_add_u32 {s.t2}, {s.t2}, {s.cg}
    s_lshl2_add_u32 {s.t2}, {s.t2}, {s.w}
    s_lshl_b32 {s.t3}, {s.t2}, 11
    s_lshl_b32 {s.t2}, {s.t2}, 5
    s_add_u32 {sStat}, {s.t2}, {WS_STATS}''')
    P(f'''s_mul_i32 {s.t4}, {s.t0}, 3
    s_add_u32 {s.t5}, {s.t4}, {s.t1}
    s_add_u32 {s.t4}, {s.t4}, 12
    s_cmp_eq_u32 {s.t1}, 3
    s_cselect_b32 {s.isb}, 1, 0
    s_cselect_b32 {s.qo0}, {s.t4}, {s.t5}
    s_mov_b32 {s.str64}, {64*3072}
    s_cselect_b32 {s.str64}, {s.str64}, {64*3584}
    s_lshl_b32 s14, {s.str64}, 3
    s_mov_b32 s18, s14
    s_lshl_b32 {s.qo1}, {s.qo0}, 7
    s_add_u32 {s.qo2}, {s.qo1}, 128
    s_add_u32 {s.qo3}, {s.qo1}, 256
    s_cmp_eq_u32 {s.isb}, 1
    s_cselect_b32 {s.qo2}, {s.qo2}, {s.qo1}
    s_cselect_b32 {s.qo3}, {s.qo3}, {s.qo1}''')
    P(f's_mov_b32 {s.ho0}, {s.t5}')
    if cfg.get('rot') == 1:
        P(f's_lshr_b32 {s.kc}, {s.rb}, 1')
    elif cfg.get('rot') == 2:
        P(f's_lshl1_add_u32 {s.kc}, {s.cg}, {s.rb}\ns_and_b32 {s.kc}, {s.kc}, 7')
    elif cfg.get('rot') == 3:
        P(f's_and_b32 {s.kc}, {s.rb}, 7')
    elif cfg.get('rot') == 5:
        P(f's_lshr_b32 {s.kc}, {s.rb}, 2')
    elif cfg.get('rot') == 6:
        P(f's_lshr_b32 {s.kc}, {s.rb}, 2\ns_lshl_b32 {s.kc}, {s.kc}, 1')
    elif cfg.get('rot') == 7:
        P(f's_lshr_b32 {s.kc}, {s.rb}, 3\ns_lshl_b32 {s.kc}, {s.kc}, 2')
    elif cfg.get('rot') == 8:
        P(f's_bfe_u32 {s.kc}, {s.rb}, 0x20001')
    elif cfg.get('rot') == 4:
        P(f's_and_b32 {s.kc}, {s.rb}, 3')
    else:
        P(f's_mov_b32 {s.kc}, 0')
    t = vT
    P(f'''v_lshrrev_b32 v{t}, 3, v0
    v_and_b32 v{t+1}, 7, v0
    v_lshrrev_b32 v{t+2}, 4, v0
    v_xor_b32 v{t+3}, v{t+1}, v{t+2}
    v_lshlrev_b32 v{t+3}, 4, v{t+3}
    v_lshl_add_u32 v{t+3}, v{t}, 10, v{t+3}
    s_lshl_b32 {s.t0}, {s.rb}, 17
    s_lshl_b32 {s.t1}, {s.w}, 15
    s_add_u32 {s.t0}, {s.t0}, {s.t1}
    v_add_u32 v{vXd}, {s.t0}, v{t+3}
    v_xor_b32 v{vXd+1}, 64, v{vXd}
    v_add_u32 v{vXd+2}, {2*7168}, v{vXd}
    v_add_u32 v{vXd+3}, {3*7168}, v{vXd+1}
    v_add_u32 v{vXd+1}, 7168, v{vXd+1}
    v_and_b32 v{t+2}, 1, v{t+2}
    v_lshlrev_b32 v{t+2}, 2, v{t+2}
    v_xor_b32 v{t+1}, v{t+1}, v{t+2}
    v_lshlrev_b32 v{t+1}, 4, v{t+1}
    s_lshl_b32 {s.t0}, {s.w}, 4
    v_add_u32 v{t}, {s.t0}, v{t}
    s_lshr_b32 {s.t1}, {s.str64}, 6
    v_mul_u32_u24 v{t+2}, 3072, v{t}
    v_mul_u32_u24 v{t+3}, {s.t1}, v{t}
    v_add3_u32 v{vWd}, v{t+2}, v{t+1}, {s.qo1}
    v_add3_u32 v{vWd+2}, v{t+3}, v{t+1}, {s.qo2}
    v_add3_u32 v{vWd+4}, v{t+3}, v{t+1}, {s.qo3}
    s_lshr_b32 {s.t1}, {s.str64}, 3
    s_sub_u32 {s.t1}, {s.t1}, 1024
    v_add_u32 v{vWd+1}, {8*3072-1024}, v{vWd}
    v_add_u32 v{vWd+3}, {s.t1}, v{vWd+2}
    v_add_u32 v{vWd+5}, {s.t1}, v{vWd+4}
    v_mov_b32 v{vAcc2+41}, 0''')
    P.waitlg()
    stamp_keep(P)
    stamp(P, 'kw')
    if cfg.get('pro'): stamp(P, 1)
    P(f'''s_cmp_eq_u32 {s.isb}, 1
    s_cselect_b32 s12, s8, s20
    s_cselect_b32 s13, s9, s21
    s_cselect_b32 s16, s8, s24
    s_cselect_b32 s17, s9, s25''')
    R = vAcc2
    rows = mk(f'buffer_load_dword v{R+40}, v{R+41}, {sWS}, 0 offen sc1', 'ep') + \
        mk([f'buffer_load_dwordx4 {vr(R+4*k, 4)}, v{vL16}, {sX}, {s.t3} offen offset:{1024*k}' for k in range(2)], 'row')
    late = cfg.get('late', 1)
    if not late: P.add(rows)
    hook(P, cfg, 1)
    P.add(dma1(0))
    stamp(P, 'i0')
    if cfg.get('lp'):
        assert not cfg.get('rot')
        P.add(look_setup(cfg.get('ln', 2), cfg.get('lnd', 4)))
        P.add(looks(cfg, 0))
    if cfg.get('lq'):
        assert cfg.get('rot') in (1, 8)
        P.add(look2_setup(cfg))
        P.add(looks(cfg, 0))
    P(f'''s_add_u32 {s.t0}, {s.cg}, 12
    s_lshl_b32 {s.t0}, {s.t0}, 7
    v_mul_u32_u24 v{t+3}, 3584, v{t}
    v_add3_u32 v{vWd+6}, v{t+3}, v{t+1}, {s.t0}
    v_add_u32 v{vWd+7}, {8*3584-1024}, v{vWd+6}''')
    if not late: P.add(dma1(1))
    P(f'''v_and_b32 v{t}, 31, v0
    s_lshl_b32 {s.t0}, {s.th}, 6
    v_add_u32 v{t}, {s.t0}, v{t}
    v_lshrrev_b32 v{t+1}, 5, v0
    v_bfe_u32 v{t+2}, v0, 1, 3
    v_xor_b32 v{t+2}, v{t+2}, v{t+1}
    s_lshl_b32 {s.t0}, {s.th}, 2
    v_xor_b32 v{t+2}, {s.t0}, v{t+2}
    v_lshlrev_b32 v{t+2}, 4, v{t+2}
    v_lshl_add_u32 v{vXr}, v{t}, 7, v{t+2}
    v_add_u32 v{vXr}, 24576, v{vXr}
    v_xor_b32 v{vXr+1}, 32, v{vXr}
    v_xor_b32 v{vXr+2}, 64, v{vXr}
    v_xor_b32 v{vXr+3}, 0x60, v{vXr}''')
    for k in range(4): P(f'v_add_u32 v{vXr2+k}, {2*SLOT}, v{vXr+k}')
    P(f'''v_bfe_u32 v{t}, v0, 2, 2
    v_lshl_add_u32 v{t}, v{t+1}, 3, v{t}
    v_bfe_u32 v{t+2}, v0, 4, 1
    v_bfe_u32 v{t+3}, v0, 1, 1
    v_lshl_add_u32 v{t+3}, v{t+2}, 1, v{t+3}
    v_bfe_u32 v{t+4}, v0, 3, 1
    v_xor_b32 v{t+4}, {s.ch}, v{t+4}
    v_lshl_add_u32 v{t+3}, v{t+4}, 2, v{t+3}
    v_and_b32 v{t+4}, 1, v0
    v_lshlrev_b32 v{t+4}, 3, v{t+4}
    v_lshl_add_u32 v{t+3}, v{t+3}, 4, v{t+4}
    v_lshl_add_u32 v{t+3}, v{t}, 7, v{t+3}
    s_lshl_b32 {s.t0}, {s.th}, 12
    s_sub_u32 {s.t1}, 4096, {s.t0}
    v_add_u32 v{vA}, {s.t0}, v{t+3}
    v_add_u32 v{vA+1}, {s.t1}, v{t+3}
    v_add_u32 v{vB}, {BASE[vB]}, v{vA}
    v_add_u32 v{vB+1}, {BASE[vB]}, v{vA+1}
    v_add_u32 v{vC}, {BASE[vC]}, v{vA}
    v_add_u32 v{vC+1}, {BASE[vC]}, v{vA+1}''')
    P(f'''s_lshl_b32 {s.t0}, {s.ch}, 8
    s_add_u32 {s.t0}, {s.t0}, {LDS_AUG}
    s_lshl_b32 {s.t1}, {s.th}, 7
    s_add_u32 {s.t1}, {s.t1}, {s.t0}
    v_lshrrev_b32 v{t}, 4, v0
    v_lshlrev_b32 v{t}, 3, v{t}
    v_lshl_add_u32 v{t}, v{t+4}, 2, v{t}
    v_add_u32 v{t}, {s.t1}, v{t}
    v_lshlrev_b32 v{t+5}, 3, v0
    v_add_u32 v{t+5}, {LDS_AUG+4096}, v{t+5}
    v_and_b32 v{t+6}, 14, v0
    v_cmp_eq_u32 vcc, 0, v{t+6}
    v_bfe_u32 v{t+6}, v0, 2, 2
    v_and_b32 v{t+7}, 3, v0
    v_cndmask_b32 v{vAugW}, v{t+5}, v{t}, vcc
    v_lshlrev_b32 v{t+7}, 3, v{t+7}
    v_lshl_add_u32 v{t+7}, v{t+2}, 5, v{t+7}
    v_lshl_add_u32 v{t+7}, v{t+6}, 6, v{t+7}
    v_add_u32 v{vAugR}, {s.t0}, v{t+7}
    s_mov_b32 s82, 0x00020001
    s_mov_b32 s83, 0x00020001
    v_mov_b32 v{t}, 0x3f803f80
    v_cndmask_b32 v{vSel}, 0, v{t}, s[82:83]
    v_cndmask_b32 v{vSel+1}, 0, v{t}, s[82:83]
    v_cndmask_b32 v{vSel+2}, 0, v{t}, s[82:83]
    v_cndmask_b32 v{vSel+3}, 0, v{t}, s[82:83]''')
    P(f'''v_and_b32 v{t}, 31, v0
    v_lshlrev_b32 v{t}, 5, v{t}
    v_lshl_add_u32 v{vQo}, v{t+1}, 4, v{t}''')
    if not late:
        P.add(row_stats())
        P.add(dma1(2))
    P(f'''s_lshl_b32 {s.t0}, {s.rb}, 1
    s_add_u32 {s.t0}, {s.t0}, {s.th}
    s_lshl_b32 {s.t1}, {s.t0}, 11
    s_lshl_b32 {s.t2}, {s.qo0}, 1
    s_add_u32 {s.t2}, {s.t2}, {s.ch}
    s_lshl_b32 {s.t2}, {s.t2}, 17
    s_add_u32 {s.t1}, {s.t1}, {s.t2}
    s_cmp_lt_u32 {s.qo0}, 8
    s_cselect_b32 {s.fac}, {f32(0.25*LOG2E)}, 1.0
    s_mov_b32 {s.t5}, {s.qo0}
    s_add_u32 {s.qo0}, {s.t1}, {WS_QKV}
    s_add_u32 {s.qo1}, {s.qo0}, 0x10000
    s_add_u32 {s.qo2}, {s.qo0}, 0x40000
    s_add_u32 {s.qo3}, {s.qo0}, 0x50000
    s_add_u32 {s.qo4}, {s.qo0}, 0x80000
    s_add_u32 {s.qo5}, {s.qo0}, 0x90000
    s_mul_i32 {s.t1}, {s.t0}, {2*112*1024}
    s_lshl_b32 {s.t2}, {s.ch}, 11
    s_add_u32 {s.t1}, {s.t1}, {s.t2}
    s_add_u32 {s.t1}, {s.t1}, {WS_H}
    s_lshl_b32 {s.ho0}, {s.ho0}, 12
    s_add_u32 {s.ho0}, {s.ho0}, {s.t1}
    s_add_u32 {s.ho1}, {s.ho0}, {112*1024}
    s_add_u32 {s.t2}, {s.cg}, 12
    s_lshl_b32 {s.t2}, {s.t2}, 12
    s_add_u32 {s.ho2}, {s.t2}, {s.t1}
    s_add_u32 {s.ho3}, {s.ho2}, {112*1024}
    s_lshl_b32 {s.t0}, {s.t0}, 10
    s_add_u32 {s.t4}, {s.t0}, {WS_STATS}''')
    if late:
        hook(P, cfg, 2)
        c1 = dma1(1) + rows + looks(cfg, 1)
        n1 = cfg.get('n1', 99)
        k = next((j for j in range(len(c1)) if sum(1 for x in c1[:j] if x.cls == 'vmem') >= n1), len(c1))
        P.add(c1[:k]); cfg['_c1'] = c1[k:]
        hook(P, cfg, 3)

sStat = 's44'
def row_stats():
    P = Prog()
    R = vAcc2
    nonce(P, R + 40)
    E = R + 8
    for r in range(2):
        for k in range(4):
            P(f'v_lshlrev_b32 v{E+8*r+2*k}, 16, v{R+4*r+k}')
            P(f'v_and_b32 v{E+8*r+2*k+1}, 0xffff0000, v{R+4*r+k}')
    A = R + 24
    def reduce2():
        for m in ('quad_perm:[1,0,3,2] row_mask:0xf', 'quad_perm:[2,3,0,1] row_mask:0xf', 'row_half_mirror row_mask:0xf',
                  'row_mirror row_mask:0xf', 'row_bcast:15 row_mask:0xa', 'row_bcast:31 row_mask:0xc'):
            for r in range(2):
                P(f'v_add_f32_dpp v{A+r}, v{A+r}, v{A+r} {m} bank_mask:0xf')
    for r in range(2):
        P(f'v_add_f32 v{A+r}, v{E+8*r}, v{E+8*r+1}')
    for k in range(2, 8):
        for r in range(2):
            P(f'v_add_f32 v{A+r}, v{A+r}, v{E+8*r+k}')
    reduce2()
    for r in range(2):
        P(f'v_mul_f32 v{A+2+r}, {f32(1/512)}, v{A+r}')
    P(f'v_readlane_b32 {s.t0}, v{A+2}, 63\nv_readlane_b32 {s.t1}, v{A+3}, 63')
    G = R + 32
    for r in range(2):
        P(f'v_cvt_pk_bf16_f32 v{G+4*r}, -v{A+2+r}, -v{A+2+r}')
    P(f'v_cmp_ne_u32 vcc, 63, v0\nv_mov_b32 v{R+41}, 0x40000000')
    for k in range(8):
        for r in range(2):
            P(f'v_subrev_f32 v{E+8*r+k}, {(s.t0, s.t1)[r]}, v{E+8*r+k}')
    P(f'v_cndmask_b32 v{R+41}, 0, v{R+41}, vcc')
    for k in range(8):
        for r in range(2):
            P(f'v_mul_f32 v{A+r}, v{E+8*r}, v{E+8*r}' if k == 0 else f'v_fmac_f32 v{A+r}, v{E+8*r+k}, v{E+8*r+k}')
    reduce2()
    for r in range(2):
        P(f'v_mul_f32 v{A+r}, {f32(1/512)}, v{A+r}')
    for r in range(2):
        P(f'v_add_f32 v{A+r}, {f32(1e-5)}, v{A+r}')
    for r in range(2):
        P(f'v_rsq_f32 v{G+4*r+1}, v{A+r}')
    for r in range(2):
        P(f'v_mov_b32 v{G+4*r+2}, {s.n0}\nv_mov_b32 v{G+4*r+3}, {s.n1}')
    for r in range(2):
        P(f'buffer_store_dwordx4 {vr(G+4*r, 4)}, v{R+41}, {sWS}, {sStat} offen offset:{16*r} sc1', 'stat')
    return P.L

def stats_load(tag='g'):
    t = vT + 7
    return mk([f'v_and_b32 v{t}, 0x1f0, v{vL16}']) + \
        mk([f'buffer_load_dwordx4 {vr(vSt+4*k, 4)}, v{t}, {sWS}, {s.t4} offen offset:{512*k} sc1' for k in range(2)], tag)

def stats_check(P, cold):
    P('L_stat_check:')
    P(f'''v_cmp_eq_u32 s[82:83], {s.n0}, v{vSt+2}
    v_cmp_eq_u32 s[84:85], {s.n1}, v{vSt+3}
    v_cmp_eq_u32 s[86:87], {s.n0}, v{vSt+6}
    v_cmp_eq_u32 vcc, {s.n1}, v{vSt+7}
    s_and_b64 s[82:83], s[82:83], s[84:85]
    s_and_b64 s[86:87], s[86:87], vcc
    s_and_b64 s[82:83], s[82:83], s[86:87]
    s_cmp_eq_u64 s[82:83], -1
    s_cbranch_scc0 L_stat_retry
    L_stat_ok:''')
    cold.add([forget()])
    cold(f'''L_stat_retry:
    s_sub_u32 {s.spin}, {s.spin}, 1
    s_cmp_le_i32 {s.spin}, 0
    s_cbranch_scc1 L_stat_ok''')
    cold.add(stats_load())
    cold('s_waitcnt vmcnt(0)\ns_branch L_stat_check')

def phase1(P, cold, cfg):
    P(f's_mov_b32 {s.spin}, 0x20000')
    if not cfg.get('pro'): stamp(P, 1)
    else: stamp(P, 6); stamp_end(P); P('s_endpgm')
    stamp(P, 'pro')
    P.waitvm('c0')
    P('s_barrier')
    stamp(P, 'c0')
    if not cfg.get('pro'): stamp(P, 2)
    x, w = rd1(0, 0)
    P.add(mk(x) + mk(w))
    dq = Pool(cfg.get('maxvm', 1), period=cfg.get('per1', 0), burst=cfg.get('burst1', 1))
    late = cfg.get('late', 1)
    dq.put(cfg.get('_c1', []))
    if late: dq.put(dma1(2))
    dq.put(looks(cfg, 2))
    dq.put(dma1(3))
    dq.put(looks(cfg, 3))
    bg = Pool(); st_bg = Pool()
    for i in range(8):
        for st in range(4):
            stamp(P, f'p1{i}s{st}')
            if st == 3:
                need = (f'c{i+1}',) if i < 7 else ('d0', 'd1', 'd2', 'd3')
                n = max((j + 1 for j, x in enumerate(dq.q) if x.tag in need), default=0)
                if cfg.get('v') and dq.q: print('p1 queue', i, len(dq.q), 'forced', n)
                P.add(dq.q[:n]); del dq.q[:n]
                P.add(bg.rest())
                P.waitvm(f'c{i+1}' if i < 7 else ('d0', 'd1', 'd2', 'd3'))
                P.waitlg()
                stamp(P, f'p1{i}w')
                if not cfg.get('nobar'): P('s_barrier')
                stamp(P, f'p1{i}b')
                for _ in range(cfg.get('idle', 0)): P('s_nop 15')
                if cfg.get('nodma'): pass
                elif i < 4: dq.put(dma1(i + 4)); dq.put(looks(cfg, i + 4))
                elif i < 7 or not cfg.get('new', 1): dq.put(dma2(2*(i-4))); dq.put(dma2(2*(i-4) + 1))
            if i == 4 and st == 0 and cfg.get('mid'): stamp(P, 3)
            if st == 0: stamp(P, f'p1_{i}')
            first = (i == 0 and st == 0)
            mfs = []; fixed = {}
            nxt = (i, st + 1) if st < 3 else (i + 1, 0)
            if nxt[0] < 8:
                x, w = rd1(*nxt); rd = [x, w[0], w[1], w[2]]
                if cfg.get('nord'): rd = []
                if cfg.get('nox'): rd = rd[1:]
                if cfg.get('now'): rd = rd[:1]
            else:
                w = rd2(0, 0)
                ag = [f'ds_read_b64_tr_b16 {vr(vAg+2*u, 2)}, v{vAugR} offset:{u*512}' for u in range(3)]
                rd = [ag[:2], ag[2:], w[0], w[1]]
            for u in range(3):
                for t in range(2):
                    if rd: fixed[len(mfs)] = rd.pop(0)
                    mfs.append(mf32(acc1(u, t), vr(wf(st & 1, u), 4), ar(xf(i, st, t), 4), first))
                if st < 2 and not cfg.get('nocs'):
                    c = vr(vCs + 4*u, 4)
                    mfs.append(f'v_mfma_f32_16x16x32_bf16 {c}, {vr(wf(st & 1, u), 4)}, {vr(vSel, 4)}, {"0" if first else c}')
            if late and (i, st) == (cfg.get('sti', 1), 0): st_bg.put(row_stats())
            if (i, st) == (cfg.get('prei', 6), cfg.get('prest', 0)) and cfg.get('_pre'):
                assert not any(x.tag and x.tag[0] == 'c' for x in dq.q)
                st_bg.put(cfg['_pre']())
            if (i, st) == (7, 0) and cfg.get('_pre7'):
                assert not st_bg.q
                dq.put(cfg['_pre7']())
            if st == 3 or (i, st) == (0, 0):
                T = Prog(); hook(T, cfg, 10 + i + (st == 3)); dq.put(T.L)
            if st == 1 and i >= 4:
                assert not any(x.tag and x.tag[0] == 'c' for x in dq.q) or i == 4 or not cfg.get('doses')
                T = Prog(); hook(T, cfg, 20 + i); dq.put(T.L)
            if (i, st) == (cfg.get('stl', 5), 0):
                assert not st_bg.q
                bg.put(stats_load())
            if i == 7 and st == 0:
                stats_check(P, cold)
                hm = vT + 7
                bg.put([f'v_cmp_gt_u32 vcc, 32, v0'] +
                       [f'v_mul_f32 v{vScq+t}, {s.fac}, v{vSt+4*t+1}' for t in range(2)] +
                       [f'v_cndmask_b32 v{vXa+2*t+k}, 0, v{vSt+4*t}, vcc' for t in range(2) for k in range(2)])
            timed = {}
            if i == 7 and st == 1: timed = {5: [(bg, cs_split(0, 0))], 8: [(bg, cs_split(1, 0))]}
            if i == 7 and st == 2: timed = {2: [(bg, cs_split(2, 0))]}
            weave(P, mfs, fixed, (dq, bg, st_bg), slack=4, timed=timed)
    stamp(P, 'p1c')
    mfs = [f'v_mfma_f32_32x32x8_bf16 {vr(acc1(u, t), 16)}, {vr(vAg+2*u, 2)}, {vr(vXa+2*t, 2)}, {vr(acc1(u, t), 16)}'
           for u in range(3) for t in range(2)]
    weave(P, mfs, {}, (dq, bg), slack=4)
    P.add(dq.rest()); P.add(bg.rest())
    assert not st_bg.q

def phase2(P, isb, cfg, ext=None):
    bg = Pool()
    new = cfg.get('new', 1)
    if not isb:
        bg.put(epi_qkv(0, vL16, lambda t: vScq + t))
        eh = epi_h(lambda t: acc1(1, t), lambda t: acc1(2, t), lambda t: S[f'ho{t}'], 'st1h' if new else 'st1')
        if new: ext.eh = eh
        else: bg.put(eh)
    else:
        for u in range(3):
            bg.put(f's_cmp_ge_u32 {s.t5}, {16-u}')
            bg.put(f's_cselect_b64 vcc, -1, 0')
            bg.put(f'v_cndmask_b32 v{vXd+u}, v{vL16}, v{vQo}, vcc')
        for u in range(3):
            bg.put(epi_qkv(u, vXd + u, lambda t: vSt + 4*t + 1))
    lo = Pool()
    for i in range(8):
        for st in range(4):
            if st == 3 and i in (3, 5, 7) + tuple(cfg.get('bars', ())):
                P.add(lo.rest())
                if i == 3: P.waitvm(('d4', 'd5') if new else ('d4', 'd5', 'd6', 'd7'))
                if i == 5: ext.need(P, ('d6', 'd7')); P.waitvm(('d6', 'd7'))
                P.waitlg()
                P('s_barrier')
            if st == 0: stamp(P, f'p2_{i}')
            if ext: ext.at(P, i, st, bg)
            first = (i == 0 and st == 0)
            mfs = []; fixed = {}
            nxt = (i, st + 1) if st < 3 else (i + 1, 0)
            if nxt[0] < 8:
                rd = rd2(*nxt)
            else:
                rd = [[f'ds_read_b64_tr_b16 {vr(vAg+2*u, 2)}, v{vAugR} offset:{2048 + u*512}' for u in range(2)]]
            for u in range(2):
                for t in range(2):
                    if rd: fixed[len(mfs)] = rd.pop(0)
                    mfs.append(mf32(acc2(u, t), vr(wf(st & 1, u), 4), ar(xf(i, st, t), 4), first))
                if st < 2 and not cfg.get('nocs'):
                    c = vr(vCs + 4*u, 4)
                    mfs.append(f'v_mfma_f32_16x16x32_bf16 {c}, {vr(wf(st & 1, u), 4)}, {vr(vSel, 4)}, {"0" if first else c}')
            timed = {}
            if i == 7 and st == 1: timed = {5: [(lo, cs_split(0, 2048))]}
            if i == 7 and st == 2: timed = {2: [(lo, cs_split(1, 2048))]}
            slack = cfg.get('slb', 4) if isb and bg.q else 4
            weave(P, mfs, fixed, (lo,) + (ext.pools(bg) if ext else (bg,)), slack=slack, timed=timed)
    assert not bg.q
    mfs = [f'v_mfma_f32_32x32x8_bf16 {vr(acc2(u, t), 16)}, {vr(vAg+2*u, 2)}, {vr(vXa+2*t, 2)}, {vr(acc2(u, t), 16)}'
           for t in range(2) for u in range(2)]
    weave(P, mfs, {}, ext.pools(bg) if ext else ())
    if ext: ext.done(P)

def epilogue2(P):
    P.add(epi_h(lambda t: acc2(0, t), lambda t: acc2(1, t), lambda t: S[f'ho{2+t}'], 'st2'))

def g1_body(P, cold, cfg, mkext=None):
    prologue(P, cfg)
    phase1(P, cold, cfg)
    box0, boxa = {}, {}
    stamp(P, 'p1')
    if not cfg.get('pro'): stamp(P, 4 if cfg.get('mid') else 3)
    P(f's_cmp_eq_u32 {s.isb}, 1')
    P.add([save(box0)])
    P('s_cbranch_scc1 L_p2b')
    phase2(P, False, cfg, mkext and mkext('a'))
    P.add([save(boxa)])
    P('s_branch L_p2done')
    P.add([restore(box0)])
    P('L_p2b:')
    phase2(P, True, cfg, mkext and mkext('b'))
    P.add([join(boxa)])
    P('L_p2done:')
    if not cfg.get('pro'): stamp(P, 5 if cfg.get('mid') else 4)
    stamp(P, 'p2')
    if mkext: return
    epilogue2(P)
    if cfg.get('mid'): stamp(P, 6)
```

```python
import sys, os, re
sys.path.insert(0, os.path.dirname(os.path.abspath(__file__)))
from common import *
import g1, attn
from g1 import vL16, vT
NAME = 'recurrent_scan__sliding_block__glu_gated_bilinear__prompt'

LDS_V = 65536; LDS_K = 81920; LDS_FB = 98304; LDS_EX = 65536
sFl, sWk = 's44', 's45'; sPm = 's[46:47]'
sQo = 's51'; sKo = ('s52',); sVo = 's53'; sOo = 's56'; sNb = 's57'
sHe = ('s58', 's54'); sT = 's62'; sXo = 's63'; sSt = 's64'; sHl = ('s65', 's66'); sOi = 's78'; sFA = s.mx
sU = ('s82', 's83', 's84', 's85', 's86', 's87')
sN = 's[60:61]'
vWdD = 13; vRA = 18; vFl = 17; vPq, vPh, vPo = 22, 23, 24; vLn = 25
vFd = 188; vPd = 190; vBa = 26; vBd = 28
A = attn.R
A.D0, A.D1, A.A0, A.A1 = 32, 48, 64, 80
A.N = 64; A.S = 96; A.O = 128; A.P = 160; A.PA = 168; A.VA = 160; A.J = 176; A.M = 178; A.PM = 180
A.LDS_V = LDS_V
vKa = 170
A.sNb = sNb; A.sKo = sKo; A.sQo = sQo; A.sVo = sVo; A.sOo = sOo
aW = 0
A.aQ = 128
A.kmap = {b: (232 if b == 0 else 236 if b == 9 else 132 + 4*b) for b in range(10)}
A.vmap = {b: (240 if b == 0 else 248 if b == 9 else 160 + 8*b) for b in range(10)}
def hreg(u):
    if u < 2: return ('a', 96 + 16*u)
    if u < 6: return ('v', 192 + 16*(u - 2))
    e = (u - 6) >> 1
    return hreg(e) if u & 1 else ('a', aW + 16*e)
FT = (('v', 32), ('v', 48), ('v', 168), ('a', 240))
def rg(kind, b, n): return vr(b, n) if kind == 'v' else ar(b, n)
def slot(u):
    if u < 8: return (0, SA[u & 3])
    if u < 12: return (1, SB[u - 8])
    return (0, SA[u - 12])
SA = (32768, 0, 16384, 49152)
SB = (0, 32768, 49152, 16384)
vF = 32; vWF = 96; vE = 112; vXF = 128; vX = 2; vRs = 10; vOo = 11; vXo = 12; vAd = 144; vSx = 160; aO = 128

def wread(u, ks, kind, base):
    reg, off = slot(u)
    return [[f'ds_read_b64_tr_b16 {rg(kind, base + 4*c + 2*j, 2)}, v{vRA + 2*reg + c} offset:{off + 2048*ks + 1024*j}' for j in range(2)] for c in range(2)]
def stage(u):
    return [waitvm(f'w{u}')] + mk([wread(u, ks, 'a', aW + 16*u + 8*ks) for ks in range(2)], f'r{u}')
def hload(u):
    kind, b = hreg(u)
    so = sHe if u < 6 else sHl
    r = mk([f'buffer_load_dwordx4 {rg(kind, b + 8*ks + 4*t, 4)}, v{vL16}, {sWS}, {so[t]} offen offset:{2048*(u & 1) + 1024*ks} sc1'
            for ks in range(2) for t in range(2)], f'h{u}')
    if u & 1: r += mk([f's_add_u32 {so[t]}, {so[t]}, 4096' for t in range(2)])
    return r
def publish(base, tag):
    return mk(f's_add_u32 {sFl}, {sFl}, 0x20000') + [waitvm(tag)] + mk(f'buffer_store_dwordx2 {vr(vFd, 2)}, v{vFl}, {sWS}, {sFl} offen sc1')
def poll(reg, base):
    return mk(f'buffer_load_dwordx2 {vr(vPd, 2)}, v{reg}, {sWS}, 0 offen sc1')
def check(cold, name, reg, base):
    cold.add([forget()])
    cold(f'''L_{name}_retry:
    s_sub_u32 {s.spin}, {s.spin}, 1
    s_cmp_le_i32 {s.spin}, 0
    s_cbranch_scc1 L_{name}_ok''')
    cold.add(poll(reg, base))
    cold(f's_waitcnt vmcnt(0)\ns_branch L_{name}_chk')
    r = mk(f'''L_{name}_chk:
    v_cmp_ne_u64 {sPm}, {sN}, {vr(vPd, 2)}
    s_cmp_lg_u64 {sPm}, 0
    s_cbranch_scc1 L_{name}_retry
    L_{name}_ok:''' + (f'\nv_writelane_b32 v25, {s.spin}, {"qeho".index(name[0])}' if STAMPS[0] == True else ''))
    for x in r[:-1]: x.meta['glue'] = True
    return r

def warm():
    return mk(f'''s_lshr_b32 {sU[0]}, s2, 3
    s_lshl2_add_u32 {sU[0]}, {sU[0]}, {s.w}
    s_mul_i32 {sU[1]}, {sU[0]}, 14336
    s_add_u32 {sU[2]}, {sU[1]}, 8192
    s_lshl_b32 {sU[0]}, {sU[0]}, 12
    v_lshlrev_b32 v{vLn}, 7, v0
    v_lshlrev_b32 v35, 6, v0
    buffer_load_dword v2, v{vLn}, {sWD}, {sU[1]} offen
    buffer_load_dword v3, v{vLn}, {sWD}, {sU[2]} offen
    buffer_load_dword v4, v35, {sWO}, {sU[0]} offen''')

def warm3():
    return mk(f'''s_lshr_b32 {sT}, s2, 3
    s_lshl2_add_u32 {sT}, {sT}, {s.w}
    v_mov_b32 v35, 0x40000000
    v_mad_u32_u24 v2, {sT}, 14, v0
    v_cmp_gt_u32 vcc, 14, v0
    v_lshlrev_b32 v2, 10, v2
    v_lshl_add_u32 v3, {sT}, 2, v0
    v_cndmask_b32 v2, v35, v2, vcc
    v_cmp_gt_u32 vcc, 4, v0
    v_lshlrev_b32 v3, 10, v3
    buffer_load_dword v2, v2, {sWD}, 0 offen offset:384
    v_cndmask_b32 v3, v35, v3, vcc
    buffer_load_dword v3, v3, {sWO}, 0 offen offset:384''')

def share(kind):
    g = f's_lshr_b32 {sT}, s2, 3\ns_lshl2_add_u32 {sT}, {sT}, {s.w}\n'
    c = f's_bfe_u32 {sT}, s2, 0x30003\n'
    if kind == 0:
        r = g + f'''s_mul_i32 {sT}, {sT}, 6144
        v_mul_u32_u24 v35, 96, v0
        buffer_load_dword v35, v35, {sWD}, {sT} offen'''
    elif kind == 1:
        r = g + f'''s_lshl_b32 {sT}, {sT}, 13
        s_add_u32 {sT}, {sT}, {768*1024}
        v_lshlrev_b32 v10, 7, v0
        buffer_load_dword v10, v10, {sWD}, {sT} offen'''
    elif kind == 2:
        r = g + f'''s_lshl_b32 {sT}, {sT}, 12
        v_lshlrev_b32 v11, 6, v0
        buffer_load_dword v11, v11, {sWO}, {sT} offen'''
    elif kind in (3, 4):
        n, so = ((48, sHe), (64, sHl))[kind - 3]
        r = c + f'''s_mul_i32 {sT}, {sT}, {32*n}
        v_and_b32 v12, 31, v0
        v_mad_u32_u24 v12, v12, {n}, {sT}
        v_lshrrev_b32 v10, 5, v0
        v_mul_u32_u24 v10, {112*1024}, v10
        s_min_u32 {sT}, {so[0]}, {so[1]}
        v_add_u32 v12, v12, v10
        buffer_load_dword v12, v12, {sWS}, {sT} offen sc1'''
    elif kind == 5:
        r = c + f'''s_lshl_b32 {sT}, {sT}, 11
        s_add_u32 {sT}, {sT}, {sOi}
        v_lshlrev_b32 v11, 5, v0
        buffer_load_dword v11, v11, {sWS}, {sT} offen sc1'''
    r = mk(r)
    for x in r[:-2]: x.meta['glue'] = True
    return r

def dose(j, wo=True):
    if j == 0:
        r = f'''s_lshr_b32 s57, s2, 3
        s_lshl2_add_u32 s57, s57, {s.w}
        s_mul_i32 s58, s57, 1792
        s_lshl_b32 s57, s57, 9
        v_mad_u32_u24 v18, v0, 28, s58
        v_lshl_add_u32 v19, v0, 3, s57
        s_and_b32 s56, s2, 7
        '''
    else:
        r = 's_add_u32 s56, s56, 1\ns_and_b32 s56, s56, 7\n'
    r = mk(r + f's_mul_i32 s57, s56, 229376\ns_lshl_b32 s58, s56, 16\nbuffer_load_dword v35, v18, {sWD}, s57 offen')
    if wo: r += mk(f'buffer_load_dword v35, v19, {sWO}, s58 offen')
    for x in r:
        if x.cls == 'vmem': x.dst = []
    return r

vPf = 140
def hook(P, pos, cfg):
    if cfg.get('pf') and pos == 0:
        t = vPf
        P(f'''s_getpc_b64 s[84:85]
        L_pc:
        s_lshr_b32 s82, s2, 3
        v_lshrrev_b32 v{t}, 6, v0
        v_and_b32 v{t+1}, 3, v0
        v_lshl_add_u32 v{t}, v{t}, 2, v{t+1}
        v_lshl_add_u32 v{t}, s82, 4, v{t}
        v_lshlrev_b32 v{t}, 7, v{t}
        v_min_u32 v{t}, L_last-L_pc-4, v{t}
        v_mov_b32 v{t+1}, s85
        v_add_co_u32 v{t}, vcc, s84, v{t}
        v_addc_co_u32 v{t+1}, vcc, 0, v{t+1}, vcc
        global_load_dword v{t}, v[{t}:{t+1}], off''')
    if pos in cfg.get('doses', []):
        for _ in range(cfg['doses'].count(pos)):
            P.add(dose(cfg.setdefault('_nd', 0))); cfg['_nd'] += 1
    todo = [(srd, n) for key, srd, n in (('mx', sX, 16), ('mq', sQ, 12), ('mg', sG, 14), ('mg', g1.sU, 14), ('md', sWD, 14), ('md', sWO, 4))
            if cfg.get(key) == pos and pos]
    if not todo: return
    t = vPf + 2
    ns = sorted(set(n for _, n in todo))
    r = f's_lshl2_add_u32 s82, s2, {s.w}\nv_mov_b32 v{t+1}, 0x40000000\n'
    for k, n in enumerate(ns): r += f'v_cmp_gt_u32 s[{84+2*k}:{85+2*k}], {n}, v0\nv_mad_u32_u24 v{t+2+k}, s82, {n}, v0\nv_lshlrev_b32 v{t+2+k}, 7, v{t+2+k}\n'
    for k, n in enumerate(ns): r += f'v_cndmask_b32 v{t+2+k}, v{t+1}, v{t+2+k}, s[{84+2*k}:{85+2*k}]\n'
    assert len(ns) <= 2
    r = mk(r)
    for x in r[:-1]: x.meta['glue'] = True
    P.add(r)
    for j, (srd, n) in enumerate(todo):
        k = ns.index(n)
        d = t + 4 + cfg.setdefault('_npf', 0); cfg['_npf'] += 1
        P(f'buffer_load_dword v{d}, v{t+2+k}, {srd}, 0 offen')

def setup_d(cx=0):
    hi, lo, a, b, c, d = sU
    t = vT
    r = f'''s_and_b32 {hi}, s2, 7
    s_lshr_b32 {lo}, s2, 6
    s_lshl2_add_u32 {hi}, {hi}, {lo}
    s_bfe_u32 {lo}, s2, 0x30003
    v_cmp_eq_u32 {sPm}, 0, v0
    v_mov_b32 v{vFl}, 0x40000000
    s_lshl2_add_u32 {sFl}, s2, {s.w}
    s_lshl_b32 {sFl}, {sFl}, 7
    v_cndmask_b32 v{vFl}, v{vFl}, 0, {sPm}'''
    r2 = f'''s_mul_i32 {sWk}, {s.w}, {12*16384}
    s_bfe_u32 {sT}, s2, 0x30003
    s_lshl_b32 {sT}, {sT}, 7
    v_lshrrev_b32 v{vWdD+1}, 3, v0
    v_and_b32 v{vWdD+2}, 7, v0
    v_bfe_u32 v{vWdD+3}, v0, 4, 1
    v_lshlrev_b32 v{vWdD+3}, 2, v{vWdD+3}
    v_xor_b32 v{vWdD+2}, v{vWdD+2}, v{vWdD+3}
    v_lshlrev_b32 v{vWdD+2}, 4, v{vWdD+2}
    v_lshl_add_u32 v{vWdD+2}, v{vWdD+1}, 10, v{vWdD+2}
    v_add_u32 v{vWdD}, {sT}, v{vWdD+2}
    v_add_u32 v{vWdD+1}, 7168, v{vWdD}
    v_add_u32 v{vWdD+2}, {2*7168}, v{vWdD}
    v_add_u32 v{vWdD+3}, {3*7168}, v{vWdD}'''
    ra = f'''v_bfe_u32 v{vRA+1}, v0, 4, 1
    v_bfe_u32 v{vRA}, v0, 1, 1
    v_lshl_add_u32 v{vRA}, v{vRA+1}, 1, v{vRA}
    v_bfe_u32 v{vRA+1}, v0, 3, 1
    v_xor_b32 v{vRA+1}, {s.ch}, v{vRA+1}
    v_lshl_add_u32 v{vRA}, v{vRA+1}, 2, v{vRA}
    v_and_b32 v{vRA+1}, 1, v0
    v_lshlrev_b32 v{vRA+1}, 3, v{vRA+1}
    v_lshl_add_u32 v{vRA}, v{vRA}, 4, v{vRA+1}
    v_bfe_u32 v{vRA+1}, v0, 2, 2
    v_lshl_add_u32 v{vRA}, v{vRA+1}, 7, v{vRA}
    v_lshrrev_b32 v{vRA+1}, 5, v0
    v_lshl_add_u32 v{vRA}, v{vRA+1}, 9, v{vRA}
    v_add_u32 v{vRA}, {sFA}, v{vRA}
    v_xor_b32 v{vRA+1}, 64, v{vRA}'''
    r3 = f'''v_add_u32 v{vRA+2}, {LDS_FB}, v{vRA}
    v_add_u32 v{vRA+3}, {LDS_FB}, v{vRA+1}
    s_lshl_b32 {a}, {s.w}, 1
    s_sub_u32 {sNb}, 8, {a}
    s_lshl3_add_u32 {a}, {lo}, {a}
    s_lshl_b32 {sOo}, {a}, 5
    s_add_u32 {sOo}, {sOo}, {hi}
    s_lshl_b32 {sOo}, {sOo}, 10
    s_add_u32 {sOo}, {sOo}, {WS_O}
    s_lshl_b32 {sVo}, {hi}, 6
    s_add_u32 {sQo}, {sVo}, {a}
    s_lshl_b32 {sQo}, {sQo}, 10
    s_add_u32 {sQo}, {sQo}, {WS_QKV}
    s_lshl1_add_u32 {a}, {lo}, {s.w}
    s_sub_u32 {a}, {a}, 2
    s_max_i32 {a}, {a}, 0
    s_lshl2_add_u32 {sVo}, {a}, {sVo}
    s_lshl_b32 {sVo}, {sVo}, 10
    s_add_u32 {sKo[0]}, {sVo}, {WS_QKV + 32*65536}
    s_add_u32 {sVo}, {sVo}, {WS_QKV + 64*65536}
    s_lshl1_add_u32 {a}, {hi}, {s.th}
    s_xor_b32 {b}, {a}, 1
    s_mul_i32 {sHe[0]}, {a}, {112*1024}
    s_mul_i32 {sHe[1]}, {b}, {112*1024}
    s_mul_i32 {b}, {s.w}, {12*1024}
    s_add_u32 {b}, {b}, {WS_H}
    s_add_u32 {sHe[0]}, {sHe[0]}, {b}
    s_add_u32 {sHe[1]}, {sHe[1]}, {b}
    s_lshl_b32 {b}, {s.w}, 12
    s_add_u32 {b}, {b}, {48*1024}
    s_add_u32 {sHl[0]}, {sHe[0]}, {b}
    s_add_u32 {sHl[1]}, {sHe[1]}, {b}
    s_lshl1_add_u32 {sOi}, {a}, {s.ch}
    s_lshl_b32 {sOi}, {sOi}, 14
    s_add_u32 {sOi}, {sOi}, {WS_O}
    s_lshl_b32 {sSt}, {a}, 9
    s_add_u32 {sSt}, {sSt}, {WS_STATS}
    s_lshl_b32 {sXo}, {a}, 15
    s_xor_b32 {a}, {lo}, {cx}
    s_lshl1_add_u32 {a}, {a}, {s.ch}
    s_lshl_b32 {a}, {a}, 6
    s_add_u32 {sXo}, {sXo}, {a}'''
    return mk(r, 'sfl'), mk(r2, 'sw') + mk(ra, 'sra'), mk(r3, 'srest')

def setup_polls(merge):
    hi, lo, a, b, c, d = sU
    x, y = vPd, vPd + 1
    r = f'''s_lshr_b32 {a}, {hi}, 2
    s_mul_i32 {b}, {a}, 43
    s_lshr_b32 {b}, {b}, 7
    s_mul_i32 {c}, {b}, 190
    s_lshl_b32 {d}, {a}, 6
    s_sub_u32 {c}, {d}, {c}
    v_mov_b32 v{vPq}, {c}
    s_add_u32 {b}, {a}, 8
    s_mul_i32 {b}, {b}, 43
    s_lshr_b32 {b}, {b}, 7
    s_mul_i32 {c}, {b}, 190
    s_add_u32 {d}, {d}, 512
    s_sub_u32 {c}, {d}, {c}
    s_lshl1_add_u32 {b}, {b}, 184
    s_cmp_lt_u32 {a}, 4
    s_cselect_b32 {c}, {c}, {b}
    v_mov_b32 v{x}, {c}
    s_add_u32 {b}, {a}, 16
    s_mul_i32 {b}, {b}, 43
    s_lshr_b32 {b}, {b}, 7
    s_lshl1_add_u32 {b}, {b}, 184
    v_mov_b32 v{y}, {b}
    v_bfe_u32 v{vPo}, v0, 3, 2
    v_cmp_eq_u32 {sPm}, 1, v{vPo}
    s_lshl_b32 {a}, {lo}, 1
    s_sub_u32 {a}, {a}, 2
    v_cndmask_b32 v{vPq}, v{vPq}, v{x}, {sPm}
    v_cmp_eq_u32 {sPm}, 2, v{vPo}
    v_bfe_u32 v{x}, v0, 1, 2
    v_add_u32 v{vPh}, {a}, v{x}
    v_cndmask_b32 v{vPq}, v{vPq}, v{y}, {sPm}
    v_max_i32 v{vPh}, 0, v{vPh}
    v_lshrrev_b32 v{y}, 3, v{vPh}
    v_add_u32 v{vPq}, v{vPq}, v{y}
    v_and_b32 v{vPh}, 7, v{vPh}
    v_lshl_add_u32 v{vPq}, v{vPh}, 3, v{vPq}
    v_and_b32 v{y}, 1, v0
    v_lshl_add_u32 v{vPq}, v{vPq}, 2, v{y}
    s_and_b32 {a}, {hi}, 2
    v_add_u32 v{vPq}, {a}, v{vPq}
    s_lshr_b32 {a}, {hi}, 4
    s_bfe_u32 {b}, {hi}, 0x30001
    s_lshl3_add_u32 {a}, {b}, {a}
    s_lshl1_add_u32 {a}, {s.w}, {a}
    s_and_b32 {b}, {hi}, 1
    s_lshl2_add_u32 {a}, {a}, {b}
    v_lshlrev_b32 v{x}, 8, v{x}
    v_lshl_add_u32 v{x}, v{y}, 1, v{x}
    v_add_u32 v{vPh}, {a}, v{x}
    v_cmp_eq_u32 {sPm}, {3 if merge else 4}, v{vPo}
    v_bfe_u32 v{x}, v0, 2, 2
    v_and_b32 v{y}, 3, v0
    v_cndmask_b32 v{vPq}, v{vPq}, v{vPh}, {sPm}
    s_mov_b32 {c}, {WS_FLAGQ}
    s_mov_b32 {d}, {WS_FLAGH if merge else WS_FLAGE}
    v_lshl_add_u32 v{vPq}, v{vPq}, 7, {c}
    v_lshl_add_u32 v{vPh}, v{vPh}, 7, {d}
    v_lshl_add_u32 v{x}, v{y}, 6, v{x}
    s_lshr_b32 {a}, {hi}, 2
    s_lshl_b32 {a}, {a}, 1
    s_add_u32 {a}, {a}, {s.ch}
    s_lshl_b32 {a}, {a}, 4
    s_and_b32 {b}, {hi}, 3
    s_add_u32 {a}, {a}, {b}
    s_add_u32 {a}, {a}, {WS_FLAGO // 128}
    v_lshl_add_u32 v{x}, v{x}, 2, {a}
    v_lshlrev_b32 v{vPo}, 7, v{x}'''
    return mk(r, 'spoll')

def setup_att():
    a = sU[2]
    x, y, z = A.PM, A.PM + 1, A.PM + 2
    r = f'''v_lshrrev_b32 v{x}, 5, v0
    v_and_b32 v{y}, 15, v0
    v_lshlrev_b32 v{y}, 3, v{y}
    v_lshl_add_u32 v{y}, v{x}, 7, v{y}
    s_lshl_b32 {a}, {s.w}, 11
    s_add_u32 {a}, {a}, {LDS_V}
    v_add_u32 v{z}, {a}, v{y}
    v_add_u32 v{vKa}, {a}, v{vL16}
    v_add_u32 v{vKa}, {LDS_K - LDS_V}, v{vKa}
    s_add_u32 {a}, {sFA}, {LDS_FB + SB[3]}
    v_xor_b32 v{y}, 128, v{y}
    v_add_u32 v{y}, {a}, v{y}
    v_add_u32 v{A.PM+3}, {a}, v{vL16}
    v_and_b32 v{A.J}, 16, v0
    v_cmp_eq_u32 s[86:87], 0, v{A.J}
    v_mov_b32 v{A.J+1}, 1024
    v_and_b32 v{A.J}, 31, v0
    v_cndmask_b32 v{A.VA}, v{y}, v{z}, s[86:87]
    v_cndmask_b32 v{z}, 0, v{A.J+1}, s[86:87]
    v_lshlrev_b32 v{x}, 2, v{x}
    v_sub_u32 v{A.J}, v{A.J}, v{x}
    v_mov_b32 v{A.J+1}, 0xffff
    v_mov_b32 v{A.M}, {attn.NINF}
    v_mov_b32 v{A.M+1}, {attn.NINF}'''.split('\n')
    r += [f'v_add_u32 v{A.VA+b}, v{A.VA+b-1}, v{z}' for b in range(1, 10)]
    r += [f'v_mov_b32 v{A.PM+4+k}, 0x3f803f80' for k in range(4)]
    r += f'''v_and_b32 v{vRs}, 31, v0
    v_lshrrev_b32 v{vXo}, 5, v0
    v_lshlrev_b32 v{vOo}, 10, v{vRs}
    v_lshlrev_b32 v{vRs}, 4, v{vRs}
    v_lshl_add_u32 v{vOo}, v{vXo}, 3, v{vOo}
    v_lshlrev_b32 v{vXo}, 3, v{vXo}
    v_add_u32 v{vOo}, v{vOo}, v{vXo}
    v_sub_u32 v{vXo}, v{vOo}, v{vXo}'''.split('\n')
    return mk(r)
def xload():
    r = mk(f'buffer_load_dword v{vRs}, v{vRs}, {sWS}, {sSt} offen offset:4 sc1', 'xl')
    return r + mk([f'buffer_load_dwordx2 {vr(vX + 2*g, 2)}, v{vXo}, {sX}, {sXo} offen offset:{16*g}' for g in range(4)], 'xl')
def woload(q):
    g = (f's_lshl1_add_u32 m0, {s.mx}, {LDS_V + 4096*q}' if q < 2 else f's_add_u32 m0, {sFA}, {SA[q]}')
    g = mk(f'{g}\ns_lshl_b32 {sT}, {s.w}, 17\ns_add_u32 {sT}, {sT}, {q*32768}')
    return g + mk([f'buffer_load_dwordx4 v{vWdD+j}, {sWO}, {sT} offen offset:{1024*j} lds' for j in range(4)], 'wo')

def kqv():
    r = mk([f'buffer_load_dwordx4 {ar(A.aQ + 4*t, 4)}, v{vL16}, {sWS}, {sQo} offen offset:{1024*t} sc1' for t in range(2)])
    for tag, lds, so in (('K', LDS_K, sKo[0]), ('V', LDS_V, sVo)):
        r += mk(f's_add_u32 m0, {s.mx}, {lds}')
        r += mk([f'buffer_load_dwordx4 v{vL16}, {sWS}, {so} offen offset:{1024*j} sc1 lds' for j in range(4)], tag)
    return r
kr = lambda b: f'ds_read_b128 {ar(attn.kreg(b), 4)}, v{vKa} offset:{1024*b}'
A.kpre = mk([kr(b) for b in (8, 0, 9, 1)] + [f'ds_write_b128 v{A.PM+3}, {vr(A.PM+4, 4)}'] + [kr(b) for b in range(2, 8)])

class Guarded(Pool):
    other = None
    def take(self, *a):
        r = Pool.take(self, *a)
        if self.other is not None:
            busy = set(x for o in self.other for i in o.q for x in i.src + i.dst)
            for i in r: assert not busy & set(i.dst), i.text
        return r

def need(P, pool, tags, v=None):
    q = pool.q
    n = max((j + 1 for j, x in enumerate(q) if x.tag in tags and x.cls != 'pseudo'), default=0)
    if n and v: print('forced', v, tags, n)
    P.add([x for x in q[:n] if x.op != '@delay']); del q[:n]

class WSeq:
    def __init__(self, at=0, started=False): self.at = at; self.started = started
    def __call__(self, u):
        r = []
        if self.at < 6 <= u:
            r += mk(f's_lshl_b32 {sT}, {s.w}, 16\ns_add_u32 {sWk}, {sWk}, {sT}'); r[0].meta['glue'] = True
            d = (u - self.at) * 32768 + 36 * 16384
        else:
            assert (self.at < 6) == (u < 6)
            d = (u - self.at) * 32768
        if d: r += mk(f's_add_u32 {sWk}, {sWk}, {d}' if d > 0 else f's_sub_u32 {sWk}, {sWk}, {-d}')
        self.at = u
        if u in FREE: r += [waitlg(f'r{FREE[u]}')]
        reg, off = slot(u)
        r += mk(f's_add_u32 m0, {sFA}, {reg*LDS_FB + off}')
        r += mk([f'buffer_load_dwordx4 v{vWdD+j}, {sWD}, {sWk} offen offset:{1024*j} lds' for j in range(4)], f'w{u}')
        return r
FREE = {4: 0, 5: 1, 6: 2, 7: 3, 12: 4, 13: 5}

def plan(txt):
    r = {}
    for part in txt.split('/'):
        if not part: continue
        k, _, items = part.partition(':')
        r[k] = items.split(',')
    return r
def expand(items, W):
    r = []
    for x in items:
        if '&' in x:
            a, b = (expand([y], W) for y in x.split('&'))
            per = -(-sum(1 for y in b if y.states()) // sum(1 for y in a if y.cls == 'vmem'))
            for y in a:
                r.append(y)
                k = per if y.cls == 'vmem' else 0
                while b and k > 0:
                    k -= b[0].states(); r.append(b.pop(0))
            r += b
            continue
        n = int(x[1:])
        if x[0] == 'w': r += W(n)
        elif x[0] == 's': r += stage(n)
        elif x[0] == 'h': r += hload(n)
        elif x[0] == 'd': r += [delay(n)]
        elif x[0] == 'p': r += share(n)
        elif x[0] == 'e': r += dose(n)
        elif x[0] == 'o': r += woload(n)
        elif x[0] == 'x': r += xload()
        else: raise ValueError(x)
    return r
PLAN = '15:w0,w1,w2,w3/20:s0,s1,d96,w4,w5/24:s2,s3/q:w6,w7/a:w8,w9,h0,h1,s4,s5,w10,d96,h2,h3,w12,w13,h4,h5/b:w11,x0/c:o0,o1/d16:o2,o3'

class P2Ext:
    def __init__(self, sfx, cold, cfg):
        self.sfx, self.cold, self.cfg = sfx, cold, cfg
        self.dq = Pool(1, period=cfg.get('per2', 64), burst=cfg.get('burst2', 2), maxds=2)
        self.su = Guarded()
        self.fl = Pool()
        self.eh = None
        self.W = cfg['_W'] = WSeq()
        if 'p' in plan(cfg.get('plan', PLAN)): expand(plan(cfg['plan'])['p'], self.W)
        self.plan = plan(cfg.get('plan', PLAN))
    def pools(self, bg): return (self.fl, self.dq, bg, self.su)
    def flush(self, P, pool, name):
        r = pool.rest()
        if r and self.cfg.get('v'): print('flush', self.sfx, name, len(r))
        P.add(r)
    def need(self, P, tags, pool=None): need(P, pool or self.dq, tags, self.cfg.get('v') and self.sfx)
    def at(self, P, i, st, bg):
        cfg, dq, su = self.cfg, self.dq, self.su
        merge = cfg.get('merge', 1)
        k = 4*i + st
        if cfg.get('v') and k and not bg.q and not getattr(self, 'said', 0): print('results out by', self.sfx, k); self.said = 1
        if k == 0 and merge and self.eh:
            for x in self.eh: x.tag = x.tag and 'st1'
            bg.put(self.eh); self.eh = None
        if k == cfg.get('kw3', 12) and not cfg.get('nowarm'):
            assert k >= 1 and not any('vcc' in x.src + x.dst for x in bg.q)
            self.fl.put(warm3())
        if k == cfg.get('ksu', 3):
            su.other = (bg, dq)
            fl_, w_, rest = setup_d(cfg.get('cx', 0))
            su.put(fl_); su.put(setup_polls(merge)); self.rest = rest
        if k == cfg.get('kd6', 0): dq.put(g1.dma2(6)); dq.put(g1.dma2(7))
        if k == cfg.get('pubq' + self.sfx, 17):
            self.flush(P, bg, 'bg'); self.need(P, ('sfl',), su)
            self.fl.put(f'v_mov_b32 v{vFd}, {s.n0}\nv_mov_b32 v{vFd+1}, {s.n1}')
            T = Prog(); stamp(T, 'pub0'); self.fl.put(T.L)
            self.fl.put(publish(WS_FLAGQ, 'st1'))
            T = Prog(); stamp(T, 'pub1'); self.fl.put(T.L)
        if k == cfg.get('keh', 12) and self.eh: bg.put(self.eh)
        if k == 15:
            self.need(P, ('d6', 'd7')); su.put(self.rest)
        if k == cfg.get('pollq', 23):
            self.need(P, ('spoll',), su)
            self.fl.put(poll(vPq, WS_FLAGQ))
            T = Prog(); stamp(T, 'polq'); self.fl.put(T.L)
        if k == cfg.get('ksa', 20):
            self.flush(P, su, 'su'); su.put(setup_att())
        for key in (str(k), self.sfx + str(k)):
            if key not in self.plan: continue
            it = self.plan[key]
            if any('w' in x for x in it): self.need(P, ('sw',), su)
            if any('s' in x for x in it): self.need(P, ('sra',), su)
            for x in it:
                for y in x.split('&'):
                    n = int(y[1:])
                    if y[0] == 's': assert k >= 4 + 4*(n >> 1)
                    if y[0] == 'w': assert k >= {0: 0, 1: 7 if 1 in cfg.get('bars', ()) else 15, 2: 7 if 1 in cfg.get('bars', ()) else 15,
                                                 3: 11 if 2 in cfg.get('bars', ()) else 15, 8: 23, 9: 31, 10: 31, 11: 99}.get(n, 0)
                    if y[0] == 'h': assert k > cfg.get('chkq', 27)
            dq.put(expand(it, self.W))
        if k == cfg.get('chkq', 27):
            assert k >= 23
            self.flush(P, self.fl, 'fl')
            T = Prog(); stamp(T, 'chk0'); dq.put(T.L)
            dq.put(check(self.cold, 'q' + self.sfx, vPq, WS_FLAGQ))
            T = Prog(); stamp(T, 'chkq'); dq.put(T.L)
            dq.burst = cfg.get('burstk', 6)
            dq.put(kqv())
            dq.put(expand(self.plan.get('q', []), self.W))
        if k == cfg.get('pube', 29):
            self.flush(P, bg, 'bg2')
            if merge: su.put(f's_add_u32 {sFl}, {sFl}, 0x20000')
            else: self.fl.put(publish(WS_FLAGE, 'st1h'))
        if k == 31:
            self.flush(P, su, 'su3')
            P(f's_bfe_u32 s84, s2, 0x30003\ns_cmp_eq_u32 s84, 0\ns_cselect_b64 vcc, -1, 0')
    def done(self, P):
        self.flush(P, self.fl, 'fl'); self.flush(P, self.dq, 'dq-end')

class AttBg:
    def __init__(self, cold, cfg):
        self.cold, self.cfg = cold, cfg
        self.q = Pool(cfg.get('vm3', 1), period=cfg.get('per3', 64), burst=cfg.get('burst3', 2), maxds=3)
        self.fl = Pool()
        self.plan = plan(cfg.get('plan', PLAN))
        self.mf = [(u, ks, c, tt) for u in range(6) for ks in range(2) for c in range(2) for tt in range(2)][:cfg.get('nx', 44)]
        self.done = 0; self.late = list(range(6, cfg.get('hatt', 12))); self.hok = False
    def extra(self, P):
        if not self.mf: return []
        u, ks, c, tt = self.mf.pop(0)
        if (ks, c, tt) == (0, 0, 0):
            need(P, self.q, (f'h{u}', f'r{u}'), self.cfg.get('v') and 'att')
            P.waitvm(f'h{u}')
        self.done = u + ((ks, c, tt) == (1, 1, 1))
        return [d1mf(u, ks, c, tt)]
    def gap(self, P, where):
        q, cfg = self.q, self.cfg
        if where == ('p0', 0): q.put(expand(self.plan.get('a', []), cfg['_W']))
        if where == ('dg', 0): q.put(expand(self.plan.get('b', []), cfg['_W']))
        if where == ('it', cfg.get('kbar', 0)):
            P.waitlg(); P('s_barrier')
            q.put(expand(self.plan.get('c', []), cfg['_W']))
        if where == ('p1', cfg.get('pubh', 12)): self.fl.put(publish(WS_FLAGH, 'st2'))
        if where == ('it', cfg.get('pollh', 2)):
            self.fl.put(poll(vPh, WS_FLAGH))
            T = Prog(); stamp(T, 'polh'); self.fl.put(T.L)
        if where == ('it', cfg.get('chkh', 6)):
            P.add(self.fl.rest())
            stamp(P, 'chh0')
            P.add(check(self.cold, 'h', vPh, WS_FLAGH))
            stamp(P, 'chkh')
            self.hok = True
        if where[0] == 'it': stamp(P, f'it{where[1]}')
        while self.hok and self.late and (self.late[0] - 6) >> 1 < self.done: q.put(hload(self.late.pop(0)))
        if where[0] == 'it': return
        P.add(self.fl.take(99, True, P.now()))
        P.add(q.take(20, True, P.now()))

def mf(d, a, b, first):
    return f'v_mfma_f32_32x32x16_bf16 {d}, {a}, {b}, {"0" if first else d}'
def d1mf(u, ks, c, tt):
    hk, hb = hreg(u)
    a = ar(aW + 16*u + 8*ks + 4*c, 4) if u < 6 else vr(vWF + 8*ks + 4*c, 4)
    return mf(rg(*FT[2*c + tt], 16), a, rg(hk, hb + 8*ks + 4*tt, 4), u == 0 and ks == 0)

def dstage(P, cold, cfg, att):
    dq = Pool(1, period=cfg.get('per4', 64), burst=cfg.get('burst4', 6))
    dq.put(att.q.rest())
    fl = Pool(); su = Pool()
    nx = cfg.get('nx', 44)
    assert not att.mf and att.hok and nx % 4 == 0 and nx >= 32
    for u in list(att.late) + list(range(cfg.get('hatt', 12), 14)): dq.put(hload(u))
    pl = plan(cfg.get('plan', PLAN))
    rw, rr, wa, x = vAd, vAd + 2, vAd + 6, vAd + 10
    su.put(f"""v_add_u32 v{rw}, {sFA}, v{vL16}
    v_add_u32 v{rw+1}, {LDS_FB}, v{rw}
    v_xor_b32 v{rr}, {4096}, v{rw}
    v_add_u32 v{rr}, {LDS_FB}, v{rr}
    v_xor_b32 v{rr+1}, {8192}, v{rw}
    v_xor_b32 v{rr+2}, {12288}, v{rw}
    v_add_u32 v{rr+2}, {LDS_FB}, v{rr+2}
    v_add_u32 v{rr+3}, {LDS_FB}, v{rr+1}
    v_subrev_u32 v{wa}, {sFA}, v{vRA}
    v_lshrrev_b32 v{x}, 5, v0
    v_lshl_add_u32 v{wa}, v{x}, 9, v{wa}
    s_lshl_b32 {sU[0]}, {s.ch}, 13
    v_add_u32 v{wa+2}, {sU[0]}, v{wa}
    s_lshl_b32 {sU[0]}, {s.ch}, 14
    s_add_u32 {sU[0]}, {sU[0]}, {LDS_V}
    v_add_u32 v{wa}, {sU[0]}, v{wa}
    v_xor_b32 v{wa+1}, 64, v{wa}
    v_xor_b32 v{wa+3}, 64, v{wa+2}""")
    su.put(f"""s_lshl_b32 {sU[0]}, {s.w}, 15
    s_add_u32 {sU[0]}, {sU[0]}, {WS_FLAGQ}
    s_cmp_eq_u32 s2, 0
    s_cselect_b32 {sU[0]}, {sU[0]}, 0x40000000
    v_lshl_add_u32 v{vBa}, v0, 9, {sU[0]}
    s_or_b32 {sU[0]}, s2, {s.w}
    s_cmp_eq_u32 {sU[0]}, 0
    s_cselect_b32 {sU[0]}, 0, 0x40000000
    v_or_b32 v{vBa+1}, {sU[0]}, v{vFl}
    buffer_load_dwordx2 {vr(vBd, 2)}, v{vBa}, {sWS}, 0 offen sc1""")
    rsrc = {1: rr, 2: rr + 3, 3: rr + 2}
    olds = []
    for q in range(4):
        for j in range(4): olds += mk(f'buffer_load_dwordx4 {ar(aO + 16*q + 4*j, 4)}, v{vL16}, {sWS}, {sOi} offen offset:{1024*j} sc1', f'o{4*q+j}')
        if q < 3: olds += mk(f's_add_u32 {sOi}, {sOi}, 4096')
    steps = [(u, ks) for u in range(14) for ks in range(2)][nx // 4:]
    for u, ks in steps:
        k = 2*u + ks
        if f'd{k}' in pl: dq.put(expand(pl[f'd{k}'], cfg['_W']))
        if k == cfg.get('pubo', 21):
            T = Prog(); stamp(T, 'pbo0'); fl.put(T.L)
            fl.put(publish(WS_FLAGO, 'sto'))
            T = Prog(); stamp(T, 'pbo1'); fl.put(T.L)
        if k == cfg.get('pollo', 25): fl.put(poll(vPo, WS_FLAGO))
        if k == 12: stamp(P, 'd1m')
        if ks == 0 or (u, ks) == steps[0]: need(P, dq, (f'h{u}', f'r{u}'), cfg.get('v') and 'd')
        mfs, fixed = [], {}
        nu, nk = (u, 1) if ks == 0 else (u + 1, 0)
        rd = []
        if 6 <= nu < 14:
            if nk == 0: need(P, dq, (f'w{nu}',), cfg.get('v') and 'd'); P.waitvm(f'w{nu}')
            rd = wread(nu, nk, 'v', vWF + 8*nk)
        for c in range(2):
            for tt in range(2):
                if tt == 0 and rd: fixed[len(mfs)] = rd.pop(0)
                mfs.append(d1mf(u, ks, c, tt))
        weave(P, mfs, fixed, (fl, dq, su), slack=0)
    if cfg.get('v'): print('d1 rest', len(fl.q), len(dq.q), len(su.q))
    P.add(fl.rest()); P.add(dq.rest()); P.add(su.rest())
    stamp(P, 'd1')
    P(f'v_cmp_ne_u64 s[84:85], {sN}, {vr(vBd, 2)}\ns_cmp_eq_u32 s2, 0\ns_cbranch_scc1 L_bump\nL_bump_back:')
    cold.add([forget()])
    cold(f"""L_bump:
    s_cmp_eq_u64 s[84:85], 0
    s_cbranch_scc1 L_bump_back
    s_sub_u32 {s.spin}, {s.spin}, 1
    s_cmp_le_i32 {s.spin}, 0
    s_cbranch_scc1 L_bump_back
    buffer_load_dwordx2 {vr(vBd, 2)}, v{vBa}, {sWS}, 0 offen sc1
    v_cmp_ne_u64 s[84:85], {sN}, {vr(vBd, 2)}
    s_branch L_bump""")
    wr = []
    for j in (1, 2, 3):
        kind, b = FT[j]
        wr += [f'ds_write_b128 v{rw+1}, {rg(kind, b + 4*q, 4)} offset:{SB[j-1] + 1024*q}' for q in range(4)]
    n0 = cfg.get('wr0', 12)
    P.add(wr[:n0])
    stamp(P, 'cho0')
    P.add(check(cold, 'o', vPo, WS_FLAGO))
    stamp(P, 'chko')
    oq = Pool(1, period=cfg.get('per5', 64), burst=cfg.get('burst5', 2))
    oq.put(olds)
    def paced(xs, c=None):
        for x_ in mk(xs):
            P.add(oq.take(8, True, P.now()))
            P.add([x_])
            if c: P._t += c
    G = vF; R2 = vAd + 10
    pre = mk(f'v_mul_f32 v{vRs}, v{vRs}, v{vRs}\nv_mul_f32 v{R2}, {f32(-LOG2E)}, v{vRs}')
    for g in range(8):
        pre += mk([f'v_lshlrev_b32 v{vXF+2*g}, 16, v{vX+g}', f'v_and_b32 v{vXF+2*g+1}, 0xffff0000, v{vX+g}'])
    P.now()
    b2 = cfg.get('b2', 1)
    paced(wr[n0:], cfg.get('wc', 48))
    if not b2:
        paced(pre); pre = []
        P.waitvm('wo')
    P.waitlg()
    P('s_barrier')
    stamp(P, 'rbar')
    P(f'buffer_store_dword v{vFd}, v{vBa+1}, {sWS}, 0 offen sc1')
    def wor(k):
        src, kk = k >> 3, k & 7
        reg, off = (wa, 8192*src + 2048*kk) if kk < 4 else (wa + 2, 4096*src + SA[kk >> 1] + 2048*(kk & 1))
        return [[f'ds_read_b64_tr_b16 {vr(vWF + 8*(k & 1) + 4*c + 2*j, 2)}, v{reg + c} offset:{off + 512*j}' for j in range(2)] for c in range(2)]
    paced([f'ds_read_b128 {vr(vF + 16*j + 4*q, 4)}, v{rsrc[j]} offset:{SB[j-1] + 1024*q}' for j in (1, 2, 3) for q in range(4)], 12)
    if not b2: P.add(wor(0))
    bg = Pool()
    for k in range(1, 4):
        bg.put([f'v_add_f32 v{G+r}, v{G+r}, v{vF+16*k+r}' for r in range(16)])
    bg.put(pre[:2])
    for r0 in range(0, 16, 4):
        rs = range(r0, r0 + 4)
        bg.put([f'v_mul_f32 v{vE+r}, v{R2}, v{G+r}' for r in rs])
        bg.put([f'v_exp_f32 v{vE+r}, v{vE+r}' for r in rs])
        bg.put([f'v_mul_f32 v{G+r}, v{vRs}, v{G+r}' for r in rs])
        bg.put([f'v_add_f32 v{vE+r}, 1.0, v{vE+r}' for r in rs])
        bg.put([f'v_rcp_f32 v{vE+r}, v{vE+r}' for r in rs])
    bg.put([f'v_mul_f32 v{G+r}, v{G+r}, v{vE+r}' for r in range(16)])
    bg.put(pre[2:])
    ne = cfg.get('early', 50)
    if b2:
        paced(bg.q[:ne - 12]); del bg.q[:ne - 12]
        P.waitvm('wo'); P('s_barrier'); P.add(wor(0)); ne = 12
    paced(bg.q[:ne]); del bg.q[:ne]
    stamp(P, 'red')
    for k in range(16):
        rd = wor(k + 1) if k < 15 else []
        need(P, oq, (f'o{k}',), cfg.get('v') and 'o')
        mfs, fixed = [], {}
        for c in range(2):
            if rd: fixed[len(mfs)] = rd.pop(0)
            mfs.append(mf(vr(vSx + 16*c, 16), vr(vWF + 8*(k & 1) + 4*c, 4), ar(aO + 4*k, 4), k == 0))
        weave(P, mfs, fixed, (oq, bg), slack=0)
    P.add(bg.rest())
    stamp(P, 'd2')
    for q in range(4): P(f'ds_write_b128 v{rw}, {vr(vSx + 16 + 4*q, 4)} offset:{SA[0] + q*1024}')
    for r in range(16): P(f'v_fmac_f32 v{vXF+r}, v{vSx+r}, v{G+r}')
    P.waitlg()
    P('s_barrier')
    for q in range(4): P(f'ds_read_b128 {vr(vSx + 16 + 4*q, 4)}, v{rr+1} offset:{SA[0] + q*1024}')
    for g in range(2):
        for r in range(8*g, 8*g + 8): P(f'v_fmac_f32 v{vXF+r}, v{vSx+16+r}, v{G+r}')
        for k in range(4*g, 4*g + 4): P(f'v_cvt_pk_bf16_f32 v{vX+k}, v{vXF+2*k}, v{vXF+2*k+1}')
        for k in range(2): P(f'v_permlane32_swap_b32 v{vX+4*g+k}, v{vX+4*g+2+k}')
        P(f'buffer_store_dwordx4 {vr(vX + 4*g, 4)}, v{vOo}, {sOUT}, {sXo} offen offset:{32*g}' + ('', ' sc1', ' sc0 sc1', ' nt', ' sc1 nt')[cfg.get('osc', 0)])
    stamp(P, 'out')

def build(cfg):
    P, cold = Prog(), Prog()
    if cfg.get('ep'): g1.early(P, 'L_end', cfg)
    else: g1.entry(P, 'L_end')
    for srd, off in ((sWO, 16), (sWD, 48), (sOUT, 56)): srd_load(P, srd, off)
    srd_const(P, sWO, 512*512*2); srd_const(P, sWD, 1792*512*2); srd_const(P, sOUT, 2048*512*2)
    cfg['_hook'] = lambda P, pos: hook(P, pos, cfg)
    cfg['_pre'] = lambda: setup_d()[1]
    cfg['_pre7'] = lambda: expand(plan(cfg.get('plan', PLAN)).get('p', []), WSeq())
    g1.g1_body(P, cold, cfg, lambda sfx: P2Ext(sfx, cold, cfg))
    g1.epilogue2(P)
    stamp(P, 'e2')
    bg = AttBg(cold, cfg)
    attn.pass1(P, cold, [], bg)
    stamp(P, 'a1')
    attn.pass2b(P, cold, bg, bg.extra)
    if cfg.get('v'): print('att rest', len(bg.fl.q), len(bg.q.q))
    P.add(bg.fl.rest())
    stamp(P, 'a2')
    dstage(P, cold, cfg, bg)
    stamp_end(P)
    P('L_end:\ns_endpgm')
    P.add(cold.L)
    P('L_last:')
    if cfg.get('pst'):
        pos = cfg['pst']; n = 0; L2 = []
        for x in P.L:
            L2.append(x)
            if x.states():
                n += 1
                if n in pos:
                    T = Prog(); stamp(T, f'n{pos.index(n)}'); L2 += T.L
        P.L = L2
    abl = cfg.get('abl', '').split(',')
    def drop(x):
        t = x.tag if isinstance(x.tag, str) else ''
        if x.cls == 'vmem':
            if 'hl' in abl and t[:1] == 'h' and int(t[1:]) >= 6: return True
            if 'he' in abl and t[:1] == 'h' and int(t[1:]) < 6: return True
            if 'wo' in abl and t == 'wo': return True
            if 'wd' in abl and t[:1] == 'w' and t != 'wo': return True
            if 'o' in abl and t[:1] == 'o': return True
            if 'st1' in abl and t == 'st1': return True
            if 'st2' in abl and t == 'st2': return True
            if 'kv' in abl and t in ('K', 'V'): return True
        if x.cls == 'ds' and 'stage' in abl and t[:1] == 'r': return True
        return False
    P.L = [x for x in P.L if not drop(x)]
    for j, x in enumerate(P.L):
        t = x.tag if isinstance(x.tag, str) else ''
        if x.cls != 'vmem': continue
        if 'whit' in abl and t[:1] == 'w': P.L[j] = I(re.sub(r', s\d+ offen', ', 0 offen', x.text).replace(' lds', ' sc1 lds'), x.tag)
        if 'hhit' in abl and t[:1] == 'h': P.L[j] = I(re.sub(r', s\d+ offen', f', {s.mx} offen', x.text), x.tag)
    L = finish(P.L)
    return L

if __name__ == '__main__':
    cfg = {}
    for a in sys.argv[2:]:
        k, _, v = a.partition('=')
        if k == 'st':
            STAMPS[0] = True; SEL.extend(v.split(','))
        elif k == 'dbg':
            STAMPS[0] = 'dbg'; SEL.extend(v.split(','))
        elif k in ('plan', 'abl', 'lp', 'lq'): cfg[k] = v
        elif k in ('doses', 'bars', 'pst'): cfg[k] = [int(x) for x in v.split(',')]
        else: cfg[k] = int(v) if v else 1
    if cfg.get('vc'): COST['vmem'] = cfg['vc']
    if cfg.get('dc'): COST['ds'] = cfg['dc']
    L = build(cfg)
    print('instructions', sum(1 for x in L if x.states()), 'estimate', estimate(L), 'nops', sum(1 for x in L if x.cls == 'nop'))
    src = '; @launch grid=(256,1,1) block=(256,1,1) lds=163840\n.amdgcn_target "amdgcn-amd-amdhsa--gfx950"\n' + kernel_text(NAME + '_kernel', L)
    open(sys.argv[1], 'w').write(src)
```

```python
from common import *

vT = 2
vL16 = 1
vXd = 10; vWd = 14
vXr = 22
vA, vB, vC = 26, 28, 30
vAugW, vAugR = 32, 33
vQo = 34
vSel = 36; vCs = 40; vSt = 52; vXa = 60; vAg = 64; vScq = 70; vWf = 72
vAcc2 = 96; vAcc1 = 160
vXr2 = 156
SLOT = 40960
LDS_AUG = 114688
def acc1(u, t): return vAcc1 + 32 * u + 16 * t
def acc2(u, t): return vAcc2 + 32 * u + 16 * t
def wf(par, u): return vWf + 12 * par + 4 * u
def xf(i, st, t): return 32 * i + 8 * st + 4 * t
BASE = {vA: 0, vB: 49152, vC: 98304}
W1 = [(vA, 0), (vA, SLOT), (vB, 2*SLOT - 49152), (vC, 3*SLOT - 98304)]
W2 = [(r, a - BASE[r], a) for r, a in ((vA, 0), (vA, 16384), (vA, 49152), (vB, 65536), (vB, 81920), (vC, 98304), (vC, 131072), (vC, 147456))]

def entry(P, endlabel):
    P(f's_cmp_ge_u32 s2, 256\ns_cbranch_scc1 {endlabel}')

def early(P, endlabel, cfg):
    a = vLp
    nx = cfg.get('enx', 2)
    P(f'''s_cmpk_ge_u32 s2, 256
    s_cbranch_scc1 {endlabel}
    s_load_dwordx4 s[4:7], s[0:1], 0
    s_load_dwordx4 s[20:23], s[0:1], 32
    s_load_dwordx2 s[28:29], s[0:1], 72''')
    if STAMPS[0]: P('s_memrealtime s[100:101]')
    r = mk(f'''s_getpc_b64 s[84:85]
    L_pc:
    s_andn2_b32 s82, s2, 7
    v_lshrrev_b32 v{a}, 5, v0
    v_add_lshl_u32 v{a}, v{a}, s82, 7
    v_min_u32 v{a}, L_last-L_pc-4, v{a}
    global_load_dword v{a+6}, v{a}, s[84:85]
    v_lshrrev_b32 v{a+1}, 4, v0
    v_lshl_add_u32 v{a+1}, s82, 1, v{a+1}
    v_and_b32 v{a+2}, 15, v0
    s_bfe_u32 s83, s2, 0x20001
    s_mul_i32 s83, s83, 3
    v_add_lshl_u32 v{a+2}, v{a+2}, s83, 7
    s_movk_i32 s86, 3072
    v_mad_u32_u24 v{a+2}, v{a+1}, s86, v{a+2}
    v_lshl_add_u32 v{a+1}, v{a+1}, 9, v{a+2}
    s_and_b32 s87, s2, 1
    s_lshl_b32 s87, s87, 8
    s_add_u32 s87, s87, s82
    s_lshr_b32 s83, s87, 6
    v_lshrrev_b32 v{a+3}, 3, v0
    v_lshl_add_u32 v{a+3}, s87, 2, v{a+3}
    v_add_u32 v{a+4}, s83, v0
    v_and_b32 v{a+4}, 7, v{a+4}
    v_lshlrev_b32 v{a+4}, 7, v{a+4}
    v_lshl_add_u32 v{a+3}, v{a+3}, 10, v{a+4}
    s_mov_b32 exec_lo, {hex(((1 << nx) - 1) * 0x01010101)}
    s_mov_b32 exec_hi, exec_lo
    s_waitcnt lgkmcnt(0)
    global_load_dword v{a+6}, v{a+3}, s[4:5]
    s_mov_b32 exec_lo, 0x00070007
    s_mov_b32 exec_hi, exec_lo
    global_load_dword v{a+6}, v{a+2}, s[6:7]
    global_load_dword v{a+6}, v{a+2}, s[6:7] offset:1536
    global_load_dword v{a+6}, v{a+1}, s[20:21]
    global_load_dword v{a+6}, v{a+1}, s[22:23]
    s_mov_b64 exec, -1''')
    if cfg.get('enw', 2) == 2:
        tx = [x.text for x in r]
        k = tx.index(f'v_lshrrev_b32 v{a+1}, 4, v0')
        sx = tx.index('s_and_b32 s87, s2, 1')
        r = r[:k] + r[sx:sx+3] + mk(f'v_lshrrev_b32 v{a+1}, 5, v0\nv_add_u32 v{a+1}, s87, v{a+1}\nv_and_b32 v{a+2}, 31, v0') + r[k+3:sx] + r[sx+3:]
        r = [mk('s_mov_b32 exec_lo, 7')[0] if '0x00070007' in x.text else x for x in r]
    if cfg.get('rot') == 8:
        r = [mk(x.text.replace('s87', 's82'))[0] if x.text in (f'v_add_u32 v{a+1}, s87, v{a+1}', 's_lshr_b32 s83, s87, 6') else x for x in r]
    for x in r:
        if x.cls == 'vmem': x.dst = []
    if cfg.get('enw') == 0: r = [x for x in r if not (x.cls == 'vmem' and ('s[6:7]' in x.text or 's[2' in x.text))]
    if nx == 0: r = [x for x in r if not (x.cls == 'vmem' and 's[4:5]' in x.text)]
    P.add(r)
    if STAMPS[0]: P('s_memtime s[98:99]')
    P('s_mov_b64 s[8:9], s[6:7]\ns_mov_b64 s[24:25], s[22:23]')

def rest_x(cfg):
    a = vLp
    nx = cfg.get('enx', 2)
    m = (0xff & ~((1 << nx) - 1)) * 0x01010101
    r = mk(f'''s_mov_b32 exec_lo, {hex(m)}
    s_mov_b32 exec_hi, exec_lo
    buffer_load_dword v{a+6}, v{a+3}, {sX}, 0 offen
    s_mov_b64 exec, -1''')
    for x in r[:-1]: x.meta['glue'] = True
    r[2].dst = []
    return r

def wave_ids(P):
    P(f'v_lshrrev_b32 v{vT}, 6, v0')
    P(f'v_and_b32 v0, 63, v0')
    P(f'v_readfirstlane_b32 {s.w}, v{vT}')
    P(f'v_lshlrev_b32 v{vL16}, 4, v0')

def nonce(P, vE):
    P(f'v_readfirstlane_b32 {s.n0}, v{vE}')
    P(f's_add_u32 {s.n0}, {s.n0}, 1')
    P(f's_mul_i32 {s.n1}, {s.n0}, 0x9e3779b1')
    P(f's_xor_b32 {s.n1}, {s.n1}, 0x7f4a7c15')

def kc_next(first=False):
    r = []
    if not first:
        r += [f's_add_u32 {s.kc}, {s.kc}, 1', f's_and_b32 {s.kc}, {s.kc}, 7']
    return r

def dma1(i):
    sl = i & 3
    tag = f'c{i}'
    pre = kc_next(i == 0) + [f's_lshl_b32 {s.kx}, {s.kc}, 7', f's_mul_i32 {s.k0}, {s.kc}, {64*3072}', f's_mul_i32 {s.k1}, {s.kc}, {s.str64}']
    seq = mk(pre)
    seq += mk(f's_add_u32 m0, {s.mx}, {sl*SLOT + 24576}')
    for j in range(4):
        seq += mk(f'buffer_load_dwordx4 v{vXd+j}, {sX}, {s.kx} offen offset:{1024*j} lds', tag)
    for u, (srd, so) in enumerate(((sQ, s.k0), (sU1, s.k1), (sU2, s.k1))):
        seq += mk(f's_add_u32 m0, {s.mw}, {sl*SLOT + u*8192}')
        for j in range(2):
            seq += mk(f'buffer_load_dwordx4 v{vWd+2*u+j}, {srd}, {so} offen offset:{1024*j} lds', tag)
    return seq

def dma2(i):
    tag = f'd{i}'
    seq = mk(kc_next() + [f's_mul_i32 {s.k2}, {s.kc}, {64*3584}'])
    for u, srd in enumerate((sG, sU)):
        seq += mk(f's_add_u32 m0, {s.mw}, {W2[i][2] + u*8192}')
        for j in range(2):
            seq += mk(f'buffer_load_dwordx4 v{vWd+6+j}, {srd}, {s.k2} offen offset:{1024*j} lds', tag)
    return seq

vLp = 148
def look_setup(n, nd):
    a, b, c = vLp + 6, vLp + 7, vLp + 5
    r = f'''s_lshr_b32 s82, s2, 6
    s_lshl2_add_u32 s82, s82, {s.w}
    s_lshl_b32 s82, s82, 3
    s_lshl_b32 s83, {s.rb}, 7
    s_add_u32 s82, s82, s83
    v_and_b32 v{a}, 7, v0
    v_lshrrev_b32 v{b}, 3, v0
    v_add_u32 v{a}, s82, v{a}
    v_lshlrev_b32 v{a}, 10, v{a}
    v_lshl_add_u32 v{vLp}, v{b}, 7, v{a}
    v_cmp_gt_u32 vcc, {8*n}, v0
    v_mov_b32 v{c}, 0x40000000
    s_and_b32 s82, {s.rb}, 7
    v_cndmask_b32 v{vLp}, v{c}, v{vLp}, vcc
    s_lshl2_add_u32 s82, s82, {s.w}
    s_lshl_b32 s82, s82, 1
    v_and_b32 v{a}, 1, v0
    v_lshrrev_b32 v{b}, 1, v0
    v_lshl_add_u32 v{a}, v{b}, 6, v{a}
    v_add_u32 v{a}, s82, v{a}
    s_lshr_b32 s83, {s.str64}, 6
    v_mul_u32_u24 v{vLp+1}, 3072, v{a}
    v_mul_u32_u24 v{vLp+2}, s83, v{a}
    v_mul_u32_u24 v{vLp+4}, 3584, v{a}
    v_cmp_gt_u32 vcc, {2*n}, v0
    v_add_u32 v{vLp+1}, {s.qo1}, v{vLp+1}
    v_add_u32 v{vLp+3}, {s.qo3}, v{vLp+2}
    v_add_u32 v{vLp+2}, {s.qo2}, v{vLp+2}
    s_add_u32 s82, {s.cg}, 12
    s_lshl_b32 s82, s82, 7
    v_add_u32 v{vLp+4}, s82, v{vLp+4}
    v_cndmask_b32 v{vLp+1}, v{c}, v{vLp+1}, vcc
    v_cndmask_b32 v{vLp+2}, v{c}, v{vLp+2}, vcc
    v_cndmask_b32 v{vLp+3}, v{c}, v{vLp+3}, vcc
    v_cmp_gt_u32 vcc, {2*nd}, v0
    s_nop 0
    v_cndmask_b32 v{vLp+4}, v{c}, v{vLp+4}, vcc'''
    return mk(r)
def look(kind, j):
    d = vLp + 6
    if kind == 'x': r = f's_mov_b32 s87, {128*j}\nbuffer_load_dword v{d}, v{vLp}, {sX}, s87 offen'
    if kind == 'w': r = f'''s_mov_b32 s87, {j*64*3072}
        buffer_load_dword v{d}, v{vLp+1}, {sQ}, s87 offen
        s_mul_i32 s87, {s.str64}, {j}
        buffer_load_dword v{d}, v{vLp+2}, {sU1}, s87 offen
        buffer_load_dword v{d}, v{vLp+3}, {sU2}, s87 offen'''
    if kind == 'd': r = f'''s_mov_b32 s87, {j*64*3584}
        buffer_load_dword v{d}, v{vLp+4}, {sG}, s87 offen
        buffer_load_dword v{d}, v{vLp+4}, {sU}, s87 offen'''
    r = mk(r)
    for x in r:
        if x.cls == 'vmem': x.dst = []; x.meta['free'] = True
    return r
def look2_setup(cfg):
    a, b, c = vLp + 6, vLp + 7, vLp + 5
    nx, xo = cfg.get('lnx', 6), 8 - cfg.get('lnx', 6)
    nw = cfg.get('lnw', 3)
    r = f'''s_lshr_b32 s82, s2, 6
    s_lshl2_add_u32 s82, s82, {s.w}
    s_lshl_b32 s82, s82, 3
    s_lshl_b32 s83, {s.rb}, 7
    s_add_u32 s82, s82, s83
    v_and_b32 v{a}, 7, v0
    v_lshrrev_b32 v{b}, 3, v0
    v_add_u32 v{a}, s82, v{a}
    {f's_lshr_b32 s83, {s.rb}, 1' if cfg['rot'] == 1 else f's_bfe_u32 s83, {s.rb}, 0x20001'}
    s_add_u32 s83, s83, {xo}
    v_add_u32 v{b}, s83, v{b}
    v_and_b32 v{b}, 7, v{b}
    v_lshlrev_b32 v{a}, 10, v{a}
    v_lshl_add_u32 v{vLp}, v{b}, 7, v{a}
    v_cmp_gt_u32 vcc, {8*nx}, v0
    v_mov_b32 v{c}, 0x40000000
    s_and_b32 s82, {s.rb}, 7
    v_cndmask_b32 v{vLp}, v{c}, v{vLp}, vcc
    s_lshl2_add_u32 s82, s82, {s.w}
    s_lshr_b32 s83, {s.rb}, {3 if cfg['rot'] == 1 else 4}
    s_lshl_b32 s83, s83, 8
    s_add_u32 s83, s83, {(8 - nw)*64}
    v_mad_u32_u24 v{a}, s82, {2*nw}, v0
    v_add_u32 v{a}, s83, v{a}
    v_and_b32 v{a}, 511, v{a}
    s_lshr_b32 s83, {s.str64}, 6
    v_mul_u32_u24 v{vLp+1}, 3072, v{a}
    v_mul_u32_u24 v{vLp+2}, s83, v{a}
    v_lshl_add_u32 v{a}, s82, 4, v0
    v_mul_u32_u24 v{vLp+4}, 3584, v{a}
    v_cmp_gt_u32 vcc, {2*nw}, v0
    v_add_u32 v{vLp+1}, {s.qo1}, v{vLp+1}
    v_add_u32 v{vLp+3}, {s.qo3}, v{vLp+2}
    v_add_u32 v{vLp+2}, {s.qo2}, v{vLp+2}
    s_add_u32 s82, {s.cg}, 12
    s_lshl_b32 s82, s82, 7
    v_add_u32 v{vLp+4}, s82, v{vLp+4}
    v_cndmask_b32 v{vLp+1}, v{c}, v{vLp+1}, vcc
    v_cndmask_b32 v{vLp+2}, v{c}, v{vLp+2}, vcc
    v_cndmask_b32 v{vLp+3}, v{c}, v{vLp+3}, vcc
    v_cmp_gt_u32 vcc, 16, v0
    s_nop 0
    v_cndmask_b32 v{vLp+4}, v{c}, v{vLp+4}, vcc'''
    return mk(r)
def look2(kind):
    d = vLp + 6
    src = {'x': [(0, sX)], 'w': [(1, sQ), (2, sU1), (3, sU2)], 'd': [(4, sG), (4, sU)]}[kind]
    r = mk([f'buffer_load_dword v{d}, v{vLp+k}, {srd}, 0 offen' for k, srd in src])
    for x in r: x.dst = []; x.meta['free'] = True
    return r
def looks(cfg, after):
    r = []
    if cfg.get('erx') == after: r += rest_x(cfg)
    for it in cfg.get('lq', '').split(','):
        if it and it[1:] == str(after): r += look2(it[0])
    for it in cfg.get('lp', '').split(','):
        if it and it.split('@')[1] == str(after): r += look(it[0], int(it[1:].split('@')[0]))
    return r

def rd1(i, st):
    sl = i & 3
    x = [f'ds_read_b128 {ar(xf(i, st, t), 4)}, v{(vXr if sl < 2 else vXr2)+st} offset:{(sl & 1)*SLOT + t*4096}' for t in range(2)]
    base = W1[sl][0] + (st >> 1)
    w = [[f'ds_read_b64_tr_b16 {vr(wf(st & 1, u) + 2*j, 2)}, v{base} offset:{W1[sl][1] + u*8192 + (st & 1)*2048 + j*512}'
          for j in range(2)] for u in range(3)]
    return x, w

def rd2(i, st):
    reg, imm, _ = W2[i]
    return [[f'ds_read_b64_tr_b16 {vr(wf(st & 1, u) + 2*j, 2)}, v{reg + (st >> 1)} offset:{imm + u*8192 + (st & 1)*2048 + j*512}'
             for j in range(2)] for u in range(2)]

def mf32(d, a, b, first):
    return f'v_mfma_f32_32x32x16_bf16 {vr(d, 16)}, {a}, {b}, {"0" if first else vr(d, 16)}'

def cs_split(u, off):
    c = vCs + 4 * u
    h, f, l = vT, vT + 2, vT + 6
    r = [f'v_cvt_pk_bf16_f32 v{h}, v{c}, v{c+1}', f'v_cvt_pk_bf16_f32 v{h+1}, v{c+2}, v{c+3}',
         f'v_lshlrev_b32 v{f}, 16, v{h}', f'v_and_b32 v{f+1}, 0xffff0000, v{h}',
         f'v_lshlrev_b32 v{f+2}, 16, v{h+1}', f'v_and_b32 v{f+3}, 0xffff0000, v{h+1}']
    r += [f'v_sub_f32 v{f+k}, v{c+k}, v{f+k}' for k in range(4)]
    r += [f'v_cvt_pk_bf16_f32 v{l}, v{f}, v{f+1}', f'v_cvt_pk_bf16_f32 v{l+1}, v{f+2}, v{f+3}',
          f'ds_write_b64 v{vAugW}, {vr(h, 2)} offset:{off + u*512}', f'ds_write_b64 v{vAugW}, {vr(l, 2)} offset:{off + u*512 + 64}']
    return r

def pack_store(d, voff, so_a, so_b, imm_a, imm_b, tag):
    r = []
    for half, (so, imm) in enumerate(((so_a, imm_a), (so_b, imm_b))):
        b = d + 8 * half
        r += mk([f'v_cvt_pk_bf16_f32 v{b+k}, v{b+2*k}, v{b+2*k+1}' for k in range(4)])
        r += mk(f'buffer_store_dwordx4 {vr(b, 4)}, v{voff}, {sWS}, {so} offen offset:{imm} sc1', tag)
    return r

def epi_qkv(u, voff, scale):
    r = []
    for t in range(2):
        d = acc1(u, t)
        r += mk([f'v_mul_f32 v{d+k}, v{scale(t)}, v{d+k}' for k in range(16)])
        r += pack_store(d, voff, S[f'qo{2*u}'], S[f'qo{2*u+1}'], 1024 * t, 1024 * t, 'st1')
    return r

def epi_h(g, uu, so, tag):
    r = []
    for t in range(2):
        r += mk([f'v_mul_f32 v{g(t)+k}, v{g(t)+k}, v{uu(t)+k}' for k in range(16)])
        r += pack_store(g(t), vL16, so(t), so(t), 0, 1024, tag)
    return r

def hook(P, cfg, pos):
    if cfg.get('_hook'): cfg['_hook'](P, pos)

def wsite(P, cfg, k):
    if cfg.get('wu') is not None and k in cfg.get('wus', [1]): P(f'L_wu{k}:')

def prologue(P, cfg):
    if not cfg.get('ep'):
        for srd, off in ((sX, 0), (sQ, 8), (sG, 32), (sU, 40), (sWS, 72)):
            srd_load(P, srd, off)
        stamp_begin(P)
        hook(P, cfg, 0)
    wave_ids(P)
    P(f'''s_and_b32 {s.t0}, s2, 7
    s_lshr_b32 {s.t1}, s2, 3
    s_and_b32 {s.rb}, {s.t0}, 1
    s_lshl_b32 {s.rb}, {s.rb}, 3
    s_and_b32 {s.t2}, {s.t1}, 7
    s_add_u32 {s.rb}, {s.rb}, {s.t2}
    s_lshr_b32 {s.t0}, {s.t0}, 1
    s_lshr_b32 {s.t1}, {s.t1}, 3
    s_lshl2_add_u32 {s.cg}, {s.t0}, {s.t1}
    s_and_b32 {s.th}, {s.w}, 1
    s_lshr_b32 {s.ch}, {s.w}, 1
    s_lshl_b32 {s.mx}, {s.w}, 12
    s_lshl_b32 {s.mw}, {s.w}, 11''')
    srd_const(P, sX, 2048*512*2); srd_const(P, sWS, WS_SIZE); srd_const(P, sQ, 512*1536*2)
    srd_const(P, sG, 512*1792*2); srd_const(P, sU, 512*1792*2)
    P('s_mov_b32 s15, 0x20000\ns_mov_b32 s19, 0x20000')
    P(f'''s_lshl_b32 {s.t2}, {s.rb}, 4
    s_add_u32 {s.t2}, {s.t2}, {s.cg}
    s_lshl2_add_u32 {s.t2}, {s.t2}, {s.w}
    s_lshl_b32 {s.t3}, {s.t2}, 11
    s_lshl_b32 {s.t2}, {s.t2}, 5
    s_add_u32 {sStat}, {s.t2}, {WS_STATS}''')
    P(f'''s_mul_i32 {s.t4}, {s.t0}, 3
    s_add_u32 {s.t5}, {s.t4}, {s.t1}
    s_add_u32 {s.t4}, {s.t4}, 12
    s_cmp_eq_u32 {s.t1}, 3
    s_cselect_b32 {s.isb}, 1, 0
    s_cselect_b32 {s.qo0}, {s.t4}, {s.t5}
    s_mov_b32 {s.str64}, {64*3072}
    s_cselect_b32 {s.str64}, {s.str64}, {64*3584}
    s_lshl_b32 s14, {s.str64}, 3
    s_mov_b32 s18, s14
    s_lshl_b32 {s.qo1}, {s.qo0}, 7
    s_add_u32 {s.qo2}, {s.qo1}, 128
    s_add_u32 {s.qo3}, {s.qo1}, 256
    s_cmp_eq_u32 {s.isb}, 1
    s_cselect_b32 {s.qo2}, {s.qo2}, {s.qo1}
    s_cselect_b32 {s.qo3}, {s.qo3}, {s.qo1}''')
    P(f's_mov_b32 {s.ho0}, {s.t5}')
    if cfg.get('rot') == 1:
        P(f's_lshr_b32 {s.kc}, {s.rb}, 1')
    elif cfg.get('rot') == 2:
        P(f's_lshl1_add_u32 {s.kc}, {s.cg}, {s.rb}\ns_and_b32 {s.kc}, {s.kc}, 7')
    elif cfg.get('rot') == 3:
        P(f's_and_b32 {s.kc}, {s.rb}, 7')
    elif cfg.get('rot') == 5:
        P(f's_lshr_b32 {s.kc}, {s.rb}, 2')
    elif cfg.get('rot') == 6:
        P(f's_lshr_b32 {s.kc}, {s.rb}, 2\ns_lshl_b32 {s.kc}, {s.kc}, 1')
    elif cfg.get('rot') == 7:
        P(f's_lshr_b32 {s.kc}, {s.rb}, 3\ns_lshl_b32 {s.kc}, {s.kc}, 2')
    elif cfg.get('rot') == 8:
        P(f's_bfe_u32 {s.kc}, {s.rb}, 0x20001')
    elif cfg.get('rot') == 4:
        P(f's_and_b32 {s.kc}, {s.rb}, 3')
    else:
        P(f's_mov_b32 {s.kc}, 0')
    t = vT
    P(f'''v_lshrrev_b32 v{t}, 3, v0
    v_and_b32 v{t+1}, 7, v0
    v_lshrrev_b32 v{t+2}, 4, v0
    v_xor_b32 v{t+3}, v{t+1}, v{t+2}
    v_lshlrev_b32 v{t+3}, 4, v{t+3}
    v_lshl_add_u32 v{t+3}, v{t}, 10, v{t+3}
    s_lshl_b32 {s.t0}, {s.rb}, 17
    s_lshl_b32 {s.t1}, {s.w}, 15
    s_add_u32 {s.t0}, {s.t0}, {s.t1}
    v_add_u32 v{vXd}, {s.t0}, v{t+3}
    v_xor_b32 v{vXd+1}, 64, v{vXd}
    v_add_u32 v{vXd+2}, {2*7168}, v{vXd}
    v_add_u32 v{vXd+3}, {3*7168}, v{vXd+1}
    v_add_u32 v{vXd+1}, 7168, v{vXd+1}
    v_and_b32 v{t+2}, 1, v{t+2}
    v_lshlrev_b32 v{t+2}, 2, v{t+2}
    v_xor_b32 v{t+1}, v{t+1}, v{t+2}
    v_lshlrev_b32 v{t+1}, 4, v{t+1}
    s_lshl_b32 {s.t0}, {s.w}, 4
    v_add_u32 v{t}, {s.t0}, v{t}
    s_lshr_b32 {s.t1}, {s.str64}, 6
    v_mul_u32_u24 v{t+2}, 3072, v{t}
    v_mul_u32_u24 v{t+3}, {s.t1}, v{t}
    v_add3_u32 v{vWd}, v{t+2}, v{t+1}, {s.qo1}
    v_add3_u32 v{vWd+2}, v{t+3}, v{t+1}, {s.qo2}
    v_add3_u32 v{vWd+4}, v{t+3}, v{t+1}, {s.qo3}
    s_lshr_b32 {s.t1}, {s.str64}, 3
    s_sub_u32 {s.t1}, {s.t1}, 1024
    v_add_u32 v{vWd+1}, {8*3072-1024}, v{vWd}
    v_add_u32 v{vWd+3}, {s.t1}, v{vWd+2}
    v_add_u32 v{vWd+5}, {s.t1}, v{vWd+4}
    v_mov_b32 v{vAcc2+41}, 0''')
    P.waitlg()
    stamp_keep(P)
    stamp(P, 'kw')
    if cfg.get('pro'): stamp(P, 1)
    P(f'''s_cmp_eq_u32 {s.isb}, 1
    s_cselect_b32 s12, s8, s20
    s_cselect_b32 s13, s9, s21
    s_cselect_b32 s16, s8, s24
    s_cselect_b32 s17, s9, s25''')
    R = vAcc2
    rows = mk(f'buffer_load_dword v{R+40}, v{R+41}, {sWS}, 0 offen sc1', 'ep') + \
        mk([f'buffer_load_dwordx4 {vr(R+4*k, 4)}, v{vL16}, {sX}, {s.t3} offen offset:{1024*k}' for k in range(2)], 'row')
    late = cfg.get('late', 1)
    if not late: P.add(rows)
    hook(P, cfg, 1)
    c0 = dma1(0)
    n0 = cfg.get('n0', 99)
    k0 = next((j for j in range(len(c0)) if sum(1 for x in c0[:j] if x.cls == 'vmem') >= n0), len(c0))
    P.add(c0[:k0]); c0 = c0[k0:]
    wsite(P, cfg, 0)
    if not cfg.get('c0l'): P.add(c0); c0 = []
    stamp(P, 'i0')
    if cfg.get('lp'):
        assert not cfg.get('rot')
        P.add(look_setup(cfg.get('ln', 2), cfg.get('lnd', 4)))
        P.add(looks(cfg, 0))
    if cfg.get('lq'):
        assert cfg.get('rot') in (1, 8)
        P.add(look2_setup(cfg))
        P.add(looks(cfg, 0))
    P(f'''s_add_u32 {s.t0}, {s.cg}, 12
    s_lshl_b32 {s.t0}, {s.t0}, 7
    v_mul_u32_u24 v{t+3}, 3584, v{t}
    v_add3_u32 v{vWd+6}, v{t+3}, v{t+1}, {s.t0}
    v_add_u32 v{vWd+7}, {8*3584-1024}, v{vWd+6}''')
    if not late: P.add(dma1(1))
    P(f'''v_and_b32 v{t}, 31, v0
    s_lshl_b32 {s.t0}, {s.th}, 6
    v_add_u32 v{t}, {s.t0}, v{t}
    v_lshrrev_b32 v{t+1}, 5, v0
    v_bfe_u32 v{t+2}, v0, 1, 3
    v_xor_b32 v{t+2}, v{t+2}, v{t+1}
    s_lshl_b32 {s.t0}, {s.th}, 2
    v_xor_b32 v{t+2}, {s.t0}, v{t+2}
    v_lshlrev_b32 v{t+2}, 4, v{t+2}
    v_lshl_add_u32 v{vXr}, v{t}, 7, v{t+2}
    v_add_u32 v{vXr}, 24576, v{vXr}
    v_xor_b32 v{vXr+1}, 32, v{vXr}
    v_xor_b32 v{vXr+2}, 64, v{vXr}
    v_xor_b32 v{vXr+3}, 0x60, v{vXr}''')
    for k in range(4): P(f'v_add_u32 v{vXr2+k}, {2*SLOT}, v{vXr+k}')
    P(f'''v_bfe_u32 v{t}, v0, 2, 2
    v_lshl_add_u32 v{t}, v{t+1}, 3, v{t}
    v_bfe_u32 v{t+2}, v0, 4, 1
    v_bfe_u32 v{t+3}, v0, 1, 1
    v_lshl_add_u32 v{t+3}, v{t+2}, 1, v{t+3}
    v_bfe_u32 v{t+4}, v0, 3, 1
    v_xor_b32 v{t+4}, {s.ch}, v{t+4}
    v_lshl_add_u32 v{t+3}, v{t+4}, 2, v{t+3}
    v_and_b32 v{t+4}, 1, v0
    v_lshlrev_b32 v{t+4}, 3, v{t+4}
    v_lshl_add_u32 v{t+3}, v{t+3}, 4, v{t+4}
    v_lshl_add_u32 v{t+3}, v{t}, 7, v{t+3}
    s_lshl_b32 {s.t0}, {s.th}, 12
    s_sub_u32 {s.t1}, 4096, {s.t0}
    v_add_u32 v{vA}, {s.t0}, v{t+3}
    v_add_u32 v{vA+1}, {s.t1}, v{t+3}
    v_add_u32 v{vB}, {BASE[vB]}, v{vA}
    v_add_u32 v{vB+1}, {BASE[vB]}, v{vA+1}
    v_add_u32 v{vC}, {BASE[vC]}, v{vA}
    v_add_u32 v{vC+1}, {BASE[vC]}, v{vA+1}''')
    P(f'''s_lshl_b32 {s.t0}, {s.ch}, 8
    s_add_u32 {s.t0}, {s.t0}, {LDS_AUG}
    s_lshl_b32 {s.t1}, {s.th}, 7
    s_add_u32 {s.t1}, {s.t1}, {s.t0}
    v_lshrrev_b32 v{t}, 4, v0
    v_lshlrev_b32 v{t}, 3, v{t}
    v_lshl_add_u32 v{t}, v{t+4}, 2, v{t}
    v_add_u32 v{t}, {s.t1}, v{t}
    v_lshlrev_b32 v{t+5}, 3, v0
    v_add_u32 v{t+5}, {LDS_AUG+4096}, v{t+5}
    v_and_b32 v{t+6}, 14, v0
    v_cmp_eq_u32 vcc, 0, v{t+6}
    v_bfe_u32 v{t+6}, v0, 2, 2
    v_and_b32 v{t+7}, 3, v0
    v_cndmask_b32 v{vAugW}, v{t+5}, v{t}, vcc
    v_lshlrev_b32 v{t+7}, 3, v{t+7}
    v_lshl_add_u32 v{t+7}, v{t+2}, 5, v{t+7}
    v_lshl_add_u32 v{t+7}, v{t+6}, 6, v{t+7}
    v_add_u32 v{vAugR}, {s.t0}, v{t+7}
    s_mov_b32 s82, 0x00020001
    s_mov_b32 s83, 0x00020001
    v_mov_b32 v{t}, 0x3f803f80
    v_cndmask_b32 v{vSel}, 0, v{t}, s[82:83]
    v_cndmask_b32 v{vSel+1}, 0, v{t}, s[82:83]
    v_cndmask_b32 v{vSel+2}, 0, v{t}, s[82:83]
    v_cndmask_b32 v{vSel+3}, 0, v{t}, s[82:83]''')
    P(f'''v_and_b32 v{t}, 31, v0
    v_lshlrev_b32 v{t}, 5, v{t}
    v_lshl_add_u32 v{vQo}, v{t+1}, 4, v{t}''')
    if not late:
        P.add(row_stats())
        P.add(dma1(2))
    P(f'''s_lshl_b32 {s.t0}, {s.rb}, 1
    s_add_u32 {s.t0}, {s.t0}, {s.th}
    s_lshl_b32 {s.t1}, {s.t0}, 11
    s_lshl_b32 {s.t2}, {s.qo0}, 1
    s_add_u32 {s.t2}, {s.t2}, {s.ch}
    s_lshl_b32 {s.t2}, {s.t2}, 17
    s_add_u32 {s.t1}, {s.t1}, {s.t2}
    s_cmp_lt_u32 {s.qo0}, 8
    s_cselect_b32 {s.fac}, {f32(0.25*LOG2E)}, 1.0
    s_mov_b32 {s.t5}, {s.qo0}
    s_add_u32 {s.qo0}, {s.t1}, {WS_QKV}
    s_add_u32 {s.qo1}, {s.qo0}, 0x10000
    s_add_u32 {s.qo2}, {s.qo0}, 0x40000
    s_add_u32 {s.qo3}, {s.qo0}, 0x50000
    s_add_u32 {s.qo4}, {s.qo0}, 0x80000
    s_add_u32 {s.qo5}, {s.qo0}, 0x90000
    s_mul_i32 {s.t1}, {s.t0}, {2*112*1024}
    s_lshl_b32 {s.t2}, {s.ch}, 11
    s_add_u32 {s.t1}, {s.t1}, {s.t2}
    s_add_u32 {s.t1}, {s.t1}, {WS_H}
    s_lshl_b32 {s.ho0}, {s.ho0}, 12
    s_add_u32 {s.ho0}, {s.ho0}, {s.t1}
    s_add_u32 {s.ho1}, {s.ho0}, {112*1024}
    s_add_u32 {s.t2}, {s.cg}, 12
    s_lshl_b32 {s.t2}, {s.t2}, 12
    s_add_u32 {s.ho2}, {s.t2}, {s.t1}
    s_add_u32 {s.ho3}, {s.ho2}, {112*1024}
    s_lshl_b32 {s.t0}, {s.t0}, 10
    s_add_u32 {s.t4}, {s.t0}, {WS_STATS}''')
    wsite(P, cfg, 1)
    stamp(P, 'su')
    P.add(c0)
    if late:
        hook(P, cfg, 2)
        c1 = dma1(1) + rows + looks(cfg, 1)
        n1 = cfg.get('n1', 99)
        k = next((j for j in range(len(c1)) if sum(1 for x in c1[:j] if x.cls == 'vmem') >= n1), len(c1))
        P.add(c1[:k]); cfg['_c1'] = c1[k:]
        hook(P, cfg, 3)

sStat = 's44'
def row_stats():
    P = Prog()
    R = vAcc2
    nonce(P, R + 40)
    E = R + 8
    for r in range(2):
        for k in range(4):
            P(f'v_lshlrev_b32 v{E+8*r+2*k}, 16, v{R+4*r+k}')
            P(f'v_and_b32 v{E+8*r+2*k+1}, 0xffff0000, v{R+4*r+k}')
    A = R + 24
    def reduce2():
        for m in ('quad_perm:[1,0,3,2] row_mask:0xf', 'quad_perm:[2,3,0,1] row_mask:0xf', 'row_half_mirror row_mask:0xf',
                  'row_mirror row_mask:0xf', 'row_bcast:15 row_mask:0xa', 'row_bcast:31 row_mask:0xc'):
            for r in range(2):
                P(f'v_add_f32_dpp v{A+r}, v{A+r}, v{A+r} {m} bank_mask:0xf')
    for r in range(2):
        P(f'v_add_f32 v{A+r}, v{E+8*r}, v{E+8*r+1}')
    for k in range(2, 8):
        for r in range(2):
            P(f'v_add_f32 v{A+r}, v{A+r}, v{E+8*r+k}')
    reduce2()
    for r in range(2):
        P(f'v_mul_f32 v{A+2+r}, {f32(1/512)}, v{A+r}')
    P(f'v_readlane_b32 {s.t0}, v{A+2}, 63\nv_readlane_b32 {s.t1}, v{A+3}, 63')
    G = R + 32
    for r in range(2):
        P(f'v_cvt_pk_bf16_f32 v{G+4*r}, -v{A+2+r}, -v{A+2+r}')
    P(f'v_cmp_ne_u32 vcc, 63, v0\nv_mov_b32 v{R+41}, 0x40000000')
    for k in range(8):
        for r in range(2):
            P(f'v_subrev_f32 v{E+8*r+k}, {(s.t0, s.t1)[r]}, v{E+8*r+k}')
    P(f'v_cndmask_b32 v{R+41}, 0, v{R+41}, vcc')
    for k in range(8):
        for r in range(2):
            P(f'v_mul_f32 v{A+r}, v{E+8*r}, v{E+8*r}' if k == 0 else f'v_fmac_f32 v{A+r}, v{E+8*r+k}, v{E+8*r+k}')
    reduce2()
    for r in range(2):
        P(f'v_mul_f32 v{A+r}, {f32(1/512)}, v{A+r}')
    for r in range(2):
        P(f'v_add_f32 v{A+r}, {f32(1e-5)}, v{A+r}')
    for r in range(2):
        P(f'v_rsq_f32 v{G+4*r+1}, v{A+r}')
    for r in range(2):
        P(f'v_mov_b32 v{G+4*r+2}, {s.n0}\nv_mov_b32 v{G+4*r+3}, {s.n1}')
    for r in range(2):
        P(f'buffer_store_dwordx4 {vr(G+4*r, 4)}, v{R+41}, {sWS}, {sStat} offen offset:{16*r} sc1', 'stat')
    return P.L

def stats_load(tag='g'):
    t = vT + 7
    return mk([f'v_and_b32 v{t}, 0x1f0, v{vL16}']) + \
        mk([f'buffer_load_dwordx4 {vr(vSt+4*k, 4)}, v{t}, {sWS}, {s.t4} offen offset:{512*k} sc1' for k in range(2)], tag)

def stats_check(P, cold):
    P('L_stat_check:')
    P(f'''v_cmp_eq_u32 s[82:83], {s.n0}, v{vSt+2}
    v_cmp_eq_u32 s[84:85], {s.n1}, v{vSt+3}
    v_cmp_eq_u32 s[86:87], {s.n0}, v{vSt+6}
    v_cmp_eq_u32 vcc, {s.n1}, v{vSt+7}
    s_and_b64 s[82:83], s[82:83], s[84:85]
    s_and_b64 s[86:87], s[86:87], vcc
    s_and_b64 s[82:83], s[82:83], s[86:87]
    s_cmp_eq_u64 s[82:83], -1
    s_cbranch_scc0 L_stat_retry
    L_stat_ok:''')
    cold.add([forget()])
    cold(f'''L_stat_retry:
    s_sub_u32 {s.spin}, {s.spin}, 1
    s_cmp_le_i32 {s.spin}, 0
    s_cbranch_scc1 L_stat_ok''')
    cold.add(stats_load())
    cold('s_waitcnt vmcnt(0)\ns_branch L_stat_check')

def phase1(P, cold, cfg):
    P(f's_mov_b32 {s.spin}, 0x20000')
    if not cfg.get('pro'): stamp(P, 1)
    else: stamp(P, 6); stamp_end(P); P('s_endpgm')
    wsite(P, cfg, 2)
    stamp(P, 'pro')
    P.waitvm('c0')
    P('s_barrier')
    stamp(P, 'c0')
    if not cfg.get('pro'): stamp(P, 2)
    x, w = rd1(0, 0)
    P.add(mk(x) + mk(w))
    dq = Pool(cfg.get('maxvm', 1), period=cfg.get('per1', 0), burst=cfg.get('burst1', 1))
    late = cfg.get('late', 1)
    dq.put(cfg.get('_c1', []))
    if late: dq.put(dma1(2))
    dq.put(looks(cfg, 2))
    dq.put(dma1(3))
    dq.put(looks(cfg, 3))
    bg = Pool(); st_bg = Pool()
    for i in range(8):
        for st in range(4):
            stamp(P, f'p1{i}s{st}')
            if st == 3:
                need = (f'c{i+1}',) if i < 7 else ('d0', 'd1', 'd2', 'd3')
                n = max((j + 1 for j, x in enumerate(dq.q) if x.tag in need), default=0)
                if cfg.get('v') and dq.q: print('p1 queue', i, len(dq.q), 'forced', n)
                P.add(dq.q[:n]); del dq.q[:n]
                P.add(bg.rest())
                wsite(P, cfg, 10 + i)
                P.waitvm(f'c{i+1}' if i < 7 else ('d0', 'd1', 'd2', 'd3'))
                P.waitlg()
                stamp(P, f'p1{i}w')
                if not cfg.get('nobar'): P('s_barrier')
                stamp(P, f'p1{i}b')
                for _ in range(cfg.get('idle', 0)): P('s_nop 15')
                if cfg.get('nodma'): pass
                elif i < 4: dq.put(dma1(i + 4)); dq.put(looks(cfg, i + 4))
                elif i < 7 or not cfg.get('new', 1): dq.put(dma2(2*(i-4))); dq.put(dma2(2*(i-4) + 1))
            if i == 4 and st == 0 and cfg.get('mid'): stamp(P, 3)
            if st == 0: stamp(P, f'p1_{i}')
            first = (i == 0 and st == 0)
            mfs = []; fixed = {}
            nxt = (i, st + 1) if st < 3 else (i + 1, 0)
            if nxt[0] < 8:
                x, w = rd1(*nxt); rd = [x, w[0], w[1], w[2]]
                if cfg.get('nord'): rd = []
                if cfg.get('nox'): rd = rd[1:]
                if cfg.get('now'): rd = rd[:1]
            else:
                w = rd2(0, 0)
                ag = [f'ds_read_b64_tr_b16 {vr(vAg+2*u, 2)}, v{vAugR} offset:{u*512}' for u in range(3)]
                rd = [ag[:2], ag[2:], w[0], w[1]]
            for u in range(3):
                for t in range(2):
                    if rd: fixed[len(mfs)] = rd.pop(0)
                    mfs.append(mf32(acc1(u, t), vr(wf(st & 1, u), 4), ar(xf(i, st, t), 4), first))
                if st < 2 and not cfg.get('nocs'):
                    c = vr(vCs + 4*u, 4)
                    mfs.append(f'v_mfma_f32_16x16x32_bf16 {c}, {vr(wf(st & 1, u), 4)}, {vr(vSel, 4)}, {"0" if first else c}')
            if late and (i, st) == (cfg.get('sti', 1), 0): st_bg.put(row_stats())
            if (i, st) == (cfg.get('prei', 6), cfg.get('prest', 0)) and cfg.get('_pre'):
                assert not any(x.tag and x.tag[0] == 'c' for x in dq.q)
                st_bg.put(cfg['_pre']())
            if (i, st) == (7, 0) and cfg.get('_pre7'):
                assert not st_bg.q
                dq.put(cfg['_pre7']())
            if st == 3 or (i, st) == (0, 0):
                T = Prog(); hook(T, cfg, 10 + i + (st == 3)); dq.put(T.L)
            if st == 1 and i >= 4:
                assert not any(x.tag and x.tag[0] == 'c' for x in dq.q) or i == 4 or not cfg.get('doses')
                T = Prog(); hook(T, cfg, 20 + i); dq.put(T.L)
            if (i, st) == (cfg.get('stl', 5), 0):
                assert not st_bg.q
                bg.put(stats_load())
            if i == 7 and st == 0:
                stats_check(P, cold)
                hm = vT + 7
                bg.put([f'v_cmp_gt_u32 vcc, 32, v0'] +
                       [f'v_mul_f32 v{vScq+t}, {s.fac}, v{vSt+4*t+1}' for t in range(2)] +
                       [f'v_cndmask_b32 v{vXa+2*t+k}, 0, v{vSt+4*t}, vcc' for t in range(2) for k in range(2)])
            timed = {}
            if i == 7 and st == 1: timed = {5: [(bg, cs_split(0, 0))], 8: [(bg, cs_split(1, 0))]}
            if i == 7 and st == 2: timed = {2: [(bg, cs_split(2, 0))]}
            weave(P, mfs, fixed, (dq, bg, st_bg), slack=4, timed=timed)
    stamp(P, 'p1c')
    mfs = [f'v_mfma_f32_32x32x8_bf16 {vr(acc1(u, t), 16)}, {vr(vAg+2*u, 2)}, {vr(vXa+2*t, 2)}, {vr(acc1(u, t), 16)}'
           for u in range(3) for t in range(2)]
    weave(P, mfs, {}, (dq, bg), slack=4)
    P.add(dq.rest()); P.add(bg.rest())
    assert not st_bg.q

def phase2(P, isb, cfg, ext=None):
    bg = Pool()
    new = cfg.get('new', 1)
    if not isb:
        bg.put(epi_qkv(0, vL16, lambda t: vScq + t))
        eh = epi_h(lambda t: acc1(1, t), lambda t: acc1(2, t), lambda t: S[f'ho{t}'], 'st1h' if new else 'st1')
        if new: ext.eh = eh
        else: bg.put(eh)
    else:
        for u in range(3):
            bg.put(f's_cmp_ge_u32 {s.t5}, {16-u}')
            bg.put(f's_cselect_b64 vcc, -1, 0')
            bg.put(f'v_cndmask_b32 v{vXd+u}, v{vL16}, v{vQo}, vcc')
        for u in range(3):
            bg.put(epi_qkv(u, vXd + u, lambda t: vSt + 4*t + 1))
    lo = Pool()
    for i in range(8):
        for st in range(4):
            if st == 3 and i in (3, 5, 7) + tuple(cfg.get('bars', ())):
                P.add(lo.rest())
                if i == 3: P.waitvm(('d4', 'd5') if new else ('d4', 'd5', 'd6', 'd7'))
                if i == 5: ext.need(P, ('d6', 'd7')); P.waitvm(('d6', 'd7'))
                P.waitlg()
                P('s_barrier')
            if st == 0: stamp(P, f'p2_{i}')
            if ext: ext.at(P, i, st, bg)
            first = (i == 0 and st == 0)
            mfs = []; fixed = {}
            nxt = (i, st + 1) if st < 3 else (i + 1, 0)
            if nxt[0] < 8:
                rd = rd2(*nxt)
            else:
                rd = [[f'ds_read_b64_tr_b16 {vr(vAg+2*u, 2)}, v{vAugR} offset:{2048 + u*512}' for u in range(2)]]
            for u in range(2):
                for t in range(2):
                    if rd: fixed[len(mfs)] = rd.pop(0)
                    mfs.append(mf32(acc2(u, t), vr(wf(st & 1, u), 4), ar(xf(i, st, t), 4), first))
                if st < 2 and not cfg.get('nocs'):
                    c = vr(vCs + 4*u, 4)
                    mfs.append(f'v_mfma_f32_16x16x32_bf16 {c}, {vr(wf(st & 1, u), 4)}, {vr(vSel, 4)}, {"0" if first else c}')
            timed = {}
            if i == 7 and st == 1: timed = {5: [(lo, cs_split(0, 2048))]}
            if i == 7 and st == 2: timed = {2: [(lo, cs_split(1, 2048))]}
            slack = cfg.get('slb', 4) if isb and bg.q else 4
            weave(P, mfs, fixed, (lo,) + (ext.pools(bg) if ext else (bg,)), slack=slack, timed=timed)
    assert not bg.q
    mfs = [f'v_mfma_f32_32x32x8_bf16 {vr(acc2(u, t), 16)}, {vr(vAg+2*u, 2)}, {vr(vXa+2*t, 2)}, {vr(acc2(u, t), 16)}'
           for t in range(2) for u in range(2)]
    weave(P, mfs, {}, ext.pools(bg) if ext else ())
    if ext: ext.done(P)

def epilogue2(P):
    P.add(epi_h(lambda t: acc2(0, t), lambda t: acc2(1, t), lambda t: S[f'ho{2+t}'], 'st2'))

def g1_body(P, cold, cfg, mkext=None):
    prologue(P, cfg)
    phase1(P, cold, cfg)
    box0, boxa = {}, {}
    stamp(P, 'p1')
    if not cfg.get('pro'): stamp(P, 4 if cfg.get('mid') else 3)
    P(f's_cmp_eq_u32 {s.isb}, 1')
    P.add([save(box0)])
    P('s_cbranch_scc1 L_p2b')
    phase2(P, False, cfg, mkext and mkext('a'))
    P.add([save(boxa)])
    P('s_branch L_p2done')
    P.add([restore(box0)])
    P('L_p2b:')
    phase2(P, True, cfg, mkext and mkext('b'))
    P.add([join(boxa)])
    P('L_p2done:')
    if not cfg.get('pro'): stamp(P, 5 if cfg.get('mid') else 4)
    stamp(P, 'p2')
    if mkext: return
    epilogue2(P)
    if cfg.get('mid'): stamp(P, 6)
```

```python
import sys, os, re
sys.path.insert(0, os.path.dirname(os.path.abspath(__file__)))
from common import *
import g1, attn
from g1 import vL16, vT
NAME = 'recurrent_scan__sliding_block__glu_gated_bilinear__prompt'

LDS_V = 65536; LDS_K = 81920; LDS_FB = 98304; LDS_EX = 65536
sFl, sWk = 's44', 's45'; sPm = 's[46:47]'
sQo = 's51'; sKo = ('s52',); sVo = 's53'; sOo = 's56'; sNb = 's57'
sHe = ('s58', 's54'); sT = 's62'; sXo = 's63'; sSt = 's64'; sHl = ('s65', 's66'); sOi = 's78'; sFA = s.mx
sU = ('s82', 's83', 's84', 's85', 's86', 's87')
sN = 's[60:61]'
vWdD = 13; vRA = 18; vFl = 17; vPq, vPh, vPo = 22, 23, 24; vLn = 25
vFd = 188; vPd = 190; vBa = 26; vBd = 28
A = attn.R
A.D0, A.D1, A.A0, A.A1 = 32, 48, 64, 80
A.N = 64; A.S = 96; A.O = 128; A.P = 160; A.PA = 168; A.VA = 160; A.J = 176; A.M = 178; A.PM = 180
A.LDS_V = LDS_V
vKa = 170
A.sNb = sNb; A.sKo = sKo; A.sQo = sQo; A.sVo = sVo; A.sOo = sOo
aW = 0
A.aQ = 128
A.kmap = {b: (232 if b == 0 else 236 if b == 9 else 132 + 4*b) for b in range(10)}
A.vmap = {b: (240 if b == 0 else 248 if b == 9 else 160 + 8*b) for b in range(10)}
def hreg(u):
    if u < 2: return ('a', 96 + 16*u)
    if u < 6: return ('v', 192 + 16*(u - 2))
    e = (u - 6) >> 1
    return hreg(e) if u & 1 else ('a', aW + 16*e)
FT = (('v', 32), ('v', 48), ('v', 168), ('a', 240))
def rg(kind, b, n): return vr(b, n) if kind == 'v' else ar(b, n)
def slot(u):
    if u < 8: return (0, SA[u & 3])
    if u < 12: return (1, SB[u - 8])
    return (0, SA[u - 12])
SA = (32768, 0, 16384, 49152)
SB = (0, 32768, 49152, 16384)
vF = 32; vWF = 96; vE = 112; vXF = 128; vX = 2; vRs = 10; vOo = 11; vXo = 12; vAd = 144; vSx = 160; aO = 128

def wread(u, ks, kind, base):
    reg, off = slot(u)
    return [[f'ds_read_b64_tr_b16 {rg(kind, base + 4*c + 2*j, 2)}, v{vRA + 2*reg + c} offset:{off + 2048*ks + 1024*j}' for j in range(2)] for c in range(2)]
def stage(u):
    return [waitvm(f'w{u}')] + mk([wread(u, ks, 'a', aW + 16*u + 8*ks) for ks in range(2)], f'r{u}')
def hload(u):
    kind, b = hreg(u)
    so = sHe if u < 6 else sHl
    r = mk([f'buffer_load_dwordx4 {rg(kind, b + 8*ks + 4*t, 4)}, v{vL16}, {sWS}, {so[t]} offen offset:{2048*(u & 1) + 1024*ks} sc1'
            for ks in range(2) for t in range(2)], f'h{u}')
    if u & 1: r += mk([f's_add_u32 {so[t]}, {so[t]}, 4096' for t in range(2)])
    return r
def hload_t(u, t):
    kind, b = hreg(u)
    r = mk([f'buffer_load_dwordx4 {rg(kind, b + 8*ks + 4*t, 4)}, v{vL16}, {sWS}, {sHl[t]} offen offset:{2048*(u & 1) + 1024*ks} sc1'
            for ks in range(2)], f'h{100*(t + 1) + u}')
    if u & 1: r += mk(f's_add_u32 {sHl[t]}, {sHl[t]}, 4096')
    return r
def publish(base, tag):
    return mk(f's_add_u32 {sFl}, {sFl}, 0x20000') + [waitvm(tag)] + mk(f'buffer_store_dwordx2 {vr(vFd, 2)}, v{vFl}, {sWS}, {sFl} offen sc1')
def poll(reg, base):
    return mk(f'buffer_load_dwordx2 {vr(vPd, 2)}, v{reg}, {sWS}, 0 offen sc1')
def check(cold, name, reg, base):
    cold.add([forget()])
    cold(f'''L_{name}_retry:
    s_sub_u32 {s.spin}, {s.spin}, 1
    s_cmp_le_i32 {s.spin}, 0
    s_cbranch_scc1 L_{name}_ok''')
    cold.add(poll(reg, base))
    cold(f's_waitcnt vmcnt(0)\ns_branch L_{name}_chk')
    r = mk(f'''L_{name}_chk:
    v_cmp_ne_u64 {sPm}, {sN}, {vr(vPd, 2)}
    s_cmp_lg_u64 {sPm}, 0
    s_cbranch_scc1 L_{name}_retry
    L_{name}_ok:''' + (f'\nv_writelane_b32 v25, {s.spin}, {"qeho".index(name[0])}' if STAMPS[0] == True else ''))
    for x in r[:-1]: x.meta['glue'] = True
    return r

vPd2 = 186
def poll2(reg): return mk(f'buffer_load_dwordx2 {vr(vPd2, 2)}, v{reg}, {sWS}, 0 offen sc1')
def check2(cold, name, reg):
    box = {}
    cmp = lambda r: f'v_cmp_ne_u64 {sPm}, {sN}, {vr(r, 2)}\ns_cmp_eq_u64 {sPm}, 0\ns_cbranch_scc1 L_{name}_ok'
    cold.add([restore(box)])
    cold(f'L_{name}_retry:')
    cold.add(poll(reg, 0)); cold(cmp(vPd2))
    cold(f'''L_{name}_again:
    s_sub_u32 {s.spin}, {s.spin}, 1
    s_cmp_le_i32 {s.spin}, 0
    s_cbranch_scc1 L_{name}_ok''')
    cold.add(poll2(reg)); cold(cmp(vPd))
    cold.add(poll(reg, 0)); cold(cmp(vPd2))
    cold(f's_branch L_{name}_again')
    r = mk(f'v_cmp_ne_u64 {sPm}, {sN}, {vr(vPd, 2)}\ns_cmp_lg_u64 {sPm}, 0') + [save(box)]
    r += mk(f's_cbranch_scc1 L_{name}_retry\nL_{name}_ok:' + (f'\nv_writelane_b32 v25, {s.spin}, {"qeho".index(name[0])}' if STAMPS[0] == True else ''))
    for x in r[:-1]: x.meta['glue'] = True
    return r

def warm():
    return mk(f'''s_lshr_b32 {sU[0]}, s2, 3
    s_lshl2_add_u32 {sU[0]}, {sU[0]}, {s.w}
    s_mul_i32 {sU[1]}, {sU[0]}, 14336
    s_add_u32 {sU[2]}, {sU[1]}, 8192
    s_lshl_b32 {sU[0]}, {sU[0]}, 12
    v_lshlrev_b32 v{vLn}, 7, v0
    v_lshlrev_b32 v35, 6, v0
    buffer_load_dword v2, v{vLn}, {sWD}, {sU[1]} offen
    buffer_load_dword v3, v{vLn}, {sWD}, {sU[2]} offen
    buffer_load_dword v4, v35, {sWO}, {sU[0]} offen''')

def warm3():
    return mk(f'''s_lshr_b32 {sT}, s2, 3
    s_lshl2_add_u32 {sT}, {sT}, {s.w}
    v_mov_b32 v35, 0x40000000
    v_mad_u32_u24 v2, {sT}, 14, v0
    v_cmp_gt_u32 vcc, 14, v0
    v_lshlrev_b32 v2, 10, v2
    v_lshl_add_u32 v3, {sT}, 2, v0
    v_cndmask_b32 v2, v35, v2, vcc
    v_cmp_gt_u32 vcc, 4, v0
    v_lshlrev_b32 v3, 10, v3
    buffer_load_dword v2, v2, {sWD}, 0 offen offset:384
    v_cndmask_b32 v3, v35, v3, vcc
    buffer_load_dword v3, v3, {sWO}, 0 offen offset:384''')

def share(kind):
    g = f's_lshr_b32 {sT}, s2, 3\ns_lshl2_add_u32 {sT}, {sT}, {s.w}\n'
    c = f's_bfe_u32 {sT}, s2, 0x30003\n'
    if kind == 0:
        r = g + f'''s_mul_i32 {sT}, {sT}, 6144
        v_mul_u32_u24 v35, 96, v0
        buffer_load_dword v35, v35, {sWD}, {sT} offen'''
    elif kind == 1:
        r = g + f'''s_lshl_b32 {sT}, {sT}, 13
        s_add_u32 {sT}, {sT}, {768*1024}
        v_lshlrev_b32 v10, 7, v0
        buffer_load_dword v10, v10, {sWD}, {sT} offen'''
    elif kind == 2:
        r = g + f'''s_lshl_b32 {sT}, {sT}, 12
        v_lshlrev_b32 v11, 6, v0
        buffer_load_dword v11, v11, {sWO}, {sT} offen'''
    elif kind in (3, 4):
        n, so = ((48, sHe), (64, sHl))[kind - 3]
        r = c + f'''s_mul_i32 {sT}, {sT}, {32*n}
        v_and_b32 v12, 31, v0
        v_mad_u32_u24 v12, v12, {n}, {sT}
        v_lshrrev_b32 v10, 5, v0
        v_mul_u32_u24 v10, {112*1024}, v10
        s_min_u32 {sT}, {so[0]}, {so[1]}
        v_add_u32 v12, v12, v10
        buffer_load_dword v12, v12, {sWS}, {sT} offen sc1'''
    elif kind == 5:
        r = c + f'''s_lshl_b32 {sT}, {sT}, 11
        s_add_u32 {sT}, {sT}, {sOi}
        v_lshlrev_b32 v11, 5, v0
        buffer_load_dword v11, v11, {sWS}, {sT} offen sc1'''
    r = mk(r)
    for x in r[:-2]: x.meta['glue'] = True
    return r

def dose(j, wo=True):
    if j == 0:
        r = f'''s_lshr_b32 s57, s2, 3
        s_lshl2_add_u32 s57, s57, {s.w}
        s_mul_i32 s58, s57, 1792
        s_lshl_b32 s57, s57, 9
        v_mad_u32_u24 v18, v0, 28, s58
        v_lshl_add_u32 v19, v0, 3, s57
        s_and_b32 s56, s2, 7
        '''
    else:
        r = 's_add_u32 s56, s56, 1\ns_and_b32 s56, s56, 7\n'
    r = mk(r + f's_mul_i32 s57, s56, 229376\ns_lshl_b32 s58, s56, 16\nbuffer_load_dword v35, v18, {sWD}, s57 offen')
    if wo: r += mk(f'buffer_load_dword v35, v19, {sWO}, s58 offen')
    for x in r:
        if x.cls == 'vmem': x.dst = []
    return r

vPf = 140
def hook(P, pos, cfg):
    if cfg.get('pf') and pos == 0:
        t = vPf
        P(f'''s_getpc_b64 s[84:85]
        L_pc:
        s_lshr_b32 s82, s2, 3
        v_lshrrev_b32 v{t}, 6, v0
        v_and_b32 v{t+1}, 3, v0
        v_lshl_add_u32 v{t}, v{t}, 2, v{t+1}
        v_lshl_add_u32 v{t}, s82, 4, v{t}
        v_lshlrev_b32 v{t}, 7, v{t}
        v_min_u32 v{t}, L_last-L_pc-4, v{t}
        v_mov_b32 v{t+1}, s85
        v_add_co_u32 v{t}, vcc, s84, v{t}
        v_addc_co_u32 v{t+1}, vcc, 0, v{t+1}, vcc
        global_load_dword v{t}, v[{t}:{t+1}], off''')
    if pos in cfg.get('doses', []):
        for _ in range(cfg['doses'].count(pos)):
            P.add(dose(cfg.setdefault('_nd', 0))); cfg['_nd'] += 1
    todo = [(srd, n) for key, srd, n in (('mx', sX, 16), ('mq', sQ, 12), ('mg', sG, 14), ('mg', g1.sU, 14), ('md', sWD, 14), ('md', sWO, 4))
            if cfg.get(key) == pos and pos]
    if not todo: return
    t = vPf + 2
    ns = sorted(set(n for _, n in todo))
    r = f's_lshl2_add_u32 s82, s2, {s.w}\nv_mov_b32 v{t+1}, 0x40000000\n'
    for k, n in enumerate(ns): r += f'v_cmp_gt_u32 s[{84+2*k}:{85+2*k}], {n}, v0\nv_mad_u32_u24 v{t+2+k}, s82, {n}, v0\nv_lshlrev_b32 v{t+2+k}, 7, v{t+2+k}\n'
    for k, n in enumerate(ns): r += f'v_cndmask_b32 v{t+2+k}, v{t+1}, v{t+2+k}, s[{84+2*k}:{85+2*k}]\n'
    assert len(ns) <= 2
    r = mk(r)
    for x in r[:-1]: x.meta['glue'] = True
    P.add(r)
    for j, (srd, n) in enumerate(todo):
        k = ns.index(n)
        d = t + 4 + cfg.setdefault('_npf', 0); cfg['_npf'] += 1
        P(f'buffer_load_dword v{d}, v{t+2+k}, {srd}, 0 offen')

def setup_d(cx=0):
    hi, lo, a, b, c, d = sU
    t = vT
    r = f'''s_and_b32 {hi}, s2, 7
    s_lshr_b32 {lo}, s2, 6
    s_lshl2_add_u32 {hi}, {hi}, {lo}
    s_bfe_u32 {lo}, s2, 0x30003
    v_cmp_eq_u32 {sPm}, 0, v0
    v_mov_b32 v{vFl}, 0x40000000
    s_lshl2_add_u32 {sFl}, s2, {s.w}
    s_lshl_b32 {sFl}, {sFl}, 7
    v_cndmask_b32 v{vFl}, v{vFl}, 0, {sPm}'''
    r2 = f'''s_mul_i32 {sWk}, {s.w}, {12*16384}
    s_bfe_u32 {sT}, s2, 0x30003
    s_lshl_b32 {sT}, {sT}, 7
    v_lshrrev_b32 v{vWdD+1}, 3, v0
    v_and_b32 v{vWdD+2}, 7, v0
    v_bfe_u32 v{vWdD+3}, v0, 4, 1
    v_lshlrev_b32 v{vWdD+3}, 2, v{vWdD+3}
    v_xor_b32 v{vWdD+2}, v{vWdD+2}, v{vWdD+3}
    v_lshlrev_b32 v{vWdD+2}, 4, v{vWdD+2}
    v_lshl_add_u32 v{vWdD+2}, v{vWdD+1}, 10, v{vWdD+2}
    v_add_u32 v{vWdD}, {sT}, v{vWdD+2}
    v_add_u32 v{vWdD+1}, 7168, v{vWdD}
    v_add_u32 v{vWdD+2}, {2*7168}, v{vWdD}
    v_add_u32 v{vWdD+3}, {3*7168}, v{vWdD}'''
    ra = f'''v_bfe_u32 v{vRA+1}, v0, 4, 1
    v_bfe_u32 v{vRA}, v0, 1, 1
    v_lshl_add_u32 v{vRA}, v{vRA+1}, 1, v{vRA}
    v_bfe_u32 v{vRA+1}, v0, 3, 1
    v_xor_b32 v{vRA+1}, {s.ch}, v{vRA+1}
    v_lshl_add_u32 v{vRA}, v{vRA+1}, 2, v{vRA}
    v_and_b32 v{vRA+1}, 1, v0
    v_lshlrev_b32 v{vRA+1}, 3, v{vRA+1}
    v_lshl_add_u32 v{vRA}, v{vRA}, 4, v{vRA+1}
    v_bfe_u32 v{vRA+1}, v0, 2, 2
    v_lshl_add_u32 v{vRA}, v{vRA+1}, 7, v{vRA}
    v_lshrrev_b32 v{vRA+1}, 5, v0
    v_lshl_add_u32 v{vRA}, v{vRA+1}, 9, v{vRA}
    v_add_u32 v{vRA}, {sFA}, v{vRA}
    v_xor_b32 v{vRA+1}, 64, v{vRA}'''
    r3 = f'''v_add_u32 v{vRA+2}, {LDS_FB}, v{vRA}
    v_add_u32 v{vRA+3}, {LDS_FB}, v{vRA+1}
    s_lshl_b32 {a}, {s.w}, 1
    s_sub_u32 {sNb}, 8, {a}
    s_lshl3_add_u32 {a}, {lo}, {a}
    s_lshl_b32 {sOo}, {a}, 5
    s_add_u32 {sOo}, {sOo}, {hi}
    s_lshl_b32 {sOo}, {sOo}, 10
    s_add_u32 {sOo}, {sOo}, {WS_O}
    s_lshl_b32 {sVo}, {hi}, 6
    s_add_u32 {sQo}, {sVo}, {a}
    s_lshl_b32 {sQo}, {sQo}, 10
    s_add_u32 {sQo}, {sQo}, {WS_QKV}
    s_lshl1_add_u32 {a}, {lo}, {s.w}
    s_sub_u32 {a}, {a}, 2
    s_max_i32 {a}, {a}, 0
    s_lshl2_add_u32 {sVo}, {a}, {sVo}
    s_lshl_b32 {sVo}, {sVo}, 10
    s_add_u32 {sKo[0]}, {sVo}, {WS_QKV + 32*65536}
    s_add_u32 {sVo}, {sVo}, {WS_QKV + 64*65536}
    s_lshl1_add_u32 {a}, {hi}, {s.th}
    s_xor_b32 {b}, {a}, 1
    s_mul_i32 {sHe[0]}, {a}, {112*1024}
    s_mul_i32 {sHe[1]}, {b}, {112*1024}
    s_mul_i32 {b}, {s.w}, {12*1024}
    s_add_u32 {b}, {b}, {WS_H}
    s_add_u32 {sHe[0]}, {sHe[0]}, {b}
    s_add_u32 {sHe[1]}, {sHe[1]}, {b}
    s_lshl_b32 {b}, {s.w}, 12
    s_add_u32 {b}, {b}, {48*1024}
    s_add_u32 {sHl[0]}, {sHe[0]}, {b}
    s_add_u32 {sHl[1]}, {sHe[1]}, {b}
    s_lshl1_add_u32 {sOi}, {a}, {s.ch}
    s_lshl_b32 {sOi}, {sOi}, 14
    s_add_u32 {sOi}, {sOi}, {WS_O}
    s_lshl_b32 {sSt}, {a}, 9
    s_add_u32 {sSt}, {sSt}, {WS_STATS}
    s_lshl_b32 {sXo}, {a}, 15
    s_xor_b32 {a}, {lo}, {cx}
    s_lshl1_add_u32 {a}, {a}, {s.ch}
    s_lshl_b32 {a}, {a}, 6
    s_add_u32 {sXo}, {sXo}, {a}'''
    return mk(r, 'sfl'), mk(r2, 'sw') + mk(ra, 'sra'), mk(r3, 'srest')

def setup_polls(merge):
    hi, lo, a, b, c, d = sU
    x, y = vPd, vPd + 1
    r = f'''s_lshr_b32 {a}, {hi}, 2
    s_mul_i32 {b}, {a}, 43
    s_lshr_b32 {b}, {b}, 7
    s_mul_i32 {c}, {b}, 190
    s_lshl_b32 {d}, {a}, 6
    s_sub_u32 {c}, {d}, {c}
    v_mov_b32 v{vPq}, {c}
    s_add_u32 {b}, {a}, 8
    s_mul_i32 {b}, {b}, 43
    s_lshr_b32 {b}, {b}, 7
    s_mul_i32 {c}, {b}, 190
    s_add_u32 {d}, {d}, 512
    s_sub_u32 {c}, {d}, {c}
    s_lshl1_add_u32 {b}, {b}, 184
    s_cmp_lt_u32 {a}, 4
    s_cselect_b32 {c}, {c}, {b}
    v_mov_b32 v{x}, {c}
    s_add_u32 {b}, {a}, 16
    s_mul_i32 {b}, {b}, 43
    s_lshr_b32 {b}, {b}, 7
    s_lshl1_add_u32 {b}, {b}, 184
    v_mov_b32 v{y}, {b}
    v_bfe_u32 v{vPo}, v0, 3, 2
    v_cmp_eq_u32 {sPm}, 1, v{vPo}
    s_lshl_b32 {a}, {lo}, 1
    s_sub_u32 {a}, {a}, 2
    v_cndmask_b32 v{vPq}, v{vPq}, v{x}, {sPm}
    v_cmp_eq_u32 {sPm}, 2, v{vPo}
    v_bfe_u32 v{x}, v0, 1, 2
    v_add_u32 v{vPh}, {a}, v{x}
    v_cndmask_b32 v{vPq}, v{vPq}, v{y}, {sPm}
    v_max_i32 v{vPh}, 0, v{vPh}
    v_lshrrev_b32 v{y}, 3, v{vPh}
    v_add_u32 v{vPq}, v{vPq}, v{y}
    v_and_b32 v{vPh}, 7, v{vPh}
    v_lshl_add_u32 v{vPq}, v{vPh}, 3, v{vPq}
    v_and_b32 v{y}, 1, v0
    v_lshl_add_u32 v{vPq}, v{vPq}, 2, v{y}
    s_and_b32 {a}, {hi}, 2
    v_add_u32 v{vPq}, {a}, v{vPq}
    s_lshr_b32 {a}, {hi}, 4
    s_bfe_u32 {b}, {hi}, 0x30001
    s_lshl3_add_u32 {a}, {b}, {a}
    s_lshl1_add_u32 {a}, {s.w}, {a}
    s_and_b32 {b}, {hi}, 1
    s_lshl2_add_u32 {a}, {a}, {b}
    v_lshlrev_b32 v{x}, 8, v{x}
    v_lshl_add_u32 v{x}, v{y}, 1, v{x}
    v_add_u32 v{vPh}, {a}, v{x}
    v_cmp_eq_u32 {sPm}, {3 if merge else 4}, v{vPo}
    v_bfe_u32 v{x}, v0, 2, 2
    v_and_b32 v{y}, 3, v0
    v_cndmask_b32 v{vPq}, v{vPq}, v{vPh}, {sPm}
    s_mov_b32 {c}, {WS_FLAGQ}
    s_mov_b32 {d}, {WS_FLAGH if merge else WS_FLAGE}
    v_lshl_add_u32 v{vPq}, v{vPq}, 7, {c}
    v_lshl_add_u32 v{vPh}, v{vPh}, 7, {d}
    v_lshl_add_u32 v{x}, v{y}, 6, v{x}
    s_lshr_b32 {a}, {hi}, 2
    s_lshl_b32 {a}, {a}, 1
    s_add_u32 {a}, {a}, {s.ch}
    s_lshl_b32 {a}, {a}, 4
    s_and_b32 {b}, {hi}, 3
    s_add_u32 {a}, {a}, {b}
    s_add_u32 {a}, {a}, {WS_FLAGO // 128}
    v_lshl_add_u32 v{x}, v{x}, 2, {a}
    v_lshlrev_b32 v{vPo}, 7, v{x}'''
    return mk(r, 'spoll')

def setup_att():
    a = sU[2]
    x, y, z = A.PM, A.PM + 1, A.PM + 2
    r = f'''v_lshrrev_b32 v{x}, 5, v0
    v_and_b32 v{y}, 15, v0
    v_lshlrev_b32 v{y}, 3, v{y}
    v_lshl_add_u32 v{y}, v{x}, 7, v{y}
    s_lshl_b32 {a}, {s.w}, 11
    s_add_u32 {a}, {a}, {LDS_V}
    v_add_u32 v{z}, {a}, v{y}
    v_add_u32 v{vKa}, {a}, v{vL16}
    v_add_u32 v{vKa}, {LDS_K - LDS_V}, v{vKa}
    s_add_u32 {a}, {sFA}, {LDS_FB + SB[3]}
    v_xor_b32 v{y}, 128, v{y}
    v_add_u32 v{y}, {a}, v{y}
    v_add_u32 v{A.PM+3}, {a}, v{vL16}
    v_and_b32 v{A.J}, 16, v0
    v_cmp_eq_u32 s[86:87], 0, v{A.J}
    v_mov_b32 v{A.J+1}, 1024
    v_and_b32 v{A.J}, 31, v0
    v_cndmask_b32 v{A.VA}, v{y}, v{z}, s[86:87]
    v_cndmask_b32 v{z}, 0, v{A.J+1}, s[86:87]
    v_lshlrev_b32 v{x}, 2, v{x}
    v_sub_u32 v{A.J}, v{A.J}, v{x}
    v_mov_b32 v{A.J+1}, 0xffff
    v_mov_b32 v{A.M}, {attn.NINF}
    v_mov_b32 v{A.M+1}, {attn.NINF}'''.split('\n')
    r += [f'v_add_u32 v{A.VA+b}, v{A.VA+b-1}, v{z}' for b in range(1, 10)]
    r += [f'v_mov_b32 v{A.PM+4+k}, 0x3f803f80' for k in range(4)]
    r += f'''v_and_b32 v{vRs}, 31, v0
    v_lshrrev_b32 v{vXo}, 5, v0
    v_lshlrev_b32 v{vOo}, 10, v{vRs}
    v_lshlrev_b32 v{vRs}, 4, v{vRs}
    v_lshl_add_u32 v{vOo}, v{vXo}, 3, v{vOo}
    v_lshlrev_b32 v{vXo}, 3, v{vXo}
    v_add_u32 v{vOo}, v{vOo}, v{vXo}
    v_sub_u32 v{vXo}, v{vOo}, v{vXo}'''.split('\n')
    return mk(r)
def xload():
    r = mk(f'buffer_load_dword v{vRs}, v{vRs}, {sWS}, {sSt} offen offset:4 sc1', 'xl')
    return r + mk([f'buffer_load_dwordx2 {vr(vX + 2*g, 2)}, v{vXo}, {sX}, {sXo} offen offset:{16*g}' for g in range(4)], 'xl')
def woload(q):
    g = (f's_lshl1_add_u32 m0, {s.mx}, {LDS_V + 4096*q}' if q < 2 else f's_add_u32 m0, {sFA}, {SA[q]}')
    g = mk(f'{g}\ns_lshl_b32 {sT}, {s.w}, 17\ns_add_u32 {sT}, {sT}, {q*32768}')
    return g + mk([f'buffer_load_dwordx4 v{vWdD+j}, {sWO}, {sT} offen offset:{1024*j} lds' for j in range(4)], 'wo')

def kqv():
    r = mk([f'buffer_load_dwordx4 {ar(A.aQ + 4*t, 4)}, v{vL16}, {sWS}, {sQo} offen offset:{1024*t} sc1' for t in range(2)])
    for tag, lds, so in (('K', LDS_K, sKo[0]), ('V', LDS_V, sVo)):
        r += mk(f's_add_u32 m0, {s.mx}, {lds}')
        r += mk([f'buffer_load_dwordx4 v{vL16}, {sWS}, {so} offen offset:{1024*j} sc1 lds' for j in range(4)], tag)
    return r
kr = lambda b: f'ds_read_b128 {ar(attn.kreg(b), 4)}, v{vKa} offset:{1024*b}'
A.kpre = mk([kr(b) for b in (8, 0, 9, 1)] + [f'ds_write_b128 v{A.PM+3}, {vr(A.PM+4, 4)}'] + [kr(b) for b in range(2, 8)])

class Guarded(Pool):
    other = None
    def take(self, *a):
        r = Pool.take(self, *a)
        if self.other is not None:
            busy = set(x for o in self.other for i in o.q for x in i.src + i.dst)
            for i in r: assert not busy & set(i.dst), i.text
        return r

def need(P, pool, tags, v=None):
    q = pool.q
    n = max((j + 1 for j, x in enumerate(q) if x.tag in tags and x.cls != 'pseudo'), default=0)
    if n and v: print('forced', v, tags, n)
    P.add([x for x in q[:n] if x.op != '@delay']); del q[:n]

class WSeq:
    def __init__(self, at=0, started=False): self.at = at; self.started = started
    def __call__(self, u):
        r = []
        if self.at < 6 <= u:
            r += mk(f's_lshl_b32 {sT}, {s.w}, 16\ns_add_u32 {sWk}, {sWk}, {sT}'); r[0].meta['glue'] = True
            d = (u - self.at) * 32768 + 36 * 16384
        else:
            assert (self.at < 6) == (u < 6)
            d = (u - self.at) * 32768
        if d: r += mk(f's_add_u32 {sWk}, {sWk}, {d}' if d > 0 else f's_sub_u32 {sWk}, {sWk}, {-d}')
        self.at = u
        if u in FREE: r += [waitlg(f'r{FREE[u]}')]
        reg, off = slot(u)
        r += mk(f's_add_u32 m0, {sFA}, {reg*LDS_FB + off}')
        r += mk([f'buffer_load_dwordx4 v{vWdD+j}, {sWD}, {sWk} offen offset:{1024*j} lds' for j in range(4)], f'w{u}')
        return r
FREE = {4: 0, 5: 1, 6: 2, 7: 3, 12: 4, 13: 5}

def plan(txt):
    r = {}
    for part in txt.split('/'):
        if not part: continue
        k, _, items = part.partition(':')
        r[k] = items.split(',')
    return r
def expand(items, W):
    r = []
    for x in items:
        if '&' in x:
            a, b = (expand([y], W) for y in x.split('&'))
            per = -(-sum(1 for y in b if y.states()) // sum(1 for y in a if y.cls == 'vmem'))
            for y in a:
                r.append(y)
                k = per if y.cls == 'vmem' else 0
                while b and k > 0:
                    k -= b[0].states(); r.append(b.pop(0))
            r += b
            continue
        n = int(x[1:])
        if x[0] == 'w': r += W(n)
        elif x[0] == 's': r += stage(n)
        elif x[0] == 'h': r += hload(n)
        elif x[0] == 'd': r += [delay(n)]
        elif x[0] == 'p': r += share(n)
        elif x[0] == 'e': r += dose(n)
        elif x[0] == 'o': r += woload(n)
        elif x[0] == 'x': r += xload()
        else: raise ValueError(x)
    return r
PLAN = '15:w0,w1,w2,w3/20:s0,s1,d96,w4,w5/24:s2,s3/q:w6,w7/a:w8,w9,h0,h1,s4,s5,w10,d96,h2,h3,w12,w13,h4,h5/b:w11,x0/c:o0,o1/d16:o2,o3'

class P2Ext:
    def __init__(self, sfx, cold, cfg):
        self.sfx, self.cold, self.cfg = sfx, cold, cfg
        self.dq = Pool(1, period=cfg.get('per2', 64), burst=cfg.get('burst2', 2), maxds=2)
        self.su = Guarded()
        self.fl = Pool()
        self.eh = None
        self.W = cfg['_W'] = WSeq()
        if 'p' in plan(cfg.get('plan', PLAN)): expand(plan(cfg['plan'])['p'], self.W)
        self.plan = plan(cfg.get('plan', PLAN))
    def pools(self, bg): return (self.fl, self.dq, bg, self.su)
    def flush(self, P, pool, name):
        r = pool.rest()
        if r and self.cfg.get('v'): print('flush', self.sfx, name, len(r))
        P.add(r)
    def need(self, P, tags, pool=None): need(P, pool or self.dq, tags, self.cfg.get('v') and self.sfx)
    def at(self, P, i, st, bg):
        cfg, dq, su = self.cfg, self.dq, self.su
        merge = cfg.get('merge', 1)
        k = 4*i + st
        if cfg.get('v') and k and not bg.q and not getattr(self, 'said', 0): print('results out by', self.sfx, k); self.said = 1
        if k == 0 and merge and self.eh:
            for x in self.eh: x.tag = x.tag and 'st1'
            bg.put(self.eh); self.eh = None
        if k == cfg.get('kw3', 12) and not cfg.get('nowarm'):
            assert k >= 1 and not any('vcc' in x.src + x.dst for x in bg.q)
            self.fl.put(warm3())
        if k == cfg.get('ksu', 3):
            su.other = (bg, dq)
            fl_, w_, rest = setup_d(cfg.get('cx', 0))
            su.put(fl_); su.put(setup_polls(merge)); self.rest = rest
        if k == cfg.get('kd6', 0): dq.put(g1.dma2(6)); dq.put(g1.dma2(7))
        if k == cfg.get('pubq' + self.sfx, 17):
            self.flush(P, bg, 'bg'); self.need(P, ('sfl',), su)
            self.fl.put(f'v_mov_b32 v{vFd}, {s.n0}\nv_mov_b32 v{vFd+1}, {s.n1}')
            T = Prog(); stamp(T, 'pub0'); self.fl.put(T.L)
            self.fl.put(publish(WS_FLAGQ, 'st1'))
            T = Prog(); stamp(T, 'pub1'); self.fl.put(T.L)
        if k == cfg.get('keh', 12) and self.eh: bg.put(self.eh)
        if k == 15:
            self.need(P, ('d6', 'd7')); su.put(self.rest)
        if k == cfg.get('pollq', 23):
            self.need(P, ('spoll',), su)
            self.fl.put(poll(vPq, WS_FLAGQ))
            T = Prog(); stamp(T, 'polq'); self.fl.put(T.L)
        if k == cfg.get('ksa', 20):
            self.flush(P, su, 'su'); su.put(setup_att())
        for key in (str(k), self.sfx + str(k)):
            if key not in self.plan: continue
            it = self.plan[key]
            if any('w' in x for x in it): self.need(P, ('sw',), su)
            if any('s' in x for x in it): self.need(P, ('sra',), su)
            for x in it:
                for y in x.split('&'):
                    n = int(y[1:])
                    if y[0] == 's': assert k >= 4 + 4*(n >> 1)
                    b1, b2 = (1 in cfg.get('bars', ())), (2 in cfg.get('bars', ()))
                    if y[0] == 'w': assert k >= {0: 0, 1: 7 if b1 else 11 if b2 else 15, 2: 7 if b1 else 11 if b2 else 15,
                                                 3: 11 if b2 else 15, 8: 23, 9: 31, 10: 31, 11: 99}.get(n, 0)
                    if y[0] == 'h': assert k > cfg.get('chkq', 27)
            dq.put(expand(it, self.W))
        if k == cfg.get('chkq', 27):
            assert k >= 23
            self.flush(P, self.fl, 'fl')
            T = Prog(); stamp(T, 'chk0'); dq.put(T.L)
            dq.put(check(self.cold, 'q' + self.sfx, vPq, WS_FLAGQ))
            T = Prog(); stamp(T, 'chkq'); dq.put(T.L)
            dq.burst = cfg.get('burstk', 6)
            dq.put(kqv())
            dq.put(expand(self.plan.get('q', []), self.W))
        if k == cfg.get('pube', 29):
            self.flush(P, bg, 'bg2')
            if merge: su.put(f's_add_u32 {sFl}, {sFl}, 0x20000')
            else: self.fl.put(publish(WS_FLAGE, 'st1h'))
        if k == 31:
            self.flush(P, su, 'su3')
            P(f's_bfe_u32 s84, s2, 0x30003\ns_cmp_eq_u32 s84, 0\ns_cselect_b64 vcc, -1, 0')
    def done(self, P):
        self.flush(P, self.fl, 'fl'); self.flush(P, self.dq, 'dq-end')

class AttBg:
    def __init__(self, cold, cfg):
        self.cold, self.cfg = cold, cfg
        self.q = Pool(cfg.get('vm3', 1), period=cfg.get('per3', 64), burst=cfg.get('burst3', 2), maxds=3)
        self.fl = Pool()
        self.plan = plan(cfg.get('plan', PLAN))
        self.mf = [(u, ks, c, tt) for u in range(6) for ks in range(2) for c in range(2) for tt in range(2)][:cfg.get('nx', 44)]
        self.done = 0; self.late = list(range(6, cfg.get('hatt', 12))); self.hok = False
    def extra(self, P):
        if not self.mf: return []
        u, ks, c, tt = self.mf.pop(0)
        if (ks, c, tt) == (0, 0, 0):
            need(P, self.q, (f'h{u}', f'r{u}'), self.cfg.get('v') and 'att')
            P.waitvm(f'h{u}')
        self.done = u + ((ks, c, tt) == (1, 1, 1))
        return [d1mf(u, ks, c, tt)]
    def gap(self, P, where):
        q, cfg = self.q, self.cfg
        if where == ('p0', 0): q.put(expand(self.plan.get('a', []), cfg['_W']))
        if where == ('dg', 0): q.put(expand(self.plan.get('b', []), cfg['_W']))
        if where == ('it', cfg.get('kbar', 0)):
            P.waitlg(); P('s_barrier')
            q.put(expand(self.plan.get('c', []), cfg['_W']))
        if where == ('p1', cfg.get('pubh', 12)): self.fl.put(publish(WS_FLAGH, 'st2'))
        if where == ('it', cfg.get('pollh', 2)):
            self.fl.put(poll(vPh, WS_FLAGH))
            T = Prog(); stamp(T, 'polh'); self.fl.put(T.L)
        if where == ('it', cfg.get('chkh', 6)):
            P.add(self.fl.rest())
            stamp(P, 'chh0')
            P.add(check(self.cold, 'h', vPh, WS_FLAGH))
            stamp(P, 'chkh')
            self.hok = True
        if where[0] == 'it': stamp(P, f'it{where[1]}')
        while self.hok and self.late and (self.late[0] - 6) >> 1 < self.done: q.put(hload(self.late.pop(0)))
        if where[0] == 'it': return
        P.add(self.fl.take(99, True, P.now()))
        P.add(q.take(20, True, P.now()))

def mf(d, a, b, first):
    return f'v_mfma_f32_32x32x16_bf16 {d}, {a}, {b}, {"0" if first else d}'
def d1mf(u, ks, c, tt):
    hk, hb = hreg(u)
    a = ar(aW + 16*u + 8*ks + 4*c, 4) if u < 6 else vr(vWF + 8*ks + 4*c, 4)
    return mf(rg(*FT[2*c + tt], 16), a, rg(hk, hb + 8*ks + 4*tt, 4), u == 0 and ks == 0)

def dstage(P, cold, cfg, att):
    dq = Pool(1, period=cfg.get('per4', 64), burst=cfg.get('burst4', 6))
    dq.put(att.q.rest())
    fl = Pool(); su = Pool()
    nx = cfg.get('nx', 44)
    assert not att.mf and att.hok and nx % 4 == 0 and nx >= 32
    for u in list(att.late) + list(range(cfg.get('hatt', 12), 14)): dq.put(hload(u))
    pl = plan(cfg.get('plan', PLAN))
    rw, rr, wa, x = vAd, vAd + 2, vAd + 6, vAd + 10
    su.put(f"""v_add_u32 v{rw}, {sFA}, v{vL16}
    v_add_u32 v{rw+1}, {LDS_FB}, v{rw}
    v_xor_b32 v{rr}, {4096}, v{rw}
    v_add_u32 v{rr}, {LDS_FB}, v{rr}
    v_xor_b32 v{rr+1}, {8192}, v{rw}
    v_xor_b32 v{rr+2}, {12288}, v{rw}
    v_add_u32 v{rr+2}, {LDS_FB}, v{rr+2}
    v_add_u32 v{rr+3}, {LDS_FB}, v{rr+1}
    v_subrev_u32 v{wa}, {sFA}, v{vRA}
    v_lshrrev_b32 v{x}, 5, v0
    v_lshl_add_u32 v{wa}, v{x}, 9, v{wa}
    s_lshl_b32 {sU[0]}, {s.ch}, 13
    v_add_u32 v{wa+2}, {sU[0]}, v{wa}
    s_lshl_b32 {sU[0]}, {s.ch}, 14
    s_add_u32 {sU[0]}, {sU[0]}, {LDS_V}
    v_add_u32 v{wa}, {sU[0]}, v{wa}
    v_xor_b32 v{wa+1}, 64, v{wa}
    v_xor_b32 v{wa+3}, 64, v{wa+2}""")
    su.put(f"""s_lshl_b32 {sU[0]}, {s.w}, 15
    s_add_u32 {sU[0]}, {sU[0]}, {WS_FLAGQ}
    s_cmp_eq_u32 s2, 0
    s_cselect_b32 {sU[0]}, {sU[0]}, 0x40000000
    v_lshl_add_u32 v{vBa}, v0, 9, {sU[0]}
    s_or_b32 {sU[0]}, s2, {s.w}
    s_cmp_eq_u32 {sU[0]}, 0
    s_cselect_b32 {sU[0]}, 0, 0x40000000
    v_or_b32 v{vBa+1}, {sU[0]}, v{vFl}
    buffer_load_dwordx2 {vr(vBd, 2)}, v{vBa}, {sWS}, 0 offen sc1""")
    rsrc = {1: rr, 2: rr + 3, 3: rr + 2}
    olds = []
    for q in range(4):
        for j in range(4): olds += mk(f'buffer_load_dwordx4 {ar(aO + 16*q + 4*j, 4)}, v{vL16}, {sWS}, {sOi} offen offset:{1024*j} sc1', f'o{4*q+j}')
        if q < 3: olds += mk(f's_add_u32 {sOi}, {sOi}, 4096')
    steps = [(u, ks) for u in range(14) for ks in range(2)][nx // 4:]
    for u, ks in steps:
        k = 2*u + ks
        if f'd{k}' in pl: dq.put(expand(pl[f'd{k}'], cfg['_W']))
        if k == cfg.get('pubo', 21):
            T = Prog(); stamp(T, 'pbo0'); fl.put(T.L)
            fl.put(publish(WS_FLAGO, 'sto'))
            T = Prog(); stamp(T, 'pbo1'); fl.put(T.L)
        if k == cfg.get('pollo', 25): fl.put(poll(vPo, WS_FLAGO))
        if k == 12: stamp(P, 'd1m')
        if ks == 0 or (u, ks) == steps[0]: need(P, dq, (f'h{u}', f'r{u}'), cfg.get('v') and 'd')
        mfs, fixed = [], {}
        nu, nk = (u, 1) if ks == 0 else (u + 1, 0)
        rd = []
        if 6 <= nu < 14:
            if nk == 0: need(P, dq, (f'w{nu}',), cfg.get('v') and 'd'); P.waitvm(f'w{nu}')
            rd = wread(nu, nk, 'v', vWF + 8*nk)
        for c in range(2):
            for tt in range(2):
                if tt == 0 and rd: fixed[len(mfs)] = rd.pop(0)
                mfs.append(d1mf(u, ks, c, tt))
        weave(P, mfs, fixed, (fl, dq, su), slack=0)
    if cfg.get('v'): print('d1 rest', len(fl.q), len(dq.q), len(su.q))
    P.add(fl.rest()); P.add(dq.rest()); P.add(su.rest())
    stamp(P, 'd1')
    P(f'v_cmp_ne_u64 s[84:85], {sN}, {vr(vBd, 2)}\ns_cmp_eq_u32 s2, 0\ns_cbranch_scc1 L_bump\nL_bump_back:')
    cold.add([forget()])
    cold(f"""L_bump:
    s_cmp_eq_u64 s[84:85], 0
    s_cbranch_scc1 L_bump_back
    s_sub_u32 {s.spin}, {s.spin}, 1
    s_cmp_le_i32 {s.spin}, 0
    s_cbranch_scc1 L_bump_back
    buffer_load_dwordx2 {vr(vBd, 2)}, v{vBa}, {sWS}, 0 offen sc1
    v_cmp_ne_u64 s[84:85], {sN}, {vr(vBd, 2)}
    s_branch L_bump""")
    wr = []
    for j in (1, 2, 3):
        kind, b = FT[j]
        wr += [f'ds_write_b128 v{rw+1}, {rg(kind, b + 4*q, 4)} offset:{SB[j-1] + 1024*q}' for q in range(4)]
    n0 = cfg.get('wr0', 12)
    P.add(wr[:n0])
    stamp(P, 'cho0')
    P.add(check(cold, 'o', vPo, WS_FLAGO))
    stamp(P, 'chko')
    oq = Pool(1, period=cfg.get('per5', 64), burst=cfg.get('burst5', 2))
    oq.put(olds)
    def paced(xs, c=None):
        for x_ in mk(xs):
            P.add(oq.take(8, True, P.now()))
            P.add([x_])
            if c: P._t += c
    G = vF; R2 = vAd + 10
    pre = mk(f'v_mul_f32 v{vRs}, v{vRs}, v{vRs}\nv_mul_f32 v{R2}, {f32(-LOG2E)}, v{vRs}')
    for g in range(8):
        pre += mk([f'v_lshlrev_b32 v{vXF+2*g}, 16, v{vX+g}', f'v_and_b32 v{vXF+2*g+1}, 0xffff0000, v{vX+g}'])
    P.now()
    b2 = cfg.get('b2', 1)
    paced(wr[n0:], cfg.get('wc', 48))
    if not b2:
        paced(pre); pre = []
        P.waitvm('wo')
    P.waitlg()
    P('s_barrier')
    stamp(P, 'rbar')
    P(f'buffer_store_dword v{vFd}, v{vBa+1}, {sWS}, 0 offen sc1')
    def wor(k):
        src, kk = k >> 3, k & 7
        reg, off = (wa, 8192*src + 2048*kk) if kk < 4 else (wa + 2, 4096*src + SA[kk >> 1] + 2048*(kk & 1))
        return [[f'ds_read_b64_tr_b16 {vr(vWF + 8*(k & 1) + 4*c + 2*j, 2)}, v{reg + c} offset:{off + 512*j}' for j in range(2)] for c in range(2)]
    paced([f'ds_read_b128 {vr(vF + 16*j + 4*q, 4)}, v{rsrc[j]} offset:{SB[j-1] + 1024*q}' for j in (1, 2, 3) for q in range(4)], 12)
    if not b2: P.add(wor(0))
    bg = Pool()
    for k in range(1, 4):
        bg.put([f'v_add_f32 v{G+r}, v{G+r}, v{vF+16*k+r}' for r in range(16)])
    bg.put(pre[:2])
    for r0 in range(0, 16, 4):
        rs = range(r0, r0 + 4)
        bg.put([f'v_mul_f32 v{vE+r}, v{R2}, v{G+r}' for r in rs])
        bg.put([f'v_exp_f32 v{vE+r}, v{vE+r}' for r in rs])
        bg.put([f'v_mul_f32 v{G+r}, v{vRs}, v{G+r}' for r in rs])
        bg.put([f'v_add_f32 v{vE+r}, 1.0, v{vE+r}' for r in rs])
        bg.put([f'v_rcp_f32 v{vE+r}, v{vE+r}' for r in rs])
    bg.put([f'v_mul_f32 v{G+r}, v{G+r}, v{vE+r}' for r in range(16)])
    bg.put(pre[2:])
    ne = cfg.get('early', 50)
    if b2:
        paced(bg.q[:1]); del bg.q[:1]
        stamp(P, 'rrd')
        paced(bg.q[:ne - 13]); del bg.q[:ne - 13]
        stamp(P, 'radd')
        P.waitvm('wo'); P('s_barrier'); stamp(P, 'wob'); P.add(wor(0)); ne = 12
    paced(bg.q[:ne]); del bg.q[:ne]
    stamp(P, 'red')
    for k in range(16):
        rd = wor(k + 1) if k < 15 else []
        stamp(P, f'wo{k}')
        need(P, oq, (f'o{k}',), cfg.get('v') and 'o')
        mfs, fixed = [], {}
        for c in range(2):
            if rd: fixed[len(mfs)] = rd.pop(0)
            mfs.append(mf(vr(vSx + 16*c, 16), vr(vWF + 8*(k & 1) + 4*c, 4), ar(aO + 4*k, 4), k == 0))
        weave(P, mfs, fixed, (oq, bg), slack=0)
    P.add(bg.rest())
    stamp(P, 'd2')
    for q in range(4): P(f'ds_write_b128 v{rw}, {vr(vSx + 16 + 4*q, 4)} offset:{SA[0] + q*1024}')
    for r in range(16): P(f'v_fmac_f32 v{vXF+r}, v{vSx+r}, v{G+r}')
    P.waitlg()
    P('s_barrier')
    for q in range(4): P(f'ds_read_b128 {vr(vSx + 16 + 4*q, 4)}, v{rr+1} offset:{SA[0] + q*1024}')
    for g in range(2):
        for r in range(8*g, 8*g + 8): P(f'v_fmac_f32 v{vXF+r}, v{vSx+16+r}, v{G+r}')
        for k in range(4*g, 4*g + 4): P(f'v_cvt_pk_bf16_f32 v{vX+k}, v{vXF+2*k}, v{vXF+2*k+1}')
        for k in range(2): P(f'v_permlane32_swap_b32 v{vX+4*g+k}, v{vX+4*g+2+k}')
        P(f'buffer_store_dwordx4 {vr(vX + 4*g, 4)}, v{vOo}, {sOUT}, {sXo} offen offset:{32*g}' + ('', ' sc1', ' sc0 sc1', ' nt', ' sc1 nt')[cfg.get('osc', 0)])
    stamp(P, 'out')

def dstage2(P, cold, cfg, att):
    V = cfg.get('v')
    dq = Pool(1, period=cfg.get('per4', 64), burst=cfg.get('burst4', 6))
    dq.put(att.q.rest())
    fl = Pool(); su = Pool(); bg = Pool()
    nx = cfg.get('nx', 44); n = cfg.get('nsk', 6); u0 = 14 - n // 2
    assert not att.mf and att.hok and nx % 4 == 0 and nx >= 32 and n % 2 == 0
    late = list(att.late) + list(range(cfg.get('hatt', 12), 14))
    for u in late:
        if u < u0: dq.put(hload(u))
    for tt in (1, 0):
        for u in late:
            if u >= u0: dq.put(hload_t(u, tt))
    pl = plan(cfg.get('plan', PLAN))
    rw, rr, wa, x = vAd, vAd + 2, vAd + 6, vAd + 10
    su.put(f"""v_add_u32 v{rw}, {sFA}, v{vL16}
    v_add_u32 v{rw+1}, {LDS_FB}, v{rw}
    v_xor_b32 v{rr}, {4096}, v{rw}
    v_add_u32 v{rr}, {LDS_FB}, v{rr}
    v_xor_b32 v{rr+1}, {8192}, v{rw}
    v_xor_b32 v{rr+2}, {12288}, v{rw}
    v_add_u32 v{rr+2}, {LDS_FB}, v{rr+2}
    v_add_u32 v{rr+3}, {LDS_FB}, v{rr+1}
    v_subrev_u32 v{wa}, {sFA}, v{vRA}
    v_lshrrev_b32 v{x}, 5, v0
    v_lshl_add_u32 v{wa}, v{x}, 9, v{wa}
    s_lshl_b32 {sU[0]}, {s.ch}, 13
    v_add_u32 v{wa+2}, {sU[0]}, v{wa}
    s_lshl_b32 {sU[0]}, {s.ch}, 14
    s_add_u32 {sU[0]}, {sU[0]}, {LDS_V}
    v_add_u32 v{wa}, {sU[0]}, v{wa}
    v_xor_b32 v{wa+1}, 64, v{wa}
    v_xor_b32 v{wa+3}, 64, v{wa+2}""")
    su.put(f"""s_lshl_b32 {sU[0]}, {s.w}, 15
    s_add_u32 {sU[0]}, {sU[0]}, {WS_FLAGQ}
    s_cmp_eq_u32 s2, 0
    s_cselect_b32 {sU[0]}, {sU[0]}, 0x40000000
    v_lshl_add_u32 v{vBa}, v0, 9, {sU[0]}
    s_or_b32 {sU[0]}, s2, {s.w}
    s_cmp_eq_u32 {sU[0]}, 0
    s_cselect_b32 {sU[0]}, 0, 0x40000000
    v_or_b32 v{vBa+1}, {sU[0]}, v{vFl}
    buffer_load_dwordx2 {vr(vBd, 2)}, v{vBa}, {sWS}, 0 offen sc1""")
    olds = []
    for q in range(4):
        for j in range(4): olds += mk(f'buffer_load_dwordx4 {ar(aO + 16*q + 4*j, 4)}, v{vL16}, {sWS}, {sOi} offen offset:{1024*j} sc1', f'o{4*q+j}')
        if q < 3: olds += mk(f's_add_u32 {sOi}, {sOi}, 4096')
    G = vF; R2 = vAd + 10; IR = vAd + 12
    pre = mk(f'v_mul_f32 v{vRs}, v{vRs}, v{vRs}\nv_mul_f32 v{R2}, {f32(-LOG2E)}, v{vRs}\nv_rcp_f32 v{IR}, v{vRs}')
    for g in range(8):
        pre += mk([f'v_lshlrev_b32 v{vXF+2*g}, 16, v{vX+g}', f'v_and_b32 v{vXF+2*g+1}, 0xffff0000, v{vX+g}'])
    steps = [(u, ks) for u in range(14) for ks in range(2)][nx // 4:]
    norm, skew = steps[:-n], steps[-n:]
    frag = lambda c, j: ('v', 64 + 4*j) if c else ('a', 192 + 4*j)
    def fread(c, j):
        u, ks = skew[j]
        return wread(u, ks, frag(c, j)[0], frag(c, j)[1] - 4*c)[c]
    fq = [(c, j) for c in (1, 0) for j in range(n)]
    ORDER = (3, 1, 2, 0)
    SLOT = {3: SB[0], 1: SB[1], 2: SB[2]}
    wgap = cfg.get('wgap', {4: [1, 2, 3, 3], 6: [2, 3, 4, 5], 8: [2, 4, 5, 7]}[n])
    total = 4 * len(steps)
    mco = total - cfg.get('mco', n); mpo = mco - cfg.get('mpo', 26); mpo2 = mco - cfg.get('mpo2', 13); mpu = cfg.get('mpu', 20)
    two = cfg.get('mpo2', 13) > 0
    def at(m):
        if m == mpu:
            T = Prog(); stamp(T, 'pbo0'); fl.put(T.L)
            fl.put(publish(WS_FLAGO, 'sto'))
            T = Prog(); stamp(T, 'pbo1'); fl.put(T.L)
        if m == mpo: fl.put(poll(vPo, WS_FLAGO))
        if m == mpo2 and two: fl.put(poll2(vPo))
        if m == mco:
            P.add(fl.rest())
            stamp(P, 'cho0')
            P.add(check2(cold, 'o', vPo) if two else check(cold, 'o', vPo, WS_FLAGO))
            stamp(P, 'chko')
            if V: print('queue at check', len(dq.q))
            dq.period = cfg.get('per5', 64); dq.burst = cfg.get('burst5', 2)
            dq.put(olds)
        if m == total - cfg.get('mbu', 3):
            P.add(su.rest())
            P(f'v_cmp_ne_u64 s[84:85], {sN}, {vr(vBd, 2)}\ns_cmp_eq_u32 s2, 0\ns_cbranch_scc1 L_bump\nL_bump_back:')
        if m == total - cfg.get('mpre', 2*n): P.add(su.rest()); bg.put(pre)
    m = 0
    def one(mfma, fixed):
        nonlocal m
        at(m); m += 1
        weave(P, [mfma], {0: fixed}, (fl, dq, su, bg), slack=0)
    for u, ks in norm:
        k = 2*u + ks
        if f'd{k}' in pl: dq.put(expand(pl[f'd{k}'], cfg['_W']))
        if k == 12: stamp(P, 'd1m')
        if ks == 0 or (u, ks) == steps[0]: need(P, dq, (f'h{u}', f'r{u}'), V and 'd')
        nu, nk = (u, 1) if ks == 0 else (u + 1, 0)
        if (u, ks) == norm[-1]:
            ws = tuple(f'w{v}' for v in range(u0, 14))
            need(P, dq, ws, V and 'd'); P.waitvm(ws)
            rd = [fread(*fq.pop(0)) for _ in range(4)]
        elif nu >= 6:
            if nk == 0: need(P, dq, (f'w{nu}',), V and 'd'); P.waitvm(f'w{nu}')
            rd = wread(nu, nk, 'v', vWF + 8*nk); rd = [rd[0], [], rd[1], []]
        else: rd = [[]] * 4
        for c in range(2):
            for tt in range(2): one(d1mf(u, ks, c, tt), rd[2*c + tt])
    assert not any(f'd{2*u + ks}' in pl for u, ks in skew)
    stamp(P, 'sk0')
    prev = None
    for j4, tile in enumerate(ORDER):
        c, tt = tile >> 1, tile & 1
        wr = []
        if prev is not None:
            kind, b = FT[prev]
            wr = [f'ds_write_b128 v{rw+1}, {rg(kind, b + 4*q, 4)} offset:{SLOT[prev] + 1024*q}' for q in range(4)]
        if j4 == 1: P.add(su.rest())
        stamp(P, f'sk{j4}') if j4 else None
        for j, (u, ks) in enumerate(skew):
            if ks == 0: need(P, dq, (f'h{100*(tt + 1) + u}', f'h{u}'), V and 'd')
            fx = fread(*fq.pop(0)) if fq else []
            fx = list(fx) + [w for w, g in zip(wr, wgap) if g == j]
            hk, hb = hreg(u)
            one(mf(rg(*FT[tile], 16), rg(*frag(c, j), 4), rg(hk, hb + 8*ks + 4*tt, 4), False), fx)
        prev = tile
    if V: print('d1 rest', len(fl.q), len(dq.q), len(su.q), len(bg.q))
    P.add(bg.rest())
    stamp(P, 'd1')
    if mco >= total: at(mco)
    cold.add([forget()])
    cold(f"""L_bump:
    s_cmp_eq_u64 s[84:85], 0
    s_cbranch_scc1 L_bump_back
    s_sub_u32 {s.spin}, {s.spin}, 1
    s_cmp_le_i32 {s.spin}, 0
    s_cbranch_scc1 L_bump_back
    buffer_load_dwordx2 {vr(vBd, 2)}, v{vBa}, {sWS}, 0 offen sc1
    v_cmp_ne_u64 s[84:85], {sN}, {vr(vBd, 2)}
    s_branch L_bump""")
    def paced(xs, c=None):
        for x_ in mk(xs):
            P.add(dq.take(8, True, P.now()))
            P.add([x_])
            if c: P._t += c
    b2 = cfg.get('b2', 1)
    if not b2: need(P, dq, ('wo',), V and 'wo'); P.waitvm('wo')
    P.waitlg()
    P('s_barrier')
    stamp(P, 'rbar')
    P(f'buffer_store_dword v{vFd}, v{vBa+1}, {sWS}, 0 offen sc1')
    rsrc = {1: rr, 2: rr + 3, 3: rr + 2}
    paced([f'ds_read_b128 {vr(vF + 16*j + 4*q, 4)}, v{rsrc[j]} offset:{SLOT[j] + 1024*q}' for j in (3, 1, 2) for q in range(4)], 12)
    def wor(k):
        src, kk = k >> 3, k & 7
        reg, off = (wa, 8192*src + 2048*kk) if kk < 4 else (wa + 2, 4096*src + SA[kk >> 1] + 2048*(kk & 1))
        return [[f'ds_read_b64_tr_b16 {ar(8*k + 4*c + 2*j, 2)}, v{reg + c} offset:{off + 512*j}' for j in range(2)] for c in range(2)]
    msk = cfg.get('msk', 4)
    order = [(k, c) for k in range(16 - msk) for c in (1, 0)] + [(k, c) for c in (1, 0) for k in range(16 - msk, 16)]
    wq = [wor(k)[c] for k, c in order]
    pk = lambda op, d, *a: f'v_pk_{op}_f32 {vr(d, 2)}, ' + ', '.join(vr(abs(y), 2) for y in a) + (
        '' if min(a) > 0 else ' op_sel_hi:[' + ','.join('1' if y > 0 else '0' for y in a) + ']')
    adds = [pk('add', G + r, G + r, vF + 16*j + r) for j in (3, 1, 2) for r in range(0, 16, 2)]
    def gate(r0, packed):
        rs = range(r0, r0 + 4)
        ex = [f'v_exp_f32 v{vE+r}, v{vE+r}' for r in rs]; rc = [f'v_rcp_f32 v{vE+r}, v{vE+r}' for r in rs]
        if packed:
            rp = rs[::2]
            return ([pk('mul', vE + r, G + r, -R2) for r in rp], ex, [pk('fma', vE + r, vE + r, -IR, -IR) for r in rp], rc,
                    [pk('mul', G + r, G + r, vE + r) for r in rp])
        return ([f'v_mul_f32 v{vE+r}, v{R2}, v{G+r}' for r in rs], ex, [f'v_fma_f32 v{vE+r}, v{vE+r}, v{IR}, v{IR}' for r in rs], rc,
                [f'v_mul_f32 v{G+r}, v{G+r}, v{vE+r}' for r in rs])
    ne = cfg.get('ne', 2); wpre = cfg.get('wpre', 4); adb = cfg.get('adb', 16)
    if b2:
        paced(adds[:adb]); del adds[:adb]
        stamp(P, 'radd')
        need(P, dq, ('wo',), V and 'wo'); P.waitvm('wo'); P('s_barrier')
        stamp(P, 'wob')
    head = adds
    ga = [gate(4*g, True) for g in range(ne)]
    for st in range(5):
        for g in ga: head += g[st]
    nrd = 2 * wpre
    every = max(1, len(head) // (nrd + 1))
    seq = []
    for j, y in enumerate(head):
        if j % every == 0 and nrd: seq += wq.pop(0); nrd -= 1
        seq.append(y)
    while nrd: seq += wq.pop(0); nrd -= 1
    paced(seq)
    for g in range(ne, 4):
        for y in gate(4*g, False): bg.put(y)
    stamp(P, 'red')
    xw = [f'ds_write_b128 v{rw}, {vr(vSx + 16 + 4*q, 4)} offset:{SA[0] + q*1024}' for q in range(4)]
    xgap = cfg.get('xgap', [2, 3, 4, 5])
    for j, (k, c) in enumerate(order):
        if c == 1: stamp(P, f'wo{k}'); need(P, dq, (f'o{k}',), V and 'o')
        fx = wq.pop(0) if wq else []
        g = j - (32 - msk)
        if g >= 0:
            bgr = bg.rest()
            if bgr and V: print('gate rest', len(bgr))
            P.add(bgr)
            while xw and xgap[4 - len(xw)] <= g: fx.append(xw.pop(0))
        weave(P, [mf(vr(vSx + 16*c, 16), ar(8*k + 4*c, 4), ar(aO + 4*k, 4), k == 0)], {0: fx}, (dq, bg), slack=0)
    P.add(bg.rest())
    stamp(P, 'd2')
    P.add(xw)
    for r in range(0, 16, 2): P(pk('fma', vXF + r, vSx + r, G + r, vXF + r))
    P.waitlg()
    P('s_barrier')
    for q in range(4): P(f'ds_read_b128 {vr(vSx + 16 + 4*q, 4)}, v{rr+1} offset:{SA[0] + q*1024}')
    for g in range(2):
        for r in range(8*g, 8*g + 8, 2): P(pk('fma', vXF + r, vSx + 16 + r, G + r, vXF + r))
        for k in range(4*g, 4*g + 4): P(f'v_cvt_pk_bf16_f32 v{vX+k}, v{vXF+2*k}, v{vXF+2*k+1}')
        for k in range(2): P(f'v_permlane32_swap_b32 v{vX+4*g+k}, v{vX+4*g+2+k}')
        P(f'buffer_store_dwordx4 {vr(vX + 4*g, 4)}, v{vOo}, {sOUT}, {sXo} offen offset:{32*g}')
    stamp(P, 'out')

def build(cfg):
    P, cold = Prog(), Prog()
    if cfg.get('ep'): g1.early(P, 'L_end', cfg)
    else: g1.entry(P, 'L_end')
    for srd, off in ((sWO, 16), (sWD, 48), (sOUT, 56)): srd_load(P, srd, off)
    srd_const(P, sWO, 512*512*2); srd_const(P, sWD, 1792*512*2); srd_const(P, sOUT, 2048*512*2)
    cfg['_hook'] = lambda P, pos: hook(P, pos, cfg)
    cfg['_pre'] = lambda: setup_d()[1]
    cfg['_pre7'] = lambda: expand(plan(cfg.get('plan', PLAN)).get('p', []), WSeq())
    g1.g1_body(P, cold, cfg, lambda sfx: P2Ext(sfx, cold, cfg))
    g1.epilogue2(P)
    stamp(P, 'e2')
    bg = AttBg(cold, cfg)
    attn.pass1(P, cold, [], bg)
    stamp(P, 'a1')
    attn.pass2b(P, cold, bg, bg.extra)
    if cfg.get('v'): print('att rest', len(bg.fl.q), len(bg.q.q))
    P.add(bg.fl.rest())
    stamp(P, 'a2')
    (dstage2 if cfg.get('ds2') else dstage)(P, cold, cfg, bg)
    stamp_end(P)
    P('L_end:\ns_endpgm')
    P.add(cold.L)
    P('L_last:')
    if cfg.get('pst'):
        pos = cfg['pst']; n = 0; L2 = []
        for x in P.L:
            L2.append(x)
            if x.states():
                n += 1
                if n in pos:
                    T = Prog(); stamp(T, f'n{pos.index(n)}'); L2 += T.L
        P.L = L2
    abl = cfg.get('abl', '').split(',')
    def drop(x):
        t = x.tag if isinstance(x.tag, str) else ''
        if x.cls == 'vmem':
            if 'hl' in abl and t[:1] == 'h' and int(t[1:]) >= 6: return True
            if 'he' in abl and t[:1] == 'h' and int(t[1:]) < 6: return True
            if 'wo' in abl and t == 'wo': return True
            if 'wd' in abl and t[:1] == 'w' and t != 'wo': return True
            if 'o' in abl and t[:1] == 'o': return True
            if 'st1' in abl and t == 'st1': return True
            if 'st2' in abl and t == 'st2': return True
            if 'kv' in abl and t in ('K', 'V'): return True
        if x.cls == 'ds' and 'stage' in abl and t[:1] == 'r': return True
        return False
    P.L = [x for x in P.L if not drop(x)]
    for j, x in enumerate(P.L):
        t = x.tag if isinstance(x.tag, str) else ''
        if x.cls != 'vmem': continue
        if 'whit' in abl and t[:1] == 'w': P.L[j] = I(re.sub(r', s\d+ offen', ', 0 offen', x.text).replace(' lds', ' sc1 lds'), x.tag)
        if 'hhit' in abl and t[:1] == 'h': P.L[j] = I(re.sub(r', s\d+ offen', f', {s.mx} offen', x.text), x.tag)
    L = finish(P.L)
    if cfg.get('wu') is not None: L = warm_text(L, cfg)
    return L

def sizes(L):
    import subprocess, tempfile
    d = tempfile.mkdtemp()
    open(d + '/a.s', 'w').write('.amdgcn_target "amdgcn-amd-amdhsa--gfx950"\n.text\n' + text(L))
    subprocess.run(['clang', '-x', 'assembler', '-target', 'amdgcn-amd-amdhsa', '-mcpu=gfx950', '-c', d + '/a.s', '-o', d + '/a.o'], check=True)
    o = subprocess.run(['llvm-objdump', '-d', d + '/a.o'], capture_output=True, text=True).stdout
    r = [len(m.group(1).split()) * 4 for m in re.finditer(r'// [0-9A-F]{12}: ((?:[0-9A-F]{8} ?)+)', o)]
    assert len(r) == sum(1 for x in L if x.states()), (len(r), sum(1 for x in L if x.states()))
    return r

def warm_text(L, cfg):
    offs = cfg['wu']
    sites = [x.op[:-1] for x in L if x.cls == 'label' and x.op.startswith('L_wu')]
    entry = lambda n: 8 + 3*8 + 4 + 4 - 4
    sz = iter(sizes(L))
    base = (cfg.get('al', 12) + 3) * 256 % 4096 if cfg.get('al') is not None else 0xf00
    pos = base; out = []; groups = []; want = []
    page = pos // 4096; done = False
    for x in L:
        if x.cls == 'label' and x.op[:-1] in ('L_p2b', 'L_p2done'):
            groups.append([]); want += [(pos // 64 * 64 + o, groups[-1]) for o in offs]; want.sort(key=lambda w: w[0])
        if x.cls == 'label' and x.op[:-1] == 'L_end': done = True
        if x.cls == 'label' and x.op[:-1] in sites:
            out.append(x); pos += 4 + 3*8 + 4 + 4; continue
        if x.states():
            if pos // 4096 > page and not done:
                page = pos // 4096; groups.append([]); want += [(page * 4096 + o, groups[-1]) for o in offs]; want.sort(key=lambda w: w[0])
            while want and want[0][0] <= pos and not done and not (out[-1].op.startswith('s_getpc')):
                g = want.pop(0)[1]
                st = I('s_cbranch_execz X'); lab = I(f'L_wt{sum(len(y) for y in groups)}:')
                g.append((lab, st)); out += [lab, st]; pos += 4
            pos += next(sz)
        out.append(x)
    groups = [g for g in groups if g]
    if cfg.get('v'): print('text groups', len(groups), 'end', hex(pos))
    per = -(-len(groups) // len(sites))
    if cfg.get('wun'): per = cfg['wun']
    res = []
    for x in out:
        res.append(x)
        if x.cls == 'label' and x.op[:-1] in sites:
            k = sites.index(x.op[:-1])
            mine = groups[k*per:(k + 1)*per] if k + 1 < len(sites) else groups[k*per:]
            back = x.op[:-1] + '_back'
            heads = []
            for w in range(4):
                ch = [e for g in mine[w::4] for e in g]
                for (lab, st), nx in zip(ch, ch[1:] + [None]): st.text = 's_cbranch_execz ' + (nx[0].op[:-1] if nx else back)
                heads.append(ch[0][0].op[:-1] if ch else back)
            res += mk('s_mov_b64 exec, 0\n' + ''.join(f's_cmp_eq_u32 {s.w}, {w}\ns_cbranch_scc1 {heads[w]}\n' for w in range(3)) +
                      f's_branch {heads[3]}\n{back}:\ns_mov_b64 exec, -1')
    return res

if __name__ == '__main__':
    cfg = {}
    for a in sys.argv[2:]:
        k, _, v = a.partition('=')
        if k == 'st':
            STAMPS[0] = True; SEL.extend(v.split(','))
        elif k == 'dbg':
            STAMPS[0] = 'dbg'; SEL.extend(v.split(','))
        elif k in ('plan', 'abl', 'lp', 'lq'): cfg[k] = v
        elif k in ('doses', 'bars', 'pst', 'wgap', 'xgap', 'wu', 'wus'): cfg[k] = [int(x) for x in v.split(',')]
        else: cfg[k] = int(v) if v else 1
    if cfg.get('vc'): COST['vmem'] = cfg['vc']
    if cfg.get('dc'): COST['ds'] = cfg['dc']
    L = build(cfg)
    print('instructions', sum(1 for x in L if x.states()), 'estimate', estimate(L), 'nops', sum(1 for x in L if x.cls == 'nop'))
    src = '; @launch grid=(256,1,1) block=(256,1,1) lds=163840\n.amdgcn_target "amdgcn-amd-amdhsa--gfx950"\n' + kernel_text(NAME + '_kernel', L, cfg.get('al'))
    open(sys.argv[1], 'w').write(src)
```
